```python
import torch

def _softmax(x, axis=-1):
    return torch.softmax(x, dim=axis)
def _gelu(x):
    return torch.nn.functional.gelu(x, approximate="tanh")
def _silu(x):
    return torch.nn.functional.silu(x)
def _sigmoid(x):
    return torch.sigmoid(x)
def _layernorm(x, axis=-1, eps=1e-5):
    m = x.mean(dim=axis, keepdim=True)
    v = x.var(dim=axis, keepdim=True, unbiased=False)
    return (x - m) / torch.sqrt(v + eps)
def _scatter_add(tgt, idx, src, axis=0):
    return tgt.clone().index_add_(axis, idx, src)
def _segment_sum(src, seg, n):
    out = torch.zeros((n,) + src.shape[1:], dtype=src.dtype)
    return out.index_add_(0, seg, src)
def _pad(x, pw):
    flat = tuple(v for pair in reversed(pw) for v in pair)
    return torch.nn.functional.pad(x, flat)

kernel_name = 'gated_mix__sliding_local_dilated__dense_activation_gelu__prompt'

def setup_inputs():

    _w = (lambda a: (lambda t: t.to(torch.bfloat16) if t.is_floating_point() else t)(torch.as_tensor(a)))
    def _A_setup():
        B, S, D = 1, 2048, 640
        return {
            "x": _w((lambda *s: torch.randn(*s, dtype=torch.bfloat16) * 0.05)(B, S, D)),
            "wqkv": _w((lambda *s: torch.randn(*s, dtype=torch.bfloat16) * 0.8)(D, 3 * D)),
            "wo": _w((lambda *s: torch.randn(*s, dtype=torch.bfloat16) * 0.05)(D, D)),
        }
    _A_in = _A_setup()

    def _B_setup():
        B, S, D, F = 1, 2048, 640, 1536
        return {
            "x": _w((lambda *s: torch.randn(*s, dtype=torch.bfloat16) * 0.05)(B, S, D)),
            "w1": _w((lambda *s: torch.randn(*s, dtype=torch.bfloat16) * 12.8)(D, F) * (D ** -0.5)),
            "b1": _w((lambda *s: torch.randn(*s, dtype=torch.bfloat16) * 12.8)(F) * 0.01),
            "w2": _w((lambda *s: torch.randn(*s, dtype=torch.bfloat16) * 1.6)(F, D) * (F ** -0.5)),
            "b2": _w((lambda *s: torch.randn(*s, dtype=torch.bfloat16) * 12.8)(D) * 0.01),
        }
    _B_in = _B_setup()

    return {
        "A_x": _A_in["x"],
        "A_wqkv": _A_in["wqkv"],
        "A_wo": _A_in["wo"],
        "B_x": _B_in["x"],
        "B_w1": _B_in["w1"],
        "B_b1": _B_in["b1"],
        "B_w2": _B_in["w2"],
        "B_b2": _B_in["b2"],
        "gate_w": _w((lambda *s: torch.randn(*s, dtype=torch.bfloat16) * 0.05)(640) * 16.0),
    }

def reference(A_x, A_wqkv, A_wo, B_x, B_w1, B_b1, B_w2, B_b2, gate_w):
    def _A_ref(x, wqkv, wo):
        B, S, D = x.shape
        H = 32; Dh = D // H
        W, dil = 8, 2
        qkv = (lambda x, *d: x.permute(*d))((x @ wqkv).reshape(B, S, 3, H, Dh), 2, 0, 3, 1, 4)
        q, k, v = qkv[0], qkv[1], qkv[2]
        scale = Dh ** -0.5
        pos = torch.arange(S)
        off = torch.arange(W) * dil
        idx = pos[:, None] - off[None, :]
        mask = idx >= 0
        idx_c = torch.where(mask, idx, 0).reshape(-1)
        kg = k[:, :, idx_c, :].reshape(B, H, S, W, Dh)
        vg = v[:, :, idx_c, :].reshape(B, H, S, W, Dh)
        logits = torch.einsum("bhsd,bhswd->bhsw", q, kg) * scale
        logits = torch.where(mask[None, None, :, :], logits, -1e9)
        attn = _softmax(logits, axis=-1)
        o = torch.einsum("bhsw,bhswd->bhsd", attn, vg)
        return (lambda x, *d: x.permute(*d))(o, 0, 2, 1, 3).reshape(B, S, D) @ wo

    def _B_ref(x, w1, b1, w2, b2):
        h = torch.einsum("bsd,df->bsf", x, w1) + b1
        h = _gelu(h)
        return torch.einsum("bsf,fd->bsd", h, w2) + b2

    x = A_x
    g = _sigmoid((x * gate_w).sum(-1, keepdims=True))
    a = _A_ref(x, A_wqkv, A_wo)
    b = _B_ref(x, B_w1, B_b1, B_w2, B_b2)
    return g * a + (1 - g) * b
```

```python
import re

TRANS = ("v_exp_f32", "v_log_f32", "v_rcp_f32", "v_rsq_f32", "v_sqrt_f32", "v_sin_f32", "v_cos_f32")


def parse_reg(tok):
    tok = tok.strip()
    tok = tok.lstrip("-").strip("|")
    m = re.fullmatch(r"([vas])(\d+)", tok)
    if m:
        return [(m.group(1), int(m.group(2)))]
    m = re.fullmatch(r"([vas])\[(\d+):(\d+)\]", tok)
    if m:
        return [(m.group(1), i) for i in range(int(m.group(2)), int(m.group(3)) + 1)]
    if tok == "vcc":
        return [("vcc", 0), ("vcc", 1)]
    if tok == "vcc_lo":
        return [("vcc", 0)]
    if tok == "vcc_hi":
        return [("vcc", 1)]
    if tok == "exec":
        return [("exec", 0), ("exec", 1)]
    if tok in ("exec_lo", "exec_hi"):
        return [("exec", 0 if tok.endswith("lo") else 1)]
    if tok == "m0":
        return [("m0", 0)]
    return []


def split_ops(s):
    out, depth, cur = [], 0, ""
    for ch in s:
        if ch == "[":
            depth += 1
        elif ch == "]":
            depth -= 1
        if ch == "," and depth == 0:
            out.append(cur.strip())
            cur = ""
        else:
            cur += ch
    if cur.strip():
        out.append(cur.strip())
    return out


class Ins:
    __slots__ = ("text", "mn", "kind", "wr", "rd", "srcA", "srcB", "srcC", "states", "data", "dpp", "opsel", "lds")


def analyze(text):
    t = text.split(";")[0].strip()
    parts = t.split(None, 1)
    mn = parts[0]
    rest = parts[1] if len(parts) > 1 else ""
    ops = split_ops(rest)
    toks = []
    mods = ""
    for k, o in enumerate(ops):
        if k == len(ops) - 1:
            depth = 0
            cut = None
            for p, ch in enumerate(o):
                if ch == "[":
                    depth += 1
                elif ch == "]":
                    depth -= 1
                elif ch == " " and depth == 0:
                    cut = p
                    break
            if cut is not None:
                mods = o[cut:]
                o = o[:cut]
        toks.append(o)
    regs = [parse_reg(o) for o in toks]
    I = Ins()
    I.text = text
    I.mn = mn
    I.wr, I.rd = set(), set()
    I.srcA = I.srcB = I.srcC = None
    I.states = 1
    I.data = set()
    I.dpp = ("dpp" in mn) or ("row_" in mods) or ("quad_perm" in mods)
    I.opsel = False
    I.lds = False
    base = mn.replace("_e32", "").replace("_e64", "").replace("_dpp", "")
    if mn == "s_nop":
        I.kind = "nop"
        I.states = int(toks[0], 0) + 1
    elif mn.startswith("v_mfma"):
        I.kind = "mfma"
        I.wr = set(regs[0])
        I.srcA, I.srcB, I.srcC = regs[1], regs[2], regs[3]
        I.rd = set(regs[1]) | set(regs[2]) | set(regs[3])
    elif mn.startswith("v_"):
        I.kind = "trans" if base in TRANS else "valu"
        if base.startswith("v_permlane") and "swap" in base:
            I.kind = "permlane"
            I.wr = set(regs[0]) | set(regs[1])
            I.rd = set(I.wr)
        elif base.startswith("v_readfirstlane") or base.startswith("v_readlane"):
            I.kind = "readlane"
            I.wr = set(regs[0])
            for r in regs[1:]:
                I.rd |= set(r)
        elif base.startswith("v_cmp"):
            I.wr = set(regs[0])
            for r in regs[1:]:
                I.rd |= set(r)
        elif re.match(r"v_(add|sub|subrev)_co_u32", base) or re.match(r"v_(addc|subb)_co_u32", base):
            I.wr = set(regs[0]) | set(regs[1])
            for r in regs[2:]:
                I.rd |= set(r)
        else:
            I.wr = set(regs[0])
            for r in regs[1:]:
                I.rd |= set(r)
            if base.startswith("v_fmac") or base.startswith("v_dot2c") or base.startswith("v_mac"):
                I.rd |= set(regs[0])
            if base.startswith("v_cndmask") and len(regs) == 3:
                I.rd |= {("vcc", 0), ("vcc", 1)}
            if base.startswith("v_dot"):
                I.kind = "dot"
            if I.dpp:
                I.rd |= set(regs[0])
    elif mn.startswith("ds_"):
        I.kind = "ds"
        if mn.startswith("ds_read") or mn.startswith("ds_bpermute") or mn.startswith("ds_swizzle"):
            I.wr = set(regs[0])
            for r in regs[1:]:
                I.rd |= set(r)
        else:
            for r in regs:
                I.rd |= set(r)
    elif mn.startswith("buffer_") or mn.startswith("global_"):
        I.kind = "vmem"
        if re.search(r"\blds\b", mods) or "_lds_" in mn:
            I.lds = True
            for r in regs:
                I.rd |= set(r)
            I.rd.add(("m0", 0))
        elif "load" in mn:
            I.wr = set(regs[0])
            for r in regs[1:]:
                I.rd |= set(r)
        else:
            for r in regs:
                I.rd |= set(r)
            if "x4" in mn or "x3" in mn:
                I.data = set(regs[0]) if mn.startswith("buffer_") else set(regs[1])
    elif mn.startswith("s_"):
        I.kind = "salu"
        if base.startswith(("s_cmp", "s_waitcnt", "s_barrier", "s_branch", "s_cbranch", "s_endpgm", "s_setprio", "s_sleep", "s_bitcmp")):
            for r in regs:
                I.rd |= set(r)
        else:
            if regs:
                I.wr = set(regs[0])
            for r in regs[1:]:
                I.rd |= set(r)
            if "saveexec" in base:
                I.wr |= {("exec", 0), ("exec", 1)}
    else:
        raise ValueError("unknown instr " + text)
    return I


VALUISH = ("valu", "trans", "permlane", "readlane", "dot")


def need(prod, cons):
    n = 0
    pv = prod.kind in VALUISH
    cv = cons.kind in VALUISH
    wv = {r for r in prod.wr if r[0] in "va"}
    ws = {r for r in prod.wr if r[0] in ("s", "vcc")}
    if pv:
        if cons.kind == "mfma" and (wv & cons.rd):
            n = max(n, 2)
        if cons.kind == "permlane" and (wv & cons.rd):
            n = max(n, 2)
        if cons.dpp and (wv & cons.rd):
            n = max(n, 2)
        if cons.kind == "readlane" and (wv & cons.rd):
            n = max(n, 1)
        if prod.kind == "trans" and (wv & (cons.rd | cons.wr)) and cons.kind != "trans":
            n = max(n, 1)
        if prod.kind == "dot" and (wv & (cons.rd | cons.wr)):
            if not (cons.kind == "dot" and cons.mn == prod.mn):
                n = max(n, 3)
            else:
                n = max(n, 0)
        if ws & cons.rd:
            if cons.kind == "vmem":
                n = max(n, 5)
            elif cons.kind == "readlane":
                n = max(n, 4)
            elif cv or cons.kind == "mfma":
                n = max(n, 2)
        if any(r[0] == "exec" for r in prod.wr):
            n = max(n, 5)
    if prod.kind == "mfma":
        if cons.kind == "mfma":
            if prod.wr & (set(cons.srcA) | set(cons.srcB)):
                n = max(n, 8)
            if prod.wr & set(cons.srcC):
                if set(cons.srcC) != prod.wr:
                    n = max(n, 6)
            elif prod.wr & cons.wr:
                n = max(n, 8)
        elif prod.wr & (cons.rd | cons.wr):
            n = max(n, 8)
        if cv and set(prod.srcC) & cons.wr:
            n = max(n, 3)
    if prod.kind == "salu" and ("m0", 0) in prod.wr and cons.lds:
        n = max(n, 1)
    if prod.kind == "vmem" and prod.data and (prod.data & cons.wr):
        n = max(n, 2 if cv else 1)
    return n


class Em:
    def __init__(self):
        self.lines = []
        self.hist = []
        self.nops = 0

    def raw(self, s):
        self.lines.append(s)

    def label(self, name):
        self.lines.append(name + ":")

    def c(self, s):
        self.lines.append("    ; " + s)

    def _pad_for(self, I, hist):
        dist = 0
        req = 0
        for P in reversed(hist):
            if dist >= 12:
                break
            nn = need(P, I)
            if nn > dist:
                req = max(req, nn - dist)
            dist += P.states
        return req

    def i(self, text):
        I = analyze(text)
        req = self._pad_for(I, self.hist)
        if req > 0:
            N = analyze("s_nop %d" % (req - 1))
            self.lines.append("    s_nop %d" % (req - 1))
            self.hist.append(N)
            self.nops += req
        self.lines.append("    " + text)
        self.hist.append(I)
        if len(self.hist) > 64:
            self.hist = self.hist[-32:]
        return I

    def mark(self):
        return len(self.lines)

    def check_backedge(self, start_line):
        h = list(self.hist)
        cnt = 0
        for ln in self.lines[start_line:]:
            s = ln.strip()
            if not s or s.startswith(";") or s.endswith(":") or s.startswith("."):
                continue
            I = analyze(s)
            req = self._pad_for(I, h)
            assert req == 0, "back-edge hazard at: " + s
            h.append(I)
            cnt += I.states
            if cnt > 14:
                break

    def fence(self):
        self.hist = []

    def text(self):
        return "\n".join(self.lines) + "\n"


def interleave(lists):
    out = []
    idx = [0] * len(lists)
    left = True
    while left:
        left = False
        for k, L in enumerate(lists):
            if idx[k] < len(L):
                out.append(L[idx[k]])
                idx[k] += 1
                left = True
    return out
```

```python
import math
import struct
import sys

from em import Em, interleave


def f2u(x):
    return struct.unpack("<I", struct.pack("<f", x))[0]


NKS = 68
ACT_OFF = 0
WF_OFF = 0x900000
G_OFF = 0xC00000
WS_SIZE = 0xC02000
TILE_B = NKS * 1024

X_BYTES = 2048 * 640 * 2
WQKV_BYTES = 640 * 1920 * 2
W1_BYTES = 640 * 1536 * 2
WO_BYTES = 640 * 640 * 2
W2_BYTES = 1536 * 640 * 2

Q_SLOT = 49152
Q_XSZ = 18432
H_SLOT = 40960
H_XSZ = 16384
K1_LDS = 3 * Q_SLOT


def v(n, cnt=1):
    return "v%d" % n if cnt == 1 else "v[%d:%d]" % (n, n + cnt - 1)


def a(n, cnt=1):
    return "a%d" % n if cnt == 1 else "a[%d:%d]" % (n, n + cnt - 1)


def s(n, cnt=1):
    return "s%d" % n if cnt == 1 else "s[%d:%d]" % (n, n + cnt - 1)


def mfma(d, A, B, C=None):
    return "v_mfma_f32_16x16x32_bf16 %s, %s, %s, %s" % (d, A, B, d if C is None else C)


def phase(em, mf, reads, dmas, extra=(), dma_start=1, dma_step=None):
    n = len(mf)
    if dmas:
        if dma_step is None:
            dma_step = max(1, (n - dma_start - 1) // len(dmas))
    dpos = {dma_start + k * dma_step: d for k, d in enumerate(dmas)} if dmas else {}
    assert all(p < n for p in dpos), (dpos.keys(), n)
    ri = 0
    ex = {}
    for p, ins in extra:
        ex.setdefault(p, []).append(ins)
    for k, m in enumerate(mf):
        if k in dpos:
            em.i(dpos[k][0])
        em.i(m)
        if k in dpos:
            em.i(dpos[k][1])
        if ri < len(reads):
            em.i(reads[ri])
            ri += 1
        for ins in ex.get(k, []):
            em.i(ins)
    while ri < len(reads):
        em.i(reads[ri])
        ri += 1


SRD_X, SRD_W, SRD_WS, SRD_T, SRD_T2 = 24, 28, 32, 36, 40
S_P, S_B, S_CG, S_WV = 44, 45, 46, 47
S_WOFF, S_WOFF2, S_XOFF, S_DM, S_RD, S_DELTA, S_CNT, S_STG = 48, 49, 50, 51, 52, 53, 54, 55
S_T0, S_T1, S_T2, S_T3, S_T4, S_T5 = 56, 57, 58, 59, 60, 61
S_C0 = 62
S_C1 = 64
S_UNIT = 66
S_EX = 68
S_RT = 70
BIGOFF = 0x7F000000


def srd(em, dst, base, nbytes, add=0):
    if add:
        em.i("s_add_u32 %s, %s, 0x%x" % (s(dst), s(base), add))
        em.i("s_addc_u32 %s, %s, 0" % (s(dst + 1), s(base + 1)))
    else:
        em.i("s_mov_b32 %s, %s" % (s(dst), s(base)))
        em.i("s_mov_b32 %s, %s" % (s(dst + 1), s(base + 1)))
    em.i("s_mov_b32 %s, 0x%x" % (s(dst + 2), nbytes))
    em.i("s_mov_b32 %s, 0x20000" % s(dst + 3))


def advance_dma(slot, wstep):
    L = []
    L.append("s_add_u32 %s, %s, 0x%x" % (s(S_WOFF), s(S_WOFF), wstep))
    L.append("s_add_u32 %s, %s, 1" % (s(S_STG), s(S_STG)))
    L.append("s_add_u32 %s, %s, 0x80" % (s(S_XOFF), s(S_XOFF)))
    L.append("s_cmp_ge_u32 %s, 10" % s(S_STG))
    L.append("s_cselect_b32 %s, 0x%x, %s" % (s(S_XOFF), BIGOFF, s(S_XOFF)))
    L.append("s_add_u32 %s, %s, 0x%x" % (s(S_DM), s(S_DM), slot))
    L.append("s_cmp_eq_u32 %s, 0x%x" % (s(S_DM), 3 * slot))
    L.append("s_cselect_b32 %s, 0, %s" % (s(S_DM), s(S_DM)))
    return L


def advance_rd(slot):
    L = []
    L.append("s_add_u32 %s, %s, 0x%x" % (s(S_RT), s(S_RD), slot))
    L.append("s_cmp_eq_u32 %s, 0x%x" % (s(S_RT), 3 * slot))
    L.append("s_cselect_b32 %s, 0, %s" % (s(S_RT), s(S_RT)))
    L.append("s_sub_u32 %s, %s, %s" % (s(S_DELTA), s(S_RT), s(S_RD)))
    L.append("s_mov_b32 %s, %s" % (s(S_RD), s(S_RT)))
    return L


def gen_q(em, rh, hp):
    w = 2 * rh + hp
    tag = "q%d" % w
    ha, hb = 2 * hp, 2 * hp + 1
    VL = 0
    VT = 1
    VWD = 8
    VXD = 12
    VXA0, VXA1, VWM, VWR = 18, 19, 20, 21
    ACC = 24
    accM = lambda t, c: ACC + (t * 6 + c) * 4
    accR = lambda n: ACC + 96 + n * 4
    accH = lambda n: ACC + 120 + n * 4
    NACC = 132
    EPI = 156
    FR = lambda st, k: st * 52 + k * 4
    wp = [range(0, 4), range(4, 8), range(8, 12), range(12, 15)][w]
    xi = [range(0, 4), range(4, 8), range(8, 12), range(12, 18)][w]
    em.label("L_%s" % tag)
    em.fence()
    em.i("v_lshrrev_b32 %s, 3, %s" % (v(VT), v(VL)))
    em.i("v_mul_u32_u24 %s, 0xa00, %s" % (v(VT), v(VT)))
    em.i("v_lshrrev_b32 %s, 4, %s" % (v(VT + 1), v(VL)))
    em.i("v_xor_b32 %s, %s, %s" % (v(VT + 1), v(VT + 1), v(VL)))
    em.i("v_and_b32 %s, 7, %s" % (v(VT + 1), v(VT + 1)))
    em.i("v_lshl_add_u32 %s, %s, 4, %s" % (v(VT + 2), v(VT + 1), v(VT)))
    em.i("v_xor_b32 %s, 64, %s" % (v(VT + 3), v(VT + 2)))
    em.i("s_lshl_b32 %s, %s, 8" % (s(S_T0), s(S_B)))
    em.i("s_add_u32 %s, %s, %s" % (s(S_T0), s(S_T0), s(S_P)))
    em.i("s_mul_i32 %s, %s, 0x500" % (s(S_T0), s(S_T0)))
    em.i("s_sub_u32 %s, %s, 0x%x" % (s(S_T1), s(S_T0), 32 * 1280))
    em.i("s_cmp_eq_u32 %s, 0" % s(S_B))
    em.i("s_cselect_b32 %s, %s, %s" % (s(S_T2), s(S_T0), s(S_T1)))
    for n, i in enumerate(xi):
        src = VT + 2 + (i & 1)
        if i < 2:
            em.i("s_add_u32 %s, %s, 0x%x" % (s(S_T3), s(S_T2), 20480))
        else:
            em.i("s_add_u32 %s, %s, 0x%x" % (s(S_T3), s(S_T1), 20480 * i))
        em.i("v_add_u32 %s, %s, %s" % (v(VXD + n), s(S_T3), v(src)))
    em.i("s_mul_i32 %s, %s, 160" % (s(S_T4), s(S_CG)))
    for n, i in enumerate(wp):
        d = VWD + n
        em.i("v_add_u32 %s, 0x%x, %s" % (v(VT), 64 * i, v(VL)))
        em.i("v_mul_u32_u24 %s, 0x889, %s" % (v(VT + 1), v(VT)))
        em.i("v_lshrrev_b32 %s, 16, %s" % (v(VT + 1), v(VT + 1)))
        em.i("v_mul_u32_u24 %s, 30, %s" % (v(VT + 4), v(VT + 1)))
        em.i("v_sub_u32 %s, %s, %s" % (v(VT), v(VT), v(VT + 4)))
        em.i("v_mul_u32_u24 %s, 0xcd, %s" % (v(VT + 4), v(VT)))
        em.i("v_lshrrev_b32 %s, 11, %s" % (v(VT + 4), v(VT + 4)))
        em.i("v_mul_u32_u24 %s, 0x460, %s" % (v(VT + 4), v(VT + 4)))
        em.i("v_lshl_add_u32 %s, %s, 4, %s" % (v(VT), v(VT), v(VT + 4)))
        em.i("v_and_b32 %s, 0x13, %s" % (v(VT + 4), v(VT + 1)))
        em.i("v_and_b32 %s, 4, %s" % (v(VT + 5), v(VT + 1)))
        em.i("v_lshl_or_b32 %s, %s, 1, %s" % (v(VT + 4), v(VT + 5), v(VT + 4)))
        em.i("v_and_b32 %s, 8, %s" % (v(VT + 5), v(VT + 1)))
        em.i("v_lshrrev_b32 %s, 1, %s" % (v(VT + 5), v(VT + 5)))
        em.i("v_or_b32 %s, %s, %s" % (v(VT + 4), v(VT + 4), v(VT + 5)))
        em.i("v_mul_u32_u24 %s, 0xf00, %s" % (v(VT + 4), v(VT + 4)))
        em.i("v_add3_u32 %s, %s, %s, %s" % (v(d), v(VT), v(VT + 4), s(S_T4)))

    dma = []
    xl = [("s_add_u32 m0, %s, 0x%x" % (s(S_DM), 1024 * i),
           "buffer_load_dwordx4 %s, %s, %s offen lds" % (v(VXD + n), s(SRD_X, 4), s(S_XOFF))) for n, i in enumerate(xi)]
    wl = []
    for n, i in enumerate(wp):
        wl.append(("s_add_u32 m0, %s, 0x%x" % (s(S_DM), Q_XSZ + 1024 * i),
                   "buffer_load_dwordx4 %s, %s, %s offen lds" % (v(VWD + n), s(SRD_W, 4), s(S_WOFF))))
    for n, i in enumerate(wp):
        wl.append(("s_add_u32 m0, %s, 0x%x" % (s(S_DM), Q_XSZ + 1024 * (i + 15)),
                   "buffer_load_dwordx4 %s, %s, %s offen lds" % (v(VWD + n), s(SRD_W, 4), s(S_WOFF2))))
    dma = xl + wl
    assert len(dma) == 12
    adv = advance_dma(Q_SLOT, 64 * 3840) + ["s_add_u32 %s, %s, 0x%x" % (s(S_WOFF2), s(S_WOFF), 32 * 3840)]

    em.i("s_mov_b32 %s, 0" % s(S_WOFF))
    em.i("s_mov_b32 %s, 0x%x" % (s(S_WOFF2), 32 * 3840))
    em.i("s_mov_b32 %s, 0" % s(S_XOFF))
    em.i("s_mov_b32 %s, 0" % s(S_DM))
    em.i("s_mov_b32 %s, 0" % s(S_STG))
    em.i("s_mov_b32 %s, 0" % s(S_RD))
    em.i("s_waitcnt lgkmcnt(0)")
    srd(em, SRD_X, 4, X_BYTES)
    srd(em, SRD_W, 6, WQKV_BYTES)
    srd(em, SRD_WS, 20, WS_SIZE)
    for st in range(2):
        for m, l in dma:
            em.i(m)
            em.i(l)
        for x in adv:
            em.i(x)
    for m, l in dma[:6]:
        em.i(m)
        em.i(l)
    em.i("v_and_b32 %s, 15, %s" % (v(VT), v(VL)))
    em.i("v_lshrrev_b32 %s, 1, %s" % (v(VT + 1), v(VT)))
    em.i("v_lshrrev_b32 %s, 4, %s" % (v(VT + 2), v(VL)))
    em.i("v_xor_b32 %s, %s, %s" % (v(VT + 1), v(VT + 1), v(VT + 2)))
    em.i("v_lshlrev_b32 %s, 4, %s" % (v(VT + 1), v(VT + 1)))
    em.i("v_lshl_add_u32 %s, %s, 7, %s" % (v(VXA0), v(VT), v(VT + 1)))
    em.i("v_xor_b32 %s, 64, %s" % (v(VXA1), v(VXA0)))
    em.i("v_lshrrev_b32 %s, 5, %s" % (v(VT), v(VL)))
    em.i("v_lshlrev_b32 %s, 4, %s" % (v(VT), v(VT)))
    em.i("v_bfe_u32 %s, %s, 4, 1" % (v(VT + 1), v(VL)))
    em.i("v_lshl_add_u32 %s, %s, 2, %s" % (v(VT), v(VT + 1), v(VT)))
    em.i("v_bfe_u32 %s, %s, 2, 2" % (v(VT + 1), v(VL)))
    em.i("v_add_u32 %s, %s, %s" % (v(VT), v(VT), v(VT + 1)))
    em.i("v_mul_u32_u24 %s, 0x1e0, %s" % (v(VT), v(VT)))
    em.i("v_and_b32 %s, 3, %s" % (v(VT + 1), v(VL)))
    em.i("v_lshl_add_u32 %s, %s, 3, %s" % (v(VWM), v(VT + 1), v(VT)))
    em.i("v_mul_u32_u24 %s, 40, %s" % (v(VT + 1), v(VT + 1)))
    em.i("v_add3_u32 %s, %s, %s, 32" % (v(VWR), v(VT), v(VT + 1)))
    for r in range(ACC, ACC + NACC, 2):
        em.i("v_mov_b64 %s, 0" % v(r, 2))

    def reads(st, ks):
        L = []
        xa = VXA1 if ks else VXA0
        R = []
        for t in range(4):
            R.append("ds_read_b128 %s, %s offset:%d" % (a(FR(st, t), 4), v(xa), (1 + 4 * rh + t) * 2048))
        R.append("ds_read_b128 %s, %s offset:0" % (a(FR(st, 4), 4), v(xa)))
        Wl = []
        cols = [(0, ha), (0, hb), (1, ha), (1, hb), (2, ha), (2, hb)]
        for c, (P, hd) in enumerate(cols):
            for h in range(2):
                Wl.append("ds_read_b64_tr_b16 %s, %s offset:%d" % (
                    a(FR(st, 5 + c) + 2 * h, 2), v(VWM), Q_XSZ + (32 * ks + 8 * h) * 480 + 160 * P + 40 * hd))
        for c, P in enumerate([0 if hp == 0 else 2, 1]):
            for h in range(2):
                Wl.append("ds_read_b64_tr_b16 %s, %s offset:%d" % (
                    a(FR(st, 11 + c) + 2 * h, 2), v(VWR), Q_XSZ + (32 * ks + 8 * h) * 480 + 160 * P))
        return R + Wl

    krt = (0, 1) if hp == 0 else (2, 3)

    def mfmas(st):
        X = lambda t: a(FR(st, t), 4)
        XH = a(FR(st, 4), 4)
        W = lambda c: a(FR(st, 5 + c), 4)
        R0, R1 = a(FR(st, 11), 4), a(FR(st, 12), 4)
        L = []
        for t in range(4):
            for c in range(4):
                L.append(mfma(v(accM(t, c), 4), W(c), X(t)))
            for c in (4, 5):
                L.append(mfma(v(accM(t, c), 4), X(t), W(c)))
            if hp == 0:
                L.append(mfma(v(accR(t), 4), R0, X(t)))
            else:
                L.append(mfma(v(accR(t), 4), X(t), R0))
        for n, t in enumerate(krt):
            L.append(mfma(v(accR(4 + n), 4), R1, X(t)))
        if rh == 0:
            L.append(mfma(v(accH(0), 4), W(2), XH))
            L.append(mfma(v(accH(1), 4), W(3), XH))
            if hp == 0:
                L.append(mfma(v(accH(2), 4), R1, XH))
            else:
                L.append(mfma(v(accH(2), 4), XH, R0))
        else:
            L.append(mfma(v(accH(0), 4), XH, W(4)))
            L.append(mfma(v(accH(1), 4), XH, W(5)))
        return L

    em.i("s_waitcnt vmcnt(18)")
    em.i("s_barrier")
    for r in reads(0, 0):
        em.i(r)
    em.i("s_mov_b32 %s, 10" % s(S_CNT))
    em.label("L_%s_loop" % tag)
    top = em.mark()
    em.i("s_waitcnt lgkmcnt(0)")
    ex = [(24 + k, x) for k, x in enumerate(adv[:4])] + [(28, x) for x in adv[4:]]
    ex += [(22, x) for x in advance_rd(Q_SLOT)]
    ex.append((23, "v_add_u32 %s, %s, %s" % (v(VXA0), s(S_DELTA), v(VXA0))))
    ex.append((29, "v_add_u32 %s, %s, %s" % (v(VXA1), s(S_DELTA), v(VXA1))))
    ex.append((30, "v_add_u32 %s, %s, %s" % (v(VWM), s(S_DELTA), v(VWM))))
    ex.append((30, "v_add_u32 %s, %s, %s" % (v(VWR), s(S_DELTA), v(VWR))))
    phase(em, mfmas(0), reads(1, 1), dma[6:], extra=ex, dma_start=1, dma_step=4)
    em.i("s_waitcnt vmcnt(12) lgkmcnt(0)")
    em.i("s_barrier")
    phase(em, mfmas(1), reads(0, 0), dma[:6], extra=[(26, "s_sub_u32 %s, %s, 1" % (s(S_CNT), s(S_CNT))),
                                                    (27, "s_cmp_lg_u32 %s, 0" % s(S_CNT))], dma_start=1, dma_step=4)
    em.i("s_cbranch_scc1 L_%s_loop" % tag)
    em.check_backedge(top)
    em.i("s_waitcnt vmcnt(0) lgkmcnt(0)")
    em.i("s_barrier")
    Rs = lambda ty, tl: (ty * 9 + tl) * 512
    PMs = lambda wh, kd, hd: (27 + wh * 8 + kd * 4 + hd) * 512
    VE = EPI
    VHa, VHb, VRr = EPI + 2, EPI + 12, EPI + 22
    KP = (EPI + 32, EPI + 36)
    MC, MP, MPF = EPI + 40, EPI + 44, EPI + 48
    ONES = EPI + 52
    VMA, VMB = EPI + 56, EPI + 57
    QR = EPI + 58
    em.i("v_lshlrev_b32 %s, 3, %s" % (v(VE), v(VL)))

    def cvt2(dst, src):
        return ["v_cvt_pk_bf16_f32 %s, %s, %s" % (v(dst), v(src), v(src + 1)),
                "v_cvt_pk_bf16_f32 %s, %s, %s" % (v(dst + 1), v(src + 2), v(src + 3))]

    wr = []
    for t in range(4):
        wr.append((accR(t), Rs(0 if hp == 0 else 2, 1 + 4 * rh + t)))
    for n, t in enumerate(krt):
        wr.append((accR(4 + n), Rs(1, 1 + 4 * rh + t)))
    if rh == 0:
        wr.append((accH(0), PMs(0, 0, ha)))
        wr.append((accH(1), PMs(0, 0, hb)))
        wr.append((accH(2), Rs(1 if hp == 0 else 2, 0)))
    else:
        wr.append((accH(0), PMs(0, 1, ha)))
        wr.append((accH(1), PMs(0, 1, hb)))
    for r, off in wr:
        for x in cvt2(r, r):
            em.i(x)
        em.i("ds_write_b64 %s, %s offset:%d" % (v(VE), v(r, 2), off))
    for t in (3, 0, 1, 2):
        for e, c in ((0, 2), (1, 3)):
            for x in cvt2(accM(t, c), accM(t, c)):
                em.i(x)
            if t == 3 and rh == 0:
                em.i("ds_write_b64 %s, %s offset:%d" % (v(VE), v(accM(t, c), 2), PMs(1, 0, (ha, hb)[e])))
        for e, c in ((0, 4), (1, 5)):
            dst = (VHa, VHb)[e] + 2 + 2 * t
            for x in cvt2(dst, accM(t, c)):
                em.i(x)
            if t == 3 and rh == 0:
                em.i("ds_write_b64 %s, %s offset:%d" % (v(VE), v(dst, 2), PMs(1, 1, (ha, hb)[e])))
        if t == 3:
            em.i("s_waitcnt lgkmcnt(0)")
            em.i("s_barrier")
            for tt in range(4):
                em.i("ds_read_b64 %s, %s offset:%d" % (v(QR + 2 * tt, 2), v(VE), Rs(0, 1 + 4 * rh + tt)))
            for e in range(2):
                em.i("ds_read_b64 %s, %s offset:%d" % (v(KP[e], 2), v(VE), PMs(rh, 0, (ha, hb)[e])))
                em.i("ds_read_b64 %s, %s offset:%d" % (v(KP[e] + 2, 2), v(VE), Rs(1, 4 * rh)))
                em.i("ds_read_b64 %s, %s offset:%d" % (v((VHa, VHb)[e], 2), v(VE), PMs(rh, 1, (ha, hb)[e])))
            for tt in range(5):
                em.i("ds_read_b64 %s, %s offset:%d" % (v(VRr + 2 * tt, 2), v(VE), Rs(2, 4 * rh + tt)))
            em.i("ds_read_b64 %s, %s offset:%d" % (v(accM(3, 2) + 2, 2), v(VE), Rs(1, 4 + 4 * rh)))
            em.i("s_waitcnt lgkmcnt(8)")
            em.i("ds_read_b64 %s, %s offset:%d" % (v(accM(3, 3) + 2, 2), v(VE), Rs(1, 4 + 4 * rh)))
        else:
            em.i("ds_read_b64 %s, %s offset:%d" % (v(accM(t, 2) + 2, 2), v(VE), Rs(1, 1 + 4 * rh + t)))
            em.i("ds_read_b64 %s, %s offset:%d" % (v(accM(t, 3) + 2, 2), v(VE), Rs(1, 1 + 4 * rh + t)))
    for t in range(4):
        for c in (0, 1):
            for x in cvt2(accM(t, c), accM(t, c)):
                em.i(x)
    NEG = f2u(-1.0e30)
    em.i("v_and_b32 %s, 15, %s" % (v(VT), v(VL)))
    em.i("v_lshrrev_b32 %s, 4, %s" % (v(VT + 1), v(VL)))
    em.i("v_lshlrev_b32 %s, 2, %s" % (v(VT + 2), v(VT + 1)))
    em.i("v_sub_u32 %s, %s, %s" % (v(VT + 2), v(VT), v(VT + 2)))
    em.i("v_mov_b32 %s, 0x%x" % (v(VT + 3), NEG))
    for r in range(4):
        em.i("v_subrev_u32 %s, %d, %s" % (v(VT + 4), r, v(VT + 2)))
        em.i("v_cmp_gt_u32 vcc, 8, %s" % v(VT + 4))
        em.i("v_cndmask_b32 %s, %s, 0, vcc" % (v(MC + r), v(VT + 3)))
        em.i("v_cmp_ge_i32 vcc, -9, %s" % v(VT + 4))
        em.i("v_cndmask_b32 %s, %s, 0, vcc" % (v(MP + r), v(VT + 3)))
    if rh == 0:
        em.i("s_cmp_eq_u32 %s, 0" % s(S_B))
        em.i("s_cselect_b64 %s, -1, 0" % s(S_EX, 2))
        for r in range(4):
            em.i("v_cndmask_b32 %s, %s, %s, %s" % (v(MPF + r), v(MP + r), v(VT + 3), s(S_EX, 2)))
    for r in range(4):
        em.i("v_mov_b32 %s, 0x3f803f80" % v(ONES + r))
    em.i("v_cmp_eq_u32 vcc, %d, %s" % (ha, v(VT + 1)))
    em.i("v_cndmask_b32 %s, 0, -1, vcc" % v(VMA))
    em.i("v_cmp_eq_u32 %s, %d, %s" % (s(S_EX, 2), hb, v(VT + 1)))
    em.i("v_cndmask_b32 %s, 0, -1, %s" % (v(VMB), s(S_EX, 2)))
    em.i("s_mov_b32 %s, 0x%x" % (s(S_C0), f2u(20.0 ** -0.5 * math.log2(math.e))))
    em.i("s_mov_b32 %s, 0x%x" % (s(S_C0 + 1), f2u(20.0 ** -0.5 * math.log2(math.e))))
    em.i("s_waitcnt lgkmcnt(0)")
    for t in range(4):
        for e in range(2):
            for d in range(2):
                em.i("v_and_b32 %s, %s, %s" % (v(accM(t, e) + 2 + d), v((VMA, VMB)[e]), v(QR + 2 * t + d)))
    em.i("s_lshl_b32 %s, %s, 6" % (s(S_T0), s(S_P)))
    em.i("s_lshl_b32 %s, %s, 3" % (s(S_T1), s(S_B)))
    em.i("s_add_u32 %s, %s, %s" % (s(S_T0), s(S_T0), s(S_T1)))
    em.i("s_add_u32 %s, %s, %d" % (s(S_T0), s(S_T0), 4 * rh))
    em.i("s_mul_i32 %s, %s, 0x%x" % (s(S_T0), s(S_T0), TILE_B))
    em.i("s_lshl_b32 %s, %s, 11" % (s(S_T1), s(S_CG)))
    em.i("s_add_u32 %s, %s, %s" % (s(S_T1), s(S_T1), s(S_T0)))
    em.i("s_add_u32 %s, %s, %d" % (s(S_T1), s(S_T1), 1024 * hp))
    em.i("s_lshr_b32 %s, %s, 1" % (s(S_T2), s(S_CG)))
    em.i("s_lshl_b32 %s, %s, 10" % (s(S_T2), s(S_T2)))
    em.i("s_add_u32 %s, %s, %s" % (s(S_T2), s(S_T2), s(S_T0)))
    em.i("s_and_b32 %s, %s, 1" % (s(S_T3), s(S_CG)))
    em.i("s_lshl_b32 %s, %s, 3" % (s(S_T3), s(S_T3)))
    em.i("s_add_u32 %s, %s, %s" % (s(S_T2), s(S_T2), s(S_T3)))
    em.i("s_add_u32 %s, %s, %d" % (s(S_T2), s(S_T2), 16 * 1024))
    em.i("v_lshlrev_b32 %s, 4, %s" % (v(VE + 1), v(VL)))
    VST = VE + 1

    pool = [accM(0, 4), accM(1, 4), accM(2, 4), accM(3, 4), 120, 128, 136, 144, 224, 232, 240, 248]

    def unit(t, e, regs):
        S, A_, B_ = regs
        M, M2, SUM = A_, A_ + 2, A_ + 4
        O, OR = B_, B_ + 4
        Q = v(accM(t, e), 4)
        Kc = v(accM(t, 2 + e), 4)
        Kp = v(accM(t - 1, 2 + e), 4) if t > 0 else v(KP[e], 4)
        mp = MPF if (t == 0 and rh == 0) else MP
        VH = (VHa, VHb)[e]
        L = []
        L.append(mfma(v(S, 4), Kp, Q, v(mp, 4)))
        L.append(mfma(v(S + 4, 4), Kc, Q, v(MC, 4)))
        L.append("v_max3_f32 %s, %s, %s, %s" % (v(M), v(S), v(S + 1), v(S + 2)))
        L.append("v_max3_f32 %s, %s, %s, %s" % (v(M2), v(S + 3), v(S + 4), v(S + 5)))
        L.append("v_max3_f32 %s, %s, %s, %s" % (v(M), v(M), v(S + 6), v(S + 7)))
        L.append("v_max_f32 %s, %s, %s" % (v(M), v(M), v(M2)))
        L.append("v_mov_b32 %s, %s" % (v(M2), v(M)))
        L.append("v_permlane16_swap_b32 %s, %s" % (v(M), v(M2)))
        L.append("v_max_f32 %s, %s, %s" % (v(M), v(M), v(M2)))
        L.append("v_mov_b32 %s, %s" % (v(M2), v(M)))
        L.append("v_permlane32_swap_b32 %s, %s" % (v(M), v(M2)))
        L.append("v_max_f32 %s, %s, %s" % (v(M), v(M), v(M2)))
        L.append("v_mul_f32 %s, %s, %s" % (v(M), s(S_C0), v(M)))
        for k in range(0, 8, 2):
            L.append("v_pk_fma_f32 %s, %s, %s, %s op_sel_hi:[1,0,0] neg_lo:[0,0,1] neg_hi:[0,0,1]" % (
                v(S + k, 2), v(S + k, 2), s(S_C0, 2), v(M, 2)))
        for k in range(8):
            L.append("v_exp_f32 %s, %s" % (v(S + k), v(S + k)))
        for k in range(4):
            L.append("v_cvt_pk_bf16_f32 %s, %s, %s" % (v(S + k), v(S + 2 * k), v(S + 2 * k + 1)))
        P = v(S, 4)
        L.append(mfma(v(SUM, 4), v(ONES, 4), P, "0"))
        L.append(mfma(v(O, 4), v(VH + 2 * t, 4), P, "0"))
        L.append(mfma(v(OR, 4), v(VRr + 2 * t, 4), P, "0"))
        L.append("v_rcp_f32 %s, %s" % (v(M), v(SUM)))
        L.append("v_pk_mul_f32 %s, %s, %s op_sel_hi:[1,0]" % (v(O, 2), v(O, 2), v(M, 2)))
        L.append("v_pk_mul_f32 %s, %s, %s op_sel_hi:[1,0]" % (v(O + 2, 2), v(O + 2, 2), v(M, 2)))
        L.append("v_pk_mul_f32 %s, %s, %s op_sel_hi:[1,0]" % (v(OR, 2), v(OR, 2), v(M, 2)))
        L.append("v_pk_mul_f32 %s, %s, %s op_sel_hi:[1,0]" % (v(OR + 2, 2), v(OR + 2, 2), v(M, 2)))
        dst = accM(t, 0) + 2 * e
        L.append("v_cvt_pk_bf16_f32 %s, %s, %s" % (v(dst), v(O), v(O + 1)))
        L.append("v_cvt_pk_bf16_f32 %s, %s, %s" % (v(dst + 1), v(O + 2), v(O + 3)))
        L.append("v_cvt_pk_bf16_f32 %s, %s, %s" % (v(OR), v(OR), v(OR + 1)))
        L.append("v_cvt_pk_bf16_f32 %s, %s, %s" % (v(OR + 1), v(OR + 2), v(OR + 3)))
        return L

    for half in range(2):
        ul = []
        us = []
        for n, (t, e) in enumerate([(2 * half, 0), (2 * half, 1), (2 * half + 1, 0), (2 * half + 1, 1)]):
            regs = (pool[n], pool[4 + n], pool[8 + n])
            us.append((t, e, regs))
            ul.append(unit(t, e, regs))
        for x in interleave(ul):
            em.i(x)
        for n in (0, 2):
            t = us[n][0]
            ORa = us[n][2][2] + 4
            ORb = us[n + 1][2][2] + 4
            em.i("v_cndmask_b32 %s, %s, %s, %s" % (v(ORa), v(ORa), v(ORb), s(S_EX, 2)))
            em.i("v_cndmask_b32 %s, %s, %s, %s" % (v(ORa + 1), v(ORa + 1), v(ORb + 1), s(S_EX, 2)))
            em.i("s_add_u32 %s, %s, 0x%x" % (s(S_T3), s(S_T1), t * TILE_B))
            em.i("buffer_store_dwordx4 %s, %s, %s, %s offen" % (v(accM(t, 0), 4), v(VST), s(SRD_WS, 4), s(S_T3)))
            em.i("s_add_u32 %s, %s, 0x%x" % (s(S_T4), s(S_T2), t * TILE_B))
            em.i("s_mov_b32 %s, 0" % ("exec_hi" if hp == 0 else "exec_lo"))
            em.i("buffer_store_dwordx2 %s, %s, %s, %s offen" % (v(ORa, 2), v(VST), s(SRD_WS, 4), s(S_T4)))
            em.i("s_mov_b64 exec, -1")
    em.i("s_endpgm")


def gen_h(em):
    VL, VT = 0, 1
    VWD, VXD = 8, 14
    VXA0, VXA1 = 18, 19
    VWA = 20
    ACC = 24
    acc = lambda t, u: ACC + (t * 6 + u) * 4
    RIN = 120
    ROUT = 152
    VG = 184
    VRS = 185
    GX = 24
    BIAS = 186
    TMP = 200
    FR = lambda st, k: st * 40 + k * 4
    em.label("L_h")
    em.fence()
    em.i("s_lshr_b32 %s, %s, 1" % (s(S_T5), s(S_WV)))
    em.i("v_lshrrev_b32 %s, 3, %s" % (v(VT), v(VL)))
    em.i("v_mul_u32_u24 %s, 0xa00, %s" % (v(VT), v(VT)))
    em.i("v_lshrrev_b32 %s, 4, %s" % (v(VT + 1), v(VL)))
    em.i("v_xor_b32 %s, %s, %s" % (v(VT + 1), v(VT + 1), v(VL)))
    em.i("v_and_b32 %s, 7, %s" % (v(VT + 1), v(VT + 1)))
    em.i("v_lshl_add_u32 %s, %s, 4, %s" % (v(VT + 2), v(VT + 1), v(VT)))
    em.i("v_xor_b32 %s, 64, %s" % (v(VT + 3), v(VT + 2)))
    em.i("s_lshl_b32 %s, %s, 8" % (s(S_T0), s(S_B)))
    em.i("s_add_u32 %s, %s, %s" % (s(S_T0), s(S_T0), s(S_P)))
    em.i("s_lshl_b32 %s, %s, 6" % (s(S_T1), s(S_WV)))
    em.i("s_add_u32 %s, %s, %s" % (s(S_T1), s(S_T1), s(S_T0)))
    em.i("s_mul_i32 %s, %s, 0x500" % (s(S_T1), s(S_T1)))
    for n in range(4):
        em.i("s_add_u32 %s, %s, 0x%x" % (s(S_T3), s(S_T1), 20480 * n))
        em.i("v_add_u32 %s, %s, %s" % (v(VXD + n), s(S_T3), v(VT + 2 + (n & 1))))
    em.i("s_mul_i32 %s, %s, 384" % (s(S_T4), s(S_CG)))
    em.i("s_mul_i32 %s, %s, 0x%x" % (s(S_T3), s(S_WV), 16 * 3072))
    em.i("s_add_u32 %s, %s, %s" % (s(S_T4), s(S_T4), s(S_T3)))
    for n in range(6):
        d = VWD + n
        em.i("v_add_u32 %s, 0x%x, %s" % (v(VT), 64 * n, v(VL)))
        em.i("v_mul_u32_u24 %s, 0xaab, %s" % (v(VT + 1), v(VT)))
        em.i("v_lshrrev_b32 %s, 16, %s" % (v(VT + 1), v(VT + 1)))
        em.i("v_mul_u32_u24 %s, 24, %s" % (v(VT + 4), v(VT + 1)))
        em.i("v_sub_u32 %s, %s, %s" % (v(VT), v(VT), v(VT + 4)))
        em.i("v_and_b32 %s, 2, %s" % (v(VT + 4), v(VT + 1)))
        em.i("v_lshrrev_b32 %s, 1, %s" % (v(VT + 5), v(VT + 1)))
        em.i("v_and_or_b32 %s, %s, 4, %s" % (v(VT + 4), v(VT + 5), v(VT + 4)))
        em.i("v_xor_b32 %s, %s, %s" % (v(VT), v(VT), v(VT + 4)))
        em.i("v_mul_u32_u24 %s, 0xc00, %s" % (v(VT + 1), v(VT + 1)))
        em.i("v_lshl_add_u32 %s, %s, 4, %s" % (v(VT), v(VT), v(VT + 1)))
        em.i("v_add_u32 %s, %s, %s" % (v(d), s(S_T4), v(VT)))
    em.i("v_and_b32 %s, 15, %s" % (v(VT), v(VL)))
    em.i("v_lshrrev_b32 %s, 4, %s" % (v(VT + 1), v(VL)))
    em.i("v_lshlrev_b32 %s, 4, %s" % (v(VT + 2), v(VT)))
    em.i("s_lshl_b32 %s, %s, 5" % (s(S_T1), s(S_CG)))
    em.i("s_lshl_b32 %s, %s, 3" % (s(S_T2), s(S_WV)))
    em.i("s_add_u32 %s, %s, %s" % (s(S_T1), s(S_T1), s(S_T2)))
    em.i("s_add_u32 %s, %s, %s" % (s(S_T1), s(S_T1), s(S_T0)))
    em.i("s_mul_i32 %s, %s, 0x500" % (s(S_T1), s(S_T1)))
    em.i("v_mul_u32_u24 %s, 0xa00, %s" % (v(VT + 3), v(VT + 1)))
    em.i("v_add3_u32 %s, %s, %s, %s" % (v(VT + 3), v(VT + 3), v(VT + 2), s(S_T1)))
    em.i("s_lshl_b32 %s, %s, 3" % (s(S_UNIT), s(S_P)))
    em.i("s_add_u32 %s, %s, %s" % (s(S_UNIT), s(S_UNIT), s(S_B)))
    em.i("s_lshl_b32 %s, %s, 3" % (s(S_UNIT), s(S_UNIT)))
    em.i("s_add_u32 %s, %s, %s" % (s(S_UNIT), s(S_UNIT), s(S_CG)))
    em.i("s_lshl_b32 %s, %s, 2" % (s(S_UNIT), s(S_UNIT)))
    em.i("s_add_u32 %s, %s, %s" % (s(S_UNIT), s(S_UNIT), s(S_WV)))
    em.i("s_waitcnt lgkmcnt(0)")
    srd(em, SRD_X, 4, X_BYTES)
    srd(em, SRD_W, 12, W1_BYTES)
    srd(em, SRD_WS, 20, WS_SIZE)
    srd(em, SRD_T, 18, 1280)
    srd(em, SRD_T2, 14, 3072)
    for n in range(5):
        em.i("buffer_load_dwordx4 %s, %s, %s, 0 offen offset:%d" % (v(GX + 4 * n, 4), v(VT + 3), s(SRD_X, 4), 256 * n))
        em.i("buffer_load_dwordx4 %s, %s, %s, 0 offen offset:%d" % (v(GX + 20 + 4 * n, 4), v(VT + 2), s(SRD_T, 4), 256 * n))
    em.i("s_and_b32 %s, %s, 1" % (s(S_T2), s(S_WV)))
    em.i("s_mul_i32 %s, %s, 192" % (s(S_T3), s(S_T2)))
    em.i("s_mul_i32 %s, %s, 384" % (s(S_T4), s(S_CG)))
    em.i("s_add_u32 %s, %s, %s" % (s(S_T3), s(S_T3), s(S_T4)))
    em.i("v_lshlrev_b32 %s, 3, %s" % (v(VT + 4), v(VT + 1)))
    for u in range(6):
        em.i("buffer_load_dwordx2 %s, %s, %s, %s offen offset:%d" % (v(BIAS + 2 * u, 2), v(VT + 4), s(SRD_T2, 4), s(S_T3), 32 * u))
    em.i("v_mov_b32 %s, 0x%x" % (v(VRS), BIGOFF))
    em.i("s_cmp_ge_u32 %s, 340" % s(S_UNIT))
    em.i("s_cbranch_scc1 L_h_norl1")
    em.i("s_mul_i32 %s, %s, 0xcccd" % (s(S_T0), s(S_UNIT)))
    em.i("s_lshr_b32 %s, %s, 18" % (s(S_T0), s(S_T0)))
    em.i("s_mul_i32 %s, %s, 5" % (s(S_T1), s(S_T0)))
    em.i("s_sub_u32 %s, %s, %s" % (s(S_T1), s(S_UNIT), s(S_T1)))
    em.i("s_lshl_b32 %s, %s, 5" % (s(S_T2), s(S_T0)))
    em.i("s_sub_u32 %s, %s, 640" % (s(S_T2), s(S_T2)))
    em.i("s_mov_b32 %s, 16" % s(S_T3))
    em.i("s_mov_b32 %s, 4" % s(S_T4))
    em.i("s_mul_i32 %s, %s, 160" % (s(S_C0), s(S_T0)))
    em.i("s_sub_u32 %s, %s, %d" % (s(S_C0), s(S_C0), 2560 - 16))
    em.i("s_cmp_lt_u32 %s, 20" % s(S_T0))
    em.i("s_cselect_b32 %s, %s, %s" % (s(S_T2), s(S_C0), s(S_T2)))
    em.i("s_cselect_b32 %s, 80, %s" % (s(S_T3), s(S_T3)))
    em.i("s_cselect_b32 %s, 20, %s" % (s(S_T4), s(S_T4)))
    em.i("s_cselect_b32 %s, %s, %s" % (s(SRD_T), s(8), s(16)))
    em.i("s_cselect_b32 %s, %s, %s" % (s(SRD_T + 1), s(9), s(17)))
    em.i("s_mov_b32 %s, 0x%x" % (s(SRD_T + 2), W2_BYTES))
    em.i("s_cselect_b32 %s, 0x%x, %s" % (s(SRD_T + 2), WO_BYTES, s(SRD_T + 2)))
    em.i("s_mul_i32 %s, %s, 40" % (s(S_C0), s(S_T0)))
    em.i("s_cmp_lt_u32 %s, 16" % s(S_T0))
    em.i("s_cselect_b32 %s, %s, %s" % (s(S_T2), s(S_C0), s(S_T2)))
    em.i("s_cselect_b32 %s, 20, %s" % (s(S_T3), s(S_T3)))
    em.i("s_cselect_b32 %s, 4, %s" % (s(S_T4), s(S_T4)))
    em.i("s_mul_i32 %s, %s, 0x500" % (s(S_T4), s(S_T4)))
    em.i("v_mad_u32_u24 %s, %s, %s, %s" % (v(VT + 5), v(VT + 1), s(S_T4), v(VT + 2)))
    em.i("s_mul_i32 %s, %s, 0x500" % (s(S_T2), s(S_T2)))
    em.i("s_lshl_b32 %s, %s, 8" % (s(S_C0), s(S_T1)))
    em.i("s_add_u32 %s, %s, %s" % (s(S_T2), s(S_T2), s(S_C0)))
    em.i("s_mul_i32 %s, %s, 0x500" % (s(S_T3), s(S_T3)))
    em.i("s_add_u32 %s, %s, %s" % (s(S_T3), s(S_T3), s(S_T2)))
    for j in range(8):
        em.i("buffer_load_dwordx4 %s, %s, %s, %s offen offset:%d" % (
            v(RIN + 4 * j, 4), v(VT + 5), s(SRD_T, 4), s(S_T2 if j < 4 else S_T3), 1280 * (j & 3)))
    em.i("s_mul_i32 %s, %s, 40" % (s(S_T0), s(S_T0)))
    em.i("s_lshl_b32 %s, %s, 3" % (s(S_T1), s(S_T1)))
    em.i("s_add_u32 %s, %s, %s" % (s(S_T0), s(S_T0), s(S_T1)))
    em.i("s_lshl_b32 %s, %s, 10" % (s(S_T0), s(S_T0)))
    em.i("s_add_u32 %s, %s, 0x%x" % (s(S_T0), s(S_T0), WF_OFF))
    em.i("v_lshrrev_b32 %s, 1, %s" % (v(VT + 5), v(VT)))
    em.i("v_lshlrev_b32 %s, 10, %s" % (v(VT + 5), v(VT + 5)))
    em.i("v_and_b32 %s, 1, %s" % (v(VT + 6), v(VT)))
    em.i("v_lshl_add_u32 %s, %s, 7, %s" % (v(VT + 5), v(VT + 6), v(VT + 5)))
    em.i("v_lshl_add_u32 %s, %s, 8, %s" % (v(VT + 5), v(VT + 1), v(VT + 5)))
    em.i("v_add_u32 %s, %s, %s" % (v(VRS), s(S_T0), v(VT + 5)))
    em.label("L_h_norl1")

    dma = []
    for n in range(4):
        dma.append(("s_add_u32 m0, %s, 0x%x" % (s(S_C1), 1024 * n),
                    "buffer_load_dwordx4 %s, %s, %s offen lds" % (v(VXD + n), s(SRD_X, 4), s(S_XOFF))))
    for n in range(6):
        dma.append(("s_add_u32 m0, %s, 0x%x" % (s(S_C1 + 1), H_XSZ + 1024 * n),
                    "buffer_load_dwordx4 %s, %s, %s offen lds" % (v(VWD + n), s(SRD_W, 4), s(S_WOFF))))
    adv = advance_dma(H_SLOT, 64 * 3072) + [
        "s_add_u32 %s, %s, %s" % (s(S_C1), s(S_DM), s(S_WOFF2)),
        "s_add_u32 %s, %s, %s" % (s(S_C1 + 1), s(S_DM), s(S_EX))]
    em.i("s_lshl_b32 %s, %s, 12" % (s(S_WOFF2), s(S_WV)))
    em.i("s_mul_i32 %s, %s, 6144" % (s(S_EX), s(S_WV)))
    em.i("s_mov_b32 %s, %s" % (s(S_C1), s(S_WOFF2)))
    em.i("s_mov_b32 %s, %s" % (s(S_C1 + 1), s(S_EX)))
    em.i("s_mov_b32 %s, 0" % s(S_WOFF))
    em.i("s_mov_b32 %s, 0" % s(S_XOFF))
    em.i("s_mov_b32 %s, 0" % s(S_DM))
    em.i("s_mov_b32 %s, 0" % s(S_STG))
    em.i("s_mov_b32 %s, 0" % s(S_RD))
    for st in range(2):
        for m, l in dma:
            em.i(m)
            em.i(l)
        for x in adv:
            em.i(x)
    for m, l in dma[:5]:
        em.i(m)
        em.i(l)
    em.i("v_lshrrev_b32 %s, 1, %s" % (v(VT + 2), v(VT)))
    em.i("v_xor_b32 %s, %s, %s" % (v(VT + 2), v(VT + 2), v(VT + 1)))
    em.i("v_lshlrev_b32 %s, 4, %s" % (v(VT + 2), v(VT + 2)))
    em.i("v_lshl_add_u32 %s, %s, 7, %s" % (v(VT + 2), v(VT), v(VT + 2)))
    em.i("s_lshl_b32 %s, %s, 13" % (s(S_T0), s(S_T5)))
    em.i("v_add_u32 %s, %s, %s" % (v(VXA0), s(S_T0), v(VT + 2)))
    em.i("v_xor_b32 %s, 64, %s" % (v(VXA1), v(VXA0)))
    em.i("v_bfe_u32 %s, %s, 2, 2" % (v(VT + 2), v(VL)))
    em.i("v_lshl_add_u32 %s, %s, 3, %s" % (v(VT + 3), v(VT + 1), v(VT + 2)))
    em.i("v_mul_u32_u24 %s, 0x180, %s" % (v(VT + 3), v(VT + 3)))
    em.i("v_and_b32 %s, 3, %s" % (v(VT + 4), v(VL)))
    em.i("v_lshl_add_u32 %s, %s, 3, %s" % (v(VT + 3), v(VT + 4), v(VT + 3)))
    em.i("v_lshrrev_b32 %s, 1, %s" % (v(VT + 2), v(VT + 2)))
    em.i("v_and_b32 %s, 1, %s" % (v(VT + 4), v(VT + 1)))
    em.i("v_lshl_or_b32 %s, %s, 1, %s" % (v(VT + 2), v(VT + 4), v(VT + 2)))
    em.i("s_and_b32 %s, %s, 1" % (s(S_T2), s(S_WV)))
    em.i("s_mul_i32 %s, %s, 6" % (s(S_T2), s(S_T2)))
    for u in range(4):
        em.i("s_add_u32 %s, %s, %d" % (s(S_T3), s(S_T2), u))
        em.i("v_xor_b32 %s, %s, %s" % (v(VT + 4), s(S_T3), v(VT + 2)))
        em.i("v_lshl_add_u32 %s, %s, 5, %s" % (v(VWA + u), v(VT + 4), v(VT + 3)))
    em.i("s_waitcnt vmcnt(25)")
    em.i("v_mov_b32 %s, 0" % v(VG))
    for n in range(20):
        em.i("v_dot2_f32_bf16 %s, %s, %s, %s" % (v(VG), v(GX + n), v(GX + 20 + n), v(VG)))
    for rot in (8, 4, 2, 1):
        em.i("v_add_f32_dpp %s, %s, %s row_ror:%d row_mask:0xf bank_mask:0xf" % (v(VT + 2), v(VG), v(VG), rot))
        em.i("v_mov_b32 %s, %s" % (v(VG), v(VT + 2)))
    em.i("v_cvt_pk_bf16_f32 %s, %s, %s" % (v(VG), v(VG), v(VG)))
    em.i("v_lshlrev_b32 %s, 16, %s" % (v(VG), v(VG)))
    em.i("v_mul_f32 %s, 0x%x, %s" % (v(VG), f2u(-math.log2(math.e)), v(VG)))
    em.i("v_exp_f32 %s, %s" % (v(VG), v(VG)))
    em.i("v_add_f32 %s, 1.0, %s" % (v(VG), v(VG)))
    em.i("v_rcp_f32 %s, %s" % (v(VG), v(VG)))
    em.i("v_cvt_pk_bf16_f32 %s, %s, %s" % (v(VG), v(VG), v(VG)))
    em.i("v_lshlrev_b32 %s, 16, %s" % (v(VG), v(VG)))
    for t in range(4):
        for u in range(6):
            em.i("v_lshlrev_b32 %s, 16, %s" % (v(acc(t, u)), v(BIAS + 2 * u)))
            em.i("v_and_b32 %s, 0xffff0000, %s" % (v(acc(t, u) + 1), v(BIAS + 2 * u)))
            em.i("v_lshlrev_b32 %s, 16, %s" % (v(acc(t, u) + 2), v(BIAS + 2 * u + 1)))
            em.i("v_and_b32 %s, 0xffff0000, %s" % (v(acc(t, u) + 3), v(BIAS + 2 * u + 1)))
    em.i("s_mov_b32 %s, 0x05040100" % s(S_T0))
    em.i("s_mov_b32 %s, 0x07060302" % s(S_T1))
    for d in range(4):
        for e in range(2):
            for jj in range(4):
                em.i("v_perm_b32 %s, %s, %s, %s" % (
                    v(ROUT + (2 * d + e) * 4 + jj), v(RIN + (2 * jj + 1) * 4 + d), v(RIN + (2 * jj) * 4 + d), s(S_T0 + e)))

    def reads(st, ks):
        xa = VXA1 if ks else VXA0
        R = []
        for t in range(4):
            R.append("ds_read_b128 %s, %s offset:%d" % (a(FR(st, t), 4), v(xa), t * 2048))
        for u in range(6):
            for h in range(2):
                R.append("ds_read_b64_tr_b16 %s, %s offset:%d" % (
                    a(FR(st, 4 + u) + 2 * h, 2), v(VWA + (u & 3)), H_XSZ + (32 * ks + 4 * h) * 384 + 128 * (u >> 2)))
        return R

    def mfmas(st):
        L = []
        for t in range(4):
            for u in range(6):
                L.append(mfma(v(acc(t, u), 4), a(FR(st, 4 + u), 4), a(FR(st, t), 4)))
        return L

    em.i("s_waitcnt vmcnt(15)")
    em.i("s_barrier")
    for r in reads(0, 0):
        em.i(r)
    em.i("s_mov_b32 %s, 10" % s(S_CNT))
    em.label("L_h_loop")
    top = em.mark()
    em.i("s_waitcnt lgkmcnt(0)")
    ex = [(18 + k // 3, x) for k, x in enumerate(adv)]
    ex += [(16, x) for x in advance_rd(H_SLOT)]
    ex.append((17, "v_add_u32 %s, %s, %s" % (v(VXA0), s(S_DELTA), v(VXA0))))
    ex.append((17, "v_add_u32 %s, %s, %s" % (v(VXA1), s(S_DELTA), v(VXA1))))
    for u in range(4):
        ex.append((22 + u // 2, "v_add_u32 %s, %s, %s" % (v(VWA + u), s(S_DELTA), v(VWA + u))))
    phase(em, mfmas(0), reads(1, 1), dma[5:], extra=ex, dma_start=1, dma_step=4)
    em.i("s_waitcnt vmcnt(10) lgkmcnt(0)")
    em.i("s_barrier")
    phase(em, mfmas(1), reads(0, 0), dma[:5], extra=[(20, "s_sub_u32 %s, %s, 1" % (s(S_CNT), s(S_CNT))),
                                                    (21, "s_cmp_lg_u32 %s, 0" % s(S_CNT))], dma_start=1, dma_step=4)
    em.i("s_cbranch_scc1 L_h_loop")
    em.check_backedge(top)
    em.i("s_cmp_ge_u32 %s, 340" % s(S_UNIT))
    em.i("s_cbranch_scc1 L_h_norl2")
    for n in range(8):
        em.i("buffer_store_dwordx4 %s, %s, %s, 0 offen offset:%d" % (v(ROUT + 4 * n, 4), v(VRS), s(SRD_WS, 4), 16 * n))
    em.label("L_h_norl2")
    em.i("s_lshl_b32 %s, %s, 6" % (s(S_T0), s(S_P)))
    em.i("s_lshl_b32 %s, %s, 3" % (s(S_T1), s(S_B)))
    em.i("s_add_u32 %s, %s, %s" % (s(S_T0), s(S_T0), s(S_T1)))
    em.i("s_add_u32 %s, %s, %s" % (s(S_T1), s(S_T0), s(S_CG)))
    em.i("s_lshl_b32 %s, %s, 2" % (s(S_T1), s(S_T1)))
    em.i("s_add_u32 %s, %s, %s" % (s(S_T1), s(S_T1), s(S_WV)))
    em.i("s_lshl_b32 %s, %s, 4" % (s(S_T1), s(S_T1)))
    em.i("s_add_u32 %s, %s, 0x%x" % (s(S_T1), s(S_T1), G_OFF))
    em.i("v_lshrrev_b32 %s, 4, %s" % (v(VT), v(VL)))
    em.i("v_lshlrev_b32 %s, 2, %s" % (v(VT), v(VT)))
    em.i("buffer_store_dword %s, %s, %s, %s offen" % (v(VG), v(VT), s(SRD_WS, 4), s(S_T1)))
    em.i("s_lshl_b32 %s, %s, 2" % (s(S_T1), s(S_T5)))
    em.i("s_add_u32 %s, %s, %s" % (s(S_T0), s(S_T0), s(S_T1)))
    em.i("s_mul_i32 %s, %s, 68" % (s(S_T0), s(S_T0)))
    em.i("s_mul_i32 %s, %s, 6" % (s(S_T1), s(S_CG)))
    em.i("s_add_u32 %s, %s, %s" % (s(S_T0), s(S_T0), s(S_T1)))
    em.i("s_and_b32 %s, %s, 1" % (s(S_T1), s(S_WV)))
    em.i("s_mul_i32 %s, %s, 3" % (s(S_T1), s(S_T1)))
    em.i("s_add_u32 %s, %s, %s" % (s(S_T0), s(S_T0), s(S_T1)))
    em.i("s_add_u32 %s, %s, 20" % (s(S_T0), s(S_T0)))
    em.i("s_lshl_b32 %s, %s, 10" % (s(S_T0), s(S_T0)))
    em.i("v_lshlrev_b32 %s, 4, %s" % (v(VT), v(VL)))
    c0 = -2.0 * math.log2(math.e) * math.sqrt(2.0 / math.pi)
    c1 = c0 * 0.044715
    em.i("s_mov_b32 %s, 0x%x" % (s(S_C0), f2u(c0)))
    em.i("s_mov_b32 %s, 0x%x" % (s(S_C0 + 1), f2u(c0)))
    em.i("v_mov_b32 %s, 0x%x" % (v(VT + 1), f2u(c1)))
    em.i("v_mov_b32 %s, 0x%x" % (v(VT + 2), f2u(c1)))
    C1 = VT + 1
    assert C1 % 2 == 0

    def gelu_pair(x, tmp, dst):
        X = v(x, 2)
        T = v(tmp, 2)
        return [
            "v_pk_mul_f32 %s, %s, %s" % (T, X, X),
            "v_pk_fma_f32 %s, %s, %s, %s" % (T, T, v(C1, 2), s(S_C0, 2)),
            "v_pk_mul_f32 %s, %s, %s" % (T, T, X),
            "v_exp_f32 %s, %s" % (v(tmp), v(tmp)),
            "v_exp_f32 %s, %s" % (v(tmp + 1), v(tmp + 1)),
            "v_pk_add_f32 %s, %s, 1.0 op_sel_hi:[1,0]" % (T, T),
            "v_rcp_f32 %s, %s" % (v(tmp), v(tmp)),
            "v_rcp_f32 %s, %s" % (v(tmp + 1), v(tmp + 1)),
            "v_pk_mul_f32 %s, %s, %s" % (T, T, X),
            "v_cvt_pk_bf16_f32 %s, %s, %s" % (v(dst), v(tmp), v(tmp + 1)),
        ]

    grp = 0
    for t in range(4):
        for uu in range(3):
            base = acc(t, 2 * uu)
            outr = TMP + 8 + 4 * (grp % 4)
            ls = [gelu_pair(base + 2 * k, TMP + 2 * k + 24 * (grp & 1), outr + k) for k in range(4)]
            for x in interleave(ls):
                em.i(x)
            em.i("s_add_u32 %s, %s, 0x%x" % (s(S_T1 + (grp & 1)), s(S_T0), t * TILE_B + 1024 * uu))
            em.i("buffer_store_dwordx4 %s, %s, %s, %s offen" % (v(outr, 4), v(VT), s(SRD_WS, 4), s(S_T1 + (grp & 1))))
            grp += 1
    em.i("s_endpgm")


def gen_k1(em):
    em.raw(".globl k1_kernel")
    em.raw(".p2align 8")
    em.raw(".type k1_kernel,@function")
    em.label("k1_kernel")
    em.fence()
    em.i("s_cmp_ge_u32 s2, 256")
    em.i("s_cbranch_scc1 L_k1_end")
    em.i("s_load_dwordx4 s[4:7], s[0:1], 0")
    em.i("s_load_dwordx2 s[8:9], s[0:1], 16")
    em.i("s_load_dwordx4 s[12:15], s[0:1], 32")
    em.i("s_load_dwordx2 s[16:17], s[0:1], 48")
    em.i("s_load_dwordx2 s[18:19], s[0:1], 64")
    em.i("s_load_dwordx2 s[20:21], s[0:1], 88")
    em.i("v_lshrrev_b32 v1, 6, v0")
    em.i("v_and_b32 v0, 63, v0")
    em.i("v_readfirstlane_b32 %s, v1" % s(S_WV))
    em.i("s_and_b32 %s, s2, 1" % s(S_P))
    em.i("s_lshr_b32 %s, s2, 5" % s(S_B))
    em.i("s_bfe_u32 %s, s2, 0x20001" % s(S_CG))
    em.i("s_lshl_b32 %s, %s, 1" % (s(S_CG), s(S_CG)))
    em.i("s_bfe_u32 %s, s2, 0x10003" % s(S_T0))
    em.i("s_add_u32 %s, %s, %s" % (s(S_CG), s(S_CG), s(S_T0)))
    em.i("s_bitcmp1_b32 s2, 4")
    em.i("s_cbranch_scc1 L_h")
    em.i("s_cmp_eq_u32 %s, 1" % s(S_WV))
    em.i("s_cbranch_scc1 L_q1")
    em.i("s_cmp_eq_u32 %s, 2" % s(S_WV))
    em.i("s_cbranch_scc1 L_q2")
    em.i("s_cmp_eq_u32 %s, 3" % s(S_WV))
    em.i("s_cbranch_scc1 L_q3")
    gen_q(em, 0, 0)
    gen_q(em, 0, 1)
    gen_q(em, 1, 0)
    gen_q(em, 1, 1)
    gen_h(em)
    em.label("L_k1_end")
    em.i("s_endpgm")


K2_LDS = 4 * 3 * 5 * 1024


def gen_k2(em, depth=5):
    NB = depth + 1
    SW, SO, SB2 = 8, 12, 16
    S_W_, S_RB, S_C = 20, 21, 22
    S_AO, S_AH, S_WO, S_WH = 24, 25, 26, 27
    S_A, S_Wf = 28, 30
    T0, T1, T2 = 32, 33, 34
    VL, VT = 0, 1
    VA = 8
    VW, VW4 = 12, 13
    VG = 14
    GP = 16
    OP = 24
    B2 = 32
    accA = lambda t, j: 44 + (t * 5 + j) * 4
    accB = lambda t, j: 124 + (t * 5 + j) * 4
    RED = 204
    FR = lambda b, k: b * 36 + k * 4
    em.raw(".globl k2_kernel")
    em.raw(".p2align 8")
    em.raw(".type k2_kernel,@function")
    em.label("k2_kernel")
    em.fence()
    em.i("s_cmp_ge_u32 s2, 256")
    em.i("s_cbranch_scc1 L_k2_end")
    em.i("s_load_dwordx2 s[4:5], s[0:1], 88")
    em.i("s_load_dwordx2 s[6:7], s[0:1], 72")
    em.i("s_load_dwordx2 s[36:37], s[0:1], 56")
    em.i("v_lshrrev_b32 v1, 6, v0")
    em.i("v_and_b32 v0, 63, v0")
    em.i("v_readfirstlane_b32 %s, v1" % s(S_W_))
    em.i("s_bfe_u32 %s, s2, 0x20001" % s(S_RB))
    em.i("s_lshl_b32 %s, %s, 3" % (s(S_RB), s(S_RB)))
    em.i("s_lshr_b32 %s, s2, 5" % s(T0))
    em.i("s_add_u32 %s, %s, %s" % (s(S_RB), s(S_RB), s(T0)))
    em.i("s_and_b32 %s, s2, 1" % s(S_C))
    em.i("s_lshl_b32 %s, %s, 2" % (s(S_C), s(S_C)))
    em.i("s_bfe_u32 %s, s2, 0x20003" % s(T0))
    em.i("s_add_u32 %s, %s, %s" % (s(S_C), s(S_C), s(T0)))
    em.i("v_lshlrev_b32 %s, 4, %s" % (v(VT), v(VL)))
    em.i("s_mul_i32 %s, %s, 0x%x" % (s(T0), s(S_RB), 4 * TILE_B))
    for t in range(4):
        em.i("s_add_u32 %s, %s, 0x%x" % (s(T1), s(T0), t * TILE_B))
        em.i("v_add_u32 %s, %s, %s" % (v(VA + t), s(T1), v(VT)))
    em.i("s_mul_i32 %s, %s, 5120" % (s(T0), s(S_C)))
    em.i("s_add_u32 %s, %s, 0x%x" % (s(T0), s(T0), WF_OFF))
    em.i("v_add_u32 %s, %s, %s" % (v(VW), s(T0), v(VT)))
    em.i("v_add_u32 %s, 0x1000, %s" % (v(VW4), v(VW)))
    em.i("s_mul_i32 %s, %s, 5120" % (s(S_AO), s(S_W_)))
    em.i("s_mul_i32 %s, %s, 12288" % (s(S_AH), s(S_W_)))
    em.i("s_add_u32 %s, %s, 20480" % (s(S_AH), s(S_AH)))
    em.i("s_mul_i32 %s, %s, 40" % (s(S_WO), s(S_AO)))
    em.i("s_mul_i32 %s, %s, 40" % (s(S_WH), s(S_AH)))
    em.i("v_and_b32 %s, 15, %s" % (v(VT + 1), v(VL)))
    em.i("v_lshlrev_b32 %s, 2, %s" % (v(VT + 2), v(VT + 1)))
    em.i("s_lshl_b32 %s, %s, 8" % (s(T2), s(S_RB)))
    em.i("s_add_u32 %s, %s, 0x%x" % (s(T2), s(T2), G_OFF))
    em.i("v_lshrrev_b32 %s, 4, %s" % (v(VT + 3), v(VL)))
    em.i("v_lshlrev_b32 %s, 3, %s" % (v(VT + 4), v(VT + 3)))
    em.i("s_mul_i32 %s, %s, 160" % (s(T1), s(S_C)))
    em.i("s_waitcnt lgkmcnt(0)")
    srd(em, SW, 4, WS_SIZE)
    srd(em, SO, 6, X_BYTES)
    srd(em, SB2, 36, 1280)

    def loads(ks):
        b = ks % NB
        L = []
        if ks < 5:
            L.append("s_add_u32 %s, %s, 0x%x" % (s(S_A + (ks & 1)), s(S_AO), 1024 * ks))
            L.append("s_add_u32 %s, %s, 0x%x" % (s(S_Wf + (ks & 1)), s(S_WO), 40960 * ks))
        else:
            L.append("s_add_u32 %s, %s, 0x%x" % (s(S_A + (ks & 1)), s(S_AH), 1024 * (ks - 5)))
            L.append("s_add_u32 %s, %s, 0x%x" % (s(S_Wf + (ks & 1)), s(S_WH), 40960 * (ks - 5)))
        order = [("a", 0), ("w", 0), ("a", 1), ("a", 2), ("a", 3), ("w", 1), ("w", 2), ("w", 3), ("w", 4)]
        for kd, n in order:
            if kd == "a":
                L.append("buffer_load_dwordx4 %s, %s, %s, %s offen" % (a(FR(b, n), 4), v(VA + n), s(SW, 4), s(S_A + (ks & 1))))
            elif n < 4:
                L.append("buffer_load_dwordx4 %s, %s, %s, %s offen offset:%d" % (a(FR(b, 4 + n), 4), v(VW), s(SW, 4), s(S_Wf + (ks & 1)), 1024 * n))
            else:
                L.append("buffer_load_dwordx4 %s, %s, %s, %s offen" % (a(FR(b, 8), 4), v(VW4), s(SW, 4), s(S_Wf + (ks & 1))))
        return L

    for x in loads(0):
        em.i(x)
    for t in range(4):
        em.i("buffer_load_dword %s, %s, %s, %s offen offset:%d" % (v(GP + 2 * t), v(VT + 2), s(SW, 4), s(T2), 64 * t))
    for j in range(5):
        em.i("buffer_load_dwordx2 %s, %s, %s, %s offen offset:%d" % (v(B2 + 2 * j, 2), v(VT + 4), s(SB2, 4), s(T1), 32 * j))
    for ks in range(1, depth):
        for x in loads(ks):
            em.i(x)
    NK = 17
    for ks in range(NK):
        b = ks % NB
        accf = accA if ks < 5 else accB
        first = ks in (0, 5)
        mf = []
        for j in range(5):
            for t in range(4):
                mf.append(mfma(v(accf(t, j), 4), a(FR(b, 4 + j), 4), a(FR(b, t), 4), "0" if first else None))
        nxt = loads(ks + depth) if ks + depth < NK else []
        young = 9 * (min(ks + depth - 1, NK - 1) - ks) + (9 if ks == 0 else 0)
        em.i("s_waitcnt vmcnt(%d)" % min(63, young))
        k = 0
        for m in mf:
            em.i(m)
            if k < len(nxt):
                em.i(nxt[k])
                k += 1
        while k < len(nxt):
            em.i(nxt[k])
            k += 1
    for t in range(4):
        em.i("v_sub_f32 %s, 1.0, %s" % (v(OP + 2 * t), v(GP + 2 * t)))
        em.i("v_cvt_pk_bf16_f32 %s, %s, %s" % (v(OP + 2 * t), v(OP + 2 * t), v(OP + 2 * t)))
        em.i("v_lshlrev_b32 %s, 16, %s" % (v(OP + 2 * t), v(OP + 2 * t)))
    for t in range(4):
        for j in range(5):
            for h in range(2):
                A_ = v(accA(t, j) + 2 * h, 2)
                B_ = v(accB(t, j) + 2 * h, 2)
                em.i("v_pk_mul_f32 %s, %s, %s op_sel_hi:[1,0]" % (A_, A_, v(GP + 2 * t, 2)))
                em.i("v_pk_fma_f32 %s, %s, %s, %s op_sel_hi:[1,0,1]" % (A_, B_, v(OP + 2 * t, 2), A_))
    for w in range(4):
        if w < 3:
            em.i("s_cmp_lg_u32 %s, %d" % (s(S_W_), w))
            em.i("s_cbranch_scc1 L_k2_w%d" % (w + 1))
        for t in range(4):
            if t == w:
                continue
            sl = (w - t - 1) % 4
            for j in range(5):
                em.i("ds_write_b128 %s, %s offset:%d" % (v(VT), v(accA(t, j), 4), ((t * 3 + sl) * 5 + j) * 1024))
        em.i("s_waitcnt lgkmcnt(0)")
        em.i("s_barrier")
        for sl in range(3):
            for j in range(5):
                em.i("ds_read_b128 %s, %s offset:%d" % (v(accB(sl, j), 4), v(VT), ((w * 3 + sl) * 5 + j) * 1024))
        for j in range(5):
            em.i("v_lshlrev_b32 %s, 16, %s" % (v(RED), v(B2 + 2 * j)))
            em.i("v_and_b32 %s, 0xffff0000, %s" % (v(RED + 1), v(B2 + 2 * j)))
            em.i("v_lshlrev_b32 %s, 16, %s" % (v(RED + 2), v(B2 + 2 * j + 1)))
            em.i("v_and_b32 %s, 0xffff0000, %s" % (v(RED + 3), v(B2 + 2 * j + 1)))
            for h in range(2):
                A_ = v(accA(w, j) + 2 * h, 2)
                em.i("v_pk_fma_f32 %s, %s, %s, %s op_sel_hi:[1,0,1]" % (A_, v(RED + 2 * h, 2), v(OP + 2 * w, 2), A_))
        em.i("s_lshl_b32 %s, %s, 2" % (s(T0), s(S_RB)))
        em.i("s_add_u32 %s, %s, %d" % (s(T0), s(T0), w))
        em.i("s_lshr_b32 %s, %s, 6" % (s(T2), s(T0)))
        em.i("s_and_b32 %s, %s, 63" % (s(T0), s(T0)))
        em.i("s_lshl_b32 %s, %s, 5" % (s(T0), s(T0)))
        em.i("s_add_u32 %s, %s, %s" % (s(T0), s(T0), s(T2)))
        em.i("s_mul_i32 %s, %s, 0x500" % (s(T0), s(T0)))
        em.i("s_add_u32 %s, %s, %s" % (s(T0), s(T0), s(T1)))
        em.i("v_mul_u32_u24 %s, 0xa00, %s" % (v(VT + 5), v(VT + 1)))
        em.i("v_add_u32 %s, %s, %s" % (v(VT + 5), v(VT + 5), v(VT + 4)))
        for sl in range(3):
            em.i("s_waitcnt lgkmcnt(%d)" % (5 * (2 - sl)))
            for j in range(5):
                for h in range(2):
                    A_ = v(accA(w, j) + 2 * h, 2)
                    em.i("v_pk_add_f32 %s, %s, %s" % (A_, A_, v(accB(sl, j) + 2 * h, 2)))
        for j in range(5):
            r = accA(w, j)
            em.i("v_cvt_pk_bf16_f32 %s, %s, %s" % (v(r), v(r), v(r + 1)))
            em.i("v_cvt_pk_bf16_f32 %s, %s, %s" % (v(r + 1), v(r + 2), v(r + 3)))
            em.i("buffer_store_dwordx2 %s, %s, %s, %s offen offset:%d" % (v(r, 2), v(VT + 5), s(SO, 4), s(T0), 32 * j))
        em.i("s_endpgm")
        if w < 3:
            em.label("L_k2_w%d" % (w + 1))
            em.i("s_nop 1")
    em.label("L_k2_end")
    em.i("s_endpgm")
    return NB * 36


def desc(name, nfv, acc_off):
    return """.amdhsa_kernel %s
  .amdhsa_next_free_vgpr %d
  .amdhsa_next_free_sgpr 96
  .amdhsa_accum_offset %d
  .amdhsa_group_segment_fixed_size 0
  .amdhsa_kernarg_size 96
  .amdhsa_user_sgpr_count 2
  .amdhsa_user_sgpr_kernarg_segment_ptr 1
  .amdhsa_system_sgpr_workgroup_id_x 1
.end_amdhsa_kernel
""" % (name, nfv, acc_off)


def main(out, which="12"):
    em = Em()
    if "1" in which:
        em.raw("; @launch kernel=k1_kernel grid=(256,1,1) block=(256,1,1) lds=%d" % K1_LDS)
    if "2" in which:
        em.raw("; @launch kernel=k2_kernel grid=(256,1,1) block=(256,1,1) lds=%d" % K2_LDS)
    em.raw('.amdgcn_target "amdgcn-amd-amdhsa--gfx950"')
    em.raw(".text")
    if "1" in which:
        gen_k1(em)
    if "2" in which:
        na = gen_k2(em)
    em.raw('.section .rodata,"a"')
    if "1" in which:
        em.raw(".p2align 6")
        em.raw(desc("k1_kernel", 256 + 104, 256))
    if "2" in which:
        em.raw(".p2align 6")
        em.raw(desc("k2_kernel", 208 + na, 208))
    open(out, "w").write(em.text())
    print("wrote", out, "lines", len(em.lines), "nop states", em.nops)


if __name__ == "__main__":
    main(sys.argv[1], sys.argv[2] if len(sys.argv) > 2 else "12")
```

```python
import math
import struct
import sys

from em import Em, interleave


def f2u(x):
    return struct.unpack("<I", struct.pack("<f", x))[0]


import os
PROF = int(os.environ.get("PROF", "0"))
K2DEPTH = int(os.environ.get("K2DEPTH", "3"))
ROT = int(os.environ.get("ROT", "1"))
WT = os.environ.get("WT", "")
WT2 = os.environ.get("WT2", "")
EARLY = int(os.environ.get("EARLY", "1"))
NKS = 68
ACT_OFF = 0
WF_OFF = 0x900000
G_OFF = 0xC00000
WS_SIZE = 0xE00000 if PROF else 0xC02000
PROF_OFF = 0xD00000
S_TM = 72
S_TI = 80
TILE_B = NKS * 1024

X_BYTES = 2048 * 640 * 2
WQKV_BYTES = 640 * 1920 * 2
W1_BYTES = 640 * 1536 * 2
WO_BYTES = 640 * 640 * 2
W2_BYTES = 1536 * 640 * 2

Q_SLOT = 49152
Q_XSZ = 18432
H_SLOT = 40960
H_XSZ = 16384
K1_LDS = 3 * Q_SLOT


def v(n, cnt=1):
    return "v%d" % n if cnt == 1 else "v[%d:%d]" % (n, n + cnt - 1)


def a(n, cnt=1):
    return "a%d" % n if cnt == 1 else "a[%d:%d]" % (n, n + cnt - 1)


def s(n, cnt=1):
    return "s%d" % n if cnt == 1 else "s[%d:%d]" % (n, n + cnt - 1)


def mfma(d, A, B, C=None):
    return "v_mfma_f32_16x16x32_bf16 %s, %s, %s, %s" % (d, A, B, d if C is None else C)


def stamp_get(em, r=0, real=False):
    if PROF:
        em.i("%s s[%d:%d]" % ("s_memrealtime" if real else "s_memtime", S_TM + 2 * r, S_TM + 2 * r + 1))


def stamp_put(em, vs, r=0, wait=False):
    if not PROF:
        return
    if wait:
        em.i("s_waitcnt lgkmcnt(0)")
    em.i("v_cmp_eq_u32 vcc, %s, v0" % s(S_TI))
    em.i("v_mov_b32 %s, %s" % (v(vs + 1), s(S_TM + 2 * r)))
    em.i("v_cndmask_b32 %s, %s, %s, vcc" % (v(vs), v(vs), v(vs + 1)))
    em.i("s_add_u32 %s, %s, 1" % (s(S_TI), s(S_TI)))


def stamp(em, vs, real=False):
    stamp_get(em, 0, real)
    stamp_put(em, vs, 0, True)


def stamp_end(em, vs, srdws, swave, koff):
    if not PROF:
        return
    stamp(em, vs)
    em.i("s_waitcnt vmcnt(0)")
    stamp(em, vs)
    stamp(em, vs, True)
    em.i("s_lshl_b32 %s, s2, 2" % s(S_TI))
    em.i("s_add_u32 %s, %s, %s" % (s(S_TI), s(S_TI), s(swave)))
    em.i("s_lshl_b32 %s, %s, 8" % (s(S_TI), s(S_TI)))
    em.i("s_add_u32 %s, %s, 0x%x" % (s(S_TI), s(S_TI), PROF_OFF + koff))
    em.i("v_lshlrev_b32 %s, 2, v0" % v(vs + 1))
    em.i("buffer_store_dword %s, %s, %s, %s offen" % (v(vs), v(vs + 1), s(srdws, 4), s(S_TI)))


def phase(em, mf, reads, dmas, extra=(), dma_start=1, dma_step=None):
    n = len(mf)
    if dmas:
        if dma_step is None:
            dma_step = max(1, (n - dma_start - 1) // len(dmas))
    dpos = {dma_start + k * dma_step: d for k, d in enumerate(dmas)} if dmas else {}
    assert all(p < n for p in dpos), (dpos.keys(), n)
    ri = 0
    ex = {}
    for p, ins in extra:
        ex.setdefault(p, []).append(ins)
    for k, m in enumerate(mf):
        if k in dpos:
            em.i(dpos[k][0])
        em.i(m)
        if k in dpos:
            em.i(dpos[k][1])
        if ri < len(reads):
            em.i(reads[ri])
            ri += 1
        for ins in ex.get(k, []):
            em.i(ins)
    while ri < len(reads):
        em.i(reads[ri])
        ri += 1


SRD_X, SRD_W, SRD_WS, SRD_T, SRD_T2 = 24, 28, 32, 36, 40
S_P, S_B, S_CG, S_WV = 44, 45, 46, 47
S_WOFF, S_WOFF2, S_XOFF, S_DM, S_RD, S_DELTA, S_CNT, S_STG = 48, 49, 50, 51, 52, 53, 54, 55
S_T0, S_T1, S_T2, S_T3, S_T4, S_T5 = 56, 57, 58, 59, 60, 61
S_C0 = 62
S_C1 = 64
S_UNIT = 66
S_EX = 68
S_RT = 70
BIGOFF = 0x7F000000


def srd(em, dst, base, nbytes, add=0):
    if add:
        em.i("s_add_u32 %s, %s, 0x%x" % (s(dst), s(base), add))
        em.i("s_addc_u32 %s, %s, 0" % (s(dst + 1), s(base + 1)))
    else:
        em.i("s_mov_b32 %s, %s" % (s(dst), s(base)))
        em.i("s_mov_b32 %s, %s" % (s(dst + 1), s(base + 1)))
    em.i("s_mov_b32 %s, 0x%x" % (s(dst + 2), nbytes))
    em.i("s_mov_b32 %s, 0x20000" % s(dst + 3))


def advance_dma(slot, wstep):
    L = []
    L.append("s_add_u32 %s, %s, 0x%x" % (s(S_WOFF), s(S_WOFF), wstep))
    L.append("s_add_u32 %s, %s, 1" % (s(S_STG), s(S_STG)))
    L.append("s_add_u32 %s, %s, 0x80" % (s(S_XOFF), s(S_XOFF)))
    if ROT:
        L.append("s_cmp_eq_u32 %s, 0x500" % s(S_XOFF))
        L.append("s_cselect_b32 %s, 0, %s" % (s(S_XOFF), s(S_XOFF)))
        L.append("s_cselect_b32 %s, 0, %s" % (s(S_WOFF), s(S_WOFF)))
    L.append("s_cmp_ge_u32 %s, 10" % s(S_STG))
    L.append("s_cselect_b32 %s, 0x%x, %s" % (s(S_XOFF), BIGOFF, s(S_XOFF)))
    if ROT:
        L.append("s_cselect_b32 %s, 0x%x, %s" % (s(S_WOFF), BIGOFF, s(S_WOFF)))
    L.append("s_add_u32 %s, %s, 0x%x" % (s(S_DM), s(S_DM), slot))
    L.append("s_cmp_eq_u32 %s, 0x%x" % (s(S_DM), 3 * slot))
    L.append("s_cselect_b32 %s, 0, %s" % (s(S_DM), s(S_DM)))
    return L


def rot_init(em, typ, wstep):
    if not ROT:
        em.i("s_mov_b32 %s, 0" % s(S_WOFF))
        em.i("s_mov_b32 %s, 0" % s(S_XOFF))
        return
    em.i("s_and_b32 %s, %s, 1" % (s(S_XOFF), s(S_CG)))
    em.i("s_mul_i32 %s, %s, 5" % (s(S_XOFF), s(S_XOFF)))
    em.i("s_add_u32 %s, %s, %s" % (s(S_XOFF), s(S_XOFF), s(S_B)))
    if typ:
        em.i("s_add_u32 %s, %s, 2" % (s(S_XOFF), s(S_XOFF)))
    em.i("s_sub_u32 %s, %s, 10" % (s(S_WOFF), s(S_XOFF)))
    em.i("s_cmp_ge_u32 %s, 10" % s(S_XOFF))
    em.i("s_cselect_b32 %s, %s, %s" % (s(S_XOFF), s(S_WOFF), s(S_XOFF)))
    em.i("s_mul_i32 %s, %s, 0x%x" % (s(S_WOFF), s(S_XOFF), wstep))
    em.i("s_lshl_b32 %s, %s, 7" % (s(S_XOFF), s(S_XOFF)))


def advance_rd(slot):
    L = []
    L.append("s_add_u32 %s, %s, 0x%x" % (s(S_RT), s(S_RD), slot))
    L.append("s_cmp_eq_u32 %s, 0x%x" % (s(S_RT), 3 * slot))
    L.append("s_cselect_b32 %s, 0, %s" % (s(S_RT), s(S_RT)))
    L.append("s_sub_u32 %s, %s, %s" % (s(S_DELTA), s(S_RT), s(S_RD)))
    L.append("s_mov_b32 %s, %s" % (s(S_RD), s(S_RT)))
    return L


def gen_q(em, rh, hp):
    w = 2 * rh + hp
    tag = "q%d" % w
    ha, hb = 2 * hp, 2 * hp + 1
    VL = 0
    VT = 1
    VWD = 8
    VXD = 12
    VXA0, VXA1, VWM, VWR = 18, 19, 20, 21
    ACC = 24
    accM = lambda t, c: ACC + (t * 6 + c) * 4
    accR = lambda n: ACC + 96 + n * 4
    accH = lambda n: ACC + 120 + n * 4
    NACC = 132
    EPI = 156
    FR = lambda st, k: st * 52 + k * 4
    wp = [range(0, 4), range(4, 8), range(8, 12), range(12, 15)][w]
    xi = [range(0, 4), range(4, 8), range(8, 12), range(12, 18)][w]
    em.label("L_%s" % tag)
    em.fence()
    em.i("v_lshrrev_b32 %s, 3, %s" % (v(VT), v(VL)))
    em.i("v_mul_u32_u24 %s, 0xa00, %s" % (v(VT), v(VT)))
    em.i("v_lshrrev_b32 %s, 4, %s" % (v(VT + 1), v(VL)))
    em.i("v_xor_b32 %s, %s, %s" % (v(VT + 1), v(VT + 1), v(VL)))
    em.i("v_and_b32 %s, 7, %s" % (v(VT + 1), v(VT + 1)))
    em.i("v_lshl_add_u32 %s, %s, 4, %s" % (v(VT + 2), v(VT + 1), v(VT)))
    em.i("v_xor_b32 %s, 64, %s" % (v(VT + 3), v(VT + 2)))
    em.i("s_lshl_b32 %s, %s, 8" % (s(S_T0), s(S_B)))
    em.i("s_add_u32 %s, %s, %s" % (s(S_T0), s(S_T0), s(S_P)))
    em.i("s_mul_i32 %s, %s, 0x500" % (s(S_T0), s(S_T0)))
    em.i("s_sub_u32 %s, %s, 0x%x" % (s(S_T1), s(S_T0), 32 * 1280))
    em.i("s_cmp_eq_u32 %s, 0" % s(S_B))
    em.i("s_cselect_b32 %s, %s, %s" % (s(S_T2), s(S_T0), s(S_T1)))
    for n, i in enumerate(xi):
        src = VT + 2 + (i & 1)
        if i < 2:
            em.i("s_add_u32 %s, %s, 0x%x" % (s(S_T3), s(S_T2), 20480))
        else:
            em.i("s_add_u32 %s, %s, 0x%x" % (s(S_T3), s(S_T1), 20480 * i))
        em.i("v_add_u32 %s, %s, %s" % (v(VXD + n), s(S_T3), v(src)))
    em.i("s_mul_i32 %s, %s, 160" % (s(S_T4), s(S_CG)))
    for n, i in enumerate(wp):
        d = VWD + n
        em.i("v_add_u32 %s, 0x%x, %s" % (v(VT), 64 * i, v(VL)))
        em.i("v_mul_u32_u24 %s, 0x889, %s" % (v(VT + 1), v(VT)))
        em.i("v_lshrrev_b32 %s, 16, %s" % (v(VT + 1), v(VT + 1)))
        em.i("v_mul_u32_u24 %s, 30, %s" % (v(VT + 4), v(VT + 1)))
        em.i("v_sub_u32 %s, %s, %s" % (v(VT), v(VT), v(VT + 4)))
        em.i("v_mul_u32_u24 %s, 0xcd, %s" % (v(VT + 4), v(VT)))
        em.i("v_lshrrev_b32 %s, 11, %s" % (v(VT + 4), v(VT + 4)))
        em.i("v_mul_u32_u24 %s, 0x460, %s" % (v(VT + 4), v(VT + 4)))
        em.i("v_lshl_add_u32 %s, %s, 4, %s" % (v(VT), v(VT), v(VT + 4)))
        em.i("v_and_b32 %s, 0x13, %s" % (v(VT + 4), v(VT + 1)))
        em.i("v_and_b32 %s, 4, %s" % (v(VT + 5), v(VT + 1)))
        em.i("v_lshl_or_b32 %s, %s, 1, %s" % (v(VT + 4), v(VT + 5), v(VT + 4)))
        em.i("v_and_b32 %s, 8, %s" % (v(VT + 5), v(VT + 1)))
        em.i("v_lshrrev_b32 %s, 1, %s" % (v(VT + 5), v(VT + 5)))
        em.i("v_or_b32 %s, %s, %s" % (v(VT + 4), v(VT + 4), v(VT + 5)))
        em.i("v_mul_u32_u24 %s, 0xf00, %s" % (v(VT + 4), v(VT + 4)))
        em.i("v_add3_u32 %s, %s, %s, %s" % (v(d), v(VT), v(VT + 4), s(S_T4)))

    dma = []
    xl = [("s_add_u32 m0, %s, 0x%x" % (s(S_DM), 1024 * i),
           "buffer_load_dwordx4 %s, %s, %s offen lds" % (v(VXD + n), s(SRD_X, 4), s(S_XOFF))) for n, i in enumerate(xi)]
    wl = []
    for n, i in enumerate(wp):
        wl.append(("s_add_u32 m0, %s, 0x%x" % (s(S_DM), Q_XSZ + 1024 * i),
                   "buffer_load_dwordx4 %s, %s, %s offen lds" % (v(VWD + n), s(SRD_W, 4), s(S_WOFF))))
    for n, i in enumerate(wp):
        wl.append(("s_add_u32 m0, %s, 0x%x" % (s(S_DM), Q_XSZ + 1024 * (i + 15)),
                   "buffer_load_dwordx4 %s, %s, %s offen lds" % (v(VWD + n), s(SRD_W, 4), s(S_WOFF2))))
    dma = xl + wl
    assert len(dma) == 12
    adv = advance_dma(Q_SLOT, 64 * 3840) + ["s_add_u32 %s, %s, 0x%x" % (s(S_WOFF2), s(S_WOFF), 32 * 3840)]

    rot_init(em, 0, 64 * 3840)
    em.i("s_add_u32 %s, %s, 0x%x" % (s(S_WOFF2), s(S_WOFF), 32 * 3840))
    em.i("s_mov_b32 %s, 0" % s(S_DM))
    em.i("s_mov_b32 %s, 0" % s(S_STG))
    em.i("s_mov_b32 %s, 0" % s(S_RD))
    em.i("s_waitcnt lgkmcnt(0)")
    VS = 22
    stamp_put(em, VS, 0)
    stamp_put(em, VS, 1)
    stamp_get(em, 0)
    srd(em, SRD_X, 4, X_BYTES)
    srd(em, SRD_W, 6, WQKV_BYTES)
    srd(em, SRD_WS, 20, WS_SIZE)
    for m, l in dma:
        em.i(m)
        em.i(l)
    for x in adv:
        em.i(x)
    F = []
    F.append("v_and_b32 %s, 15, %s" % (v(VT), v(VL)))
    F.append("v_lshrrev_b32 %s, 1, %s" % (v(VT + 1), v(VT)))
    F.append("v_lshrrev_b32 %s, 4, %s" % (v(VT + 2), v(VL)))
    F.append("v_xor_b32 %s, %s, %s" % (v(VT + 1), v(VT + 1), v(VT + 2)))
    F.append("v_lshlrev_b32 %s, 4, %s" % (v(VT + 1), v(VT + 1)))
    F.append("v_lshl_add_u32 %s, %s, 7, %s" % (v(VXA0), v(VT), v(VT + 1)))
    F.append("v_xor_b32 %s, 64, %s" % (v(VXA1), v(VXA0)))
    F.append("v_lshrrev_b32 %s, 5, %s" % (v(VT), v(VL)))
    F.append("v_lshlrev_b32 %s, 4, %s" % (v(VT), v(VT)))
    F.append("v_bfe_u32 %s, %s, 4, 1" % (v(VT + 1), v(VL)))
    F.append("v_lshl_add_u32 %s, %s, 2, %s" % (v(VT), v(VT + 1), v(VT)))
    F.append("v_bfe_u32 %s, %s, 2, 2" % (v(VT + 1), v(VL)))
    F.append("v_add_u32 %s, %s, %s" % (v(VT), v(VT), v(VT + 1)))
    F.append("v_mul_u32_u24 %s, 0x1e0, %s" % (v(VT), v(VT)))
    F.append("v_and_b32 %s, 3, %s" % (v(VT + 1), v(VL)))
    F.append("v_lshl_add_u32 %s, %s, 3, %s" % (v(VWM), v(VT + 1), v(VT)))
    F.append("v_mul_u32_u24 %s, 40, %s" % (v(VT + 1), v(VT + 1)))
    F.append("v_add3_u32 %s, %s, %s, 32" % (v(VWR), v(VT), v(VT + 1)))
    for r in range(ACC, ACC + NACC, 2):
        F.append("v_mov_b64 %s, 0" % v(r, 2))
    per = (len(F) + 11) // 12
    for n, (m, l) in enumerate(dma):
        em.i(m)
        em.i(l)
        for x in F[per * n:per * (n + 1)]:
            em.i(x)
    for x in adv:
        em.i(x)
    if not EARLY:
        for m, l in dma[:6]:
            em.i(m)
            em.i(l)

    def reads(st, ks):
        L = []
        xa = VXA1 if ks else VXA0
        R = []
        for t in range(4):
            R.append("ds_read_b128 %s, %s offset:%d" % (a(FR(st, t), 4), v(xa), (1 + 4 * rh + t) * 2048))
        R.append("ds_read_b128 %s, %s offset:0" % (a(FR(st, 4), 4), v(xa)))
        Wl = []
        cols = [(0, ha), (0, hb), (1, ha), (1, hb), (2, ha), (2, hb)]
        for c, (P, hd) in enumerate(cols):
            for h in range(2):
                Wl.append("ds_read_b64_tr_b16 %s, %s offset:%d" % (
                    a(FR(st, 5 + c) + 2 * h, 2), v(VWM), Q_XSZ + (32 * ks + 8 * h) * 480 + 160 * P + 40 * hd))
        for c, P in enumerate([0 if hp == 0 else 2, 1]):
            for h in range(2):
                Wl.append("ds_read_b64_tr_b16 %s, %s offset:%d" % (
                    a(FR(st, 11 + c) + 2 * h, 2), v(VWR), Q_XSZ + (32 * ks + 8 * h) * 480 + 160 * P))
        return R + Wl

    krt = (0, 1) if hp == 0 else (2, 3)

    def mfmas(st):
        X = lambda t: a(FR(st, t), 4)
        XH = a(FR(st, 4), 4)
        W = lambda c: a(FR(st, 5 + c), 4)
        R0, R1 = a(FR(st, 11), 4), a(FR(st, 12), 4)
        L = []
        for t in range(4):
            for c in range(4):
                L.append(mfma(v(accM(t, c), 4), W(c), X(t)))
            for c in (4, 5):
                L.append(mfma(v(accM(t, c), 4), X(t), W(c)))
            if hp == 0:
                L.append(mfma(v(accR(t), 4), R0, X(t)))
            else:
                L.append(mfma(v(accR(t), 4), X(t), R0))
        for n, t in enumerate(krt):
            L.append(mfma(v(accR(4 + n), 4), R1, X(t)))
        if rh == 0:
            L.append(mfma(v(accH(0), 4), W(2), XH))
            L.append(mfma(v(accH(1), 4), W(3), XH))
            if hp == 0:
                L.append(mfma(v(accH(2), 4), R1, XH))
            else:
                L.append(mfma(v(accH(2), 4), XH, R0))
        else:
            L.append(mfma(v(accH(0), 4), XH, W(4)))
            L.append(mfma(v(accH(1), 4), XH, W(5)))
        return L

    stamp_get(em, 3)
    em.i("s_waitcnt vmcnt(%d)" % (12 if EARLY else 18))
    stamp_get(em, 1)
    em.i("s_barrier")
    stamp_get(em, 2)
    stamp_put(em, VS, 0, True)
    stamp_put(em, VS, 3)
    for r in reads(0, 0):
        em.i(r)
    if EARLY:
        for m, l in dma[:6]:
            em.i(m)
            em.i(l)
    em.i("s_mov_b32 %s, 10" % s(S_CNT))
    em.label("L_%s_loop" % tag)
    top = em.mark()
    em.i("s_waitcnt lgkmcnt(0)")
    stamp_get(em, 0)
    stamp_put(em, VS, 1)
    stamp_put(em, VS, 2)
    ex = [(24 + k // 3, x) for k, x in enumerate(adv)]
    ex += [(22, x) for x in advance_rd(Q_SLOT)]
    ex.append((23, "v_add_u32 %s, %s, %s" % (v(VXA0), s(S_DELTA), v(VXA0))))
    ex.append((29, "v_add_u32 %s, %s, %s" % (v(VXA1), s(S_DELTA), v(VXA1))))
    ex.append((30, "v_add_u32 %s, %s, %s" % (v(VWM), s(S_DELTA), v(VWM))))
    ex.append((30, "v_add_u32 %s, %s, %s" % (v(VWR), s(S_DELTA), v(VWR))))
    phase(em, mfmas(0), reads(1, 1), dma[6:], extra=ex, dma_start=1, dma_step=4)
    stamp_get(em, 3)
    em.i("s_waitcnt vmcnt(12) lgkmcnt(0)")
    stamp_get(em, 1)
    em.i("s_barrier")
    stamp_get(em, 2)
    stamp_put(em, VS, 0)
    stamp_put(em, VS, 3)
    phase(em, mfmas(1), reads(0, 0), dma[:6], extra=[(26, "s_sub_u32 %s, %s, 1" % (s(S_CNT), s(S_CNT))),
                                                    (27, "s_cmp_lg_u32 %s, 0" % s(S_CNT))], dma_start=1, dma_step=4)
    em.i("s_cbranch_scc1 L_%s_loop" % tag)
    em.check_backedge(top)
    stamp_get(em, 0)
    em.i("s_waitcnt vmcnt(0) lgkmcnt(0)")
    stamp_put(em, VS, 1)
    stamp_put(em, VS, 2)
    stamp_put(em, VS, 0)
    stamp_get(em, 1)
    em.i("s_barrier")
    stamp_get(em, 2)
    Rs = lambda ty, tl: (ty * 9 + tl) * 512
    PMs = lambda wh, kd, hd: (27 + wh * 8 + kd * 4 + hd) * 512
    VE = EPI
    VHa, VHb, VRr = EPI + 2, EPI + 12, EPI + 22
    KP = (EPI + 32, EPI + 36)
    MC, MP, MPF = EPI + 40, EPI + 44, EPI + 48
    ONES = EPI + 52
    VMA, VMB = EPI + 56, EPI + 57
    QR = EPI + 58
    em.i("v_lshlrev_b32 %s, 3, %s" % (v(VE), v(VL)))

    def cvt2(dst, src):
        return ["v_cvt_pk_bf16_f32 %s, %s, %s" % (v(dst), v(src), v(src + 1)),
                "v_cvt_pk_bf16_f32 %s, %s, %s" % (v(dst + 1), v(src + 2), v(src + 3))]

    wr = []
    for t in range(4):
        wr.append((accR(t), Rs(0 if hp == 0 else 2, 1 + 4 * rh + t)))
    for n, t in enumerate(krt):
        wr.append((accR(4 + n), Rs(1, 1 + 4 * rh + t)))
    if rh == 0:
        wr.append((accH(0), PMs(0, 0, ha)))
        wr.append((accH(1), PMs(0, 0, hb)))
        wr.append((accH(2), Rs(1 if hp == 0 else 2, 0)))
    else:
        wr.append((accH(0), PMs(0, 1, ha)))
        wr.append((accH(1), PMs(0, 1, hb)))
    for r, off in wr:
        for x in cvt2(r, r):
            em.i(x)
        em.i("ds_write_b64 %s, %s offset:%d" % (v(VE), v(r, 2), off))
    for t in (3, 0, 1, 2):
        for e, c in ((0, 2), (1, 3)):
            for x in cvt2(accM(t, c), accM(t, c)):
                em.i(x)
            if t == 3 and rh == 0:
                em.i("ds_write_b64 %s, %s offset:%d" % (v(VE), v(accM(t, c), 2), PMs(1, 0, (ha, hb)[e])))
        for e, c in ((0, 4), (1, 5)):
            dst = (VHa, VHb)[e] + 2 + 2 * t
            for x in cvt2(dst, accM(t, c)):
                em.i(x)
            if t == 3 and rh == 0:
                em.i("ds_write_b64 %s, %s offset:%d" % (v(VE), v(dst, 2), PMs(1, 1, (ha, hb)[e])))
        if t == 3:
            em.i("s_waitcnt lgkmcnt(0)")
            stamp_put(em, VS, 1)
            stamp_put(em, VS, 2)
            stamp_get(em, 1)
            em.i("s_barrier")
            stamp_get(em, 2)
            for tt in range(4):
                em.i("ds_read_b64 %s, %s offset:%d" % (v(QR + 2 * tt, 2), v(VE), Rs(0, 1 + 4 * rh + tt)))
            for e in range(2):
                em.i("ds_read_b64 %s, %s offset:%d" % (v(KP[e], 2), v(VE), PMs(rh, 0, (ha, hb)[e])))
                em.i("ds_read_b64 %s, %s offset:%d" % (v(KP[e] + 2, 2), v(VE), Rs(1, 4 * rh)))
                em.i("ds_read_b64 %s, %s offset:%d" % (v((VHa, VHb)[e], 2), v(VE), PMs(rh, 1, (ha, hb)[e])))
            for tt in range(5):
                em.i("ds_read_b64 %s, %s offset:%d" % (v(VRr + 2 * tt, 2), v(VE), Rs(2, 4 * rh + tt)))
            em.i("ds_read_b64 %s, %s offset:%d" % (v(accM(3, 2) + 2, 2), v(VE), Rs(1, 4 + 4 * rh)))
            em.i("s_waitcnt lgkmcnt(8)")
            em.i("ds_read_b64 %s, %s offset:%d" % (v(accM(3, 3) + 2, 2), v(VE), Rs(1, 4 + 4 * rh)))
        else:
            em.i("ds_read_b64 %s, %s offset:%d" % (v(accM(t, 2) + 2, 2), v(VE), Rs(1, 1 + 4 * rh + t)))
            em.i("ds_read_b64 %s, %s offset:%d" % (v(accM(t, 3) + 2, 2), v(VE), Rs(1, 1 + 4 * rh + t)))
    for t in range(4):
        for c in (0, 1):
            for x in cvt2(accM(t, c), accM(t, c)):
                em.i(x)
    NEG = f2u(-1.0e30)
    em.i("v_and_b32 %s, 15, %s" % (v(VT), v(VL)))
    em.i("v_lshrrev_b32 %s, 4, %s" % (v(VT + 1), v(VL)))
    em.i("v_lshlrev_b32 %s, 2, %s" % (v(VT + 2), v(VT + 1)))
    em.i("v_sub_u32 %s, %s, %s" % (v(VT + 2), v(VT), v(VT + 2)))
    em.i("v_mov_b32 %s, 0x%x" % (v(VT + 3), NEG))
    for r in range(4):
        em.i("v_subrev_u32 %s, %d, %s" % (v(VT + 4), r, v(VT + 2)))
        em.i("v_cmp_gt_u32 vcc, 8, %s" % v(VT + 4))
        em.i("v_cndmask_b32 %s, %s, 0, vcc" % (v(MC + r), v(VT + 3)))
        em.i("v_cmp_ge_i32 vcc, -9, %s" % v(VT + 4))
        em.i("v_cndmask_b32 %s, %s, 0, vcc" % (v(MP + r), v(VT + 3)))
    if rh == 0:
        em.i("s_cmp_eq_u32 %s, 0" % s(S_B))
        em.i("s_cselect_b64 %s, -1, 0" % s(S_EX, 2))
        for r in range(4):
            em.i("v_cndmask_b32 %s, %s, %s, %s" % (v(MPF + r), v(MP + r), v(VT + 3), s(S_EX, 2)))
    for r in range(4):
        em.i("v_mov_b32 %s, 0x3f803f80" % v(ONES + r))
    em.i("v_cmp_eq_u32 vcc, %d, %s" % (ha, v(VT + 1)))
    em.i("v_cndmask_b32 %s, 0, -1, vcc" % v(VMA))
    em.i("v_cmp_eq_u32 %s, %d, %s" % (s(S_EX, 2), hb, v(VT + 1)))
    em.i("v_cndmask_b32 %s, 0, -1, %s" % (v(VMB), s(S_EX, 2)))
    em.i("s_mov_b32 %s, 0x%x" % (s(S_C0), f2u(20.0 ** -0.5 * math.log2(math.e))))
    em.i("s_mov_b32 %s, 0x%x" % (s(S_C0 + 1), f2u(20.0 ** -0.5 * math.log2(math.e))))
    em.i("s_waitcnt lgkmcnt(0)")
    stamp_put(em, VS, 1)
    stamp_put(em, VS, 2)
    stamp(em, VS)
    for t in range(4):
        for e in range(2):
            for d in range(2):
                em.i("v_and_b32 %s, %s, %s" % (v(accM(t, e) + 2 + d), v((VMA, VMB)[e]), v(QR + 2 * t + d)))
    em.i("s_lshl_b32 %s, %s, 6" % (s(S_T0), s(S_P)))
    em.i("s_lshl_b32 %s, %s, 3" % (s(S_T1), s(S_B)))
    em.i("s_add_u32 %s, %s, %s" % (s(S_T0), s(S_T0), s(S_T1)))
    em.i("s_add_u32 %s, %s, %d" % (s(S_T0), s(S_T0), 4 * rh))
    em.i("s_mul_i32 %s, %s, 0x%x" % (s(S_T0), s(S_T0), TILE_B))
    em.i("s_lshl_b32 %s, %s, 11" % (s(S_T1), s(S_CG)))
    em.i("s_add_u32 %s, %s, %s" % (s(S_T1), s(S_T1), s(S_T0)))
    em.i("s_add_u32 %s, %s, %d" % (s(S_T1), s(S_T1), 1024 * hp))
    em.i("s_lshr_b32 %s, %s, 1" % (s(S_T2), s(S_CG)))
    em.i("s_lshl_b32 %s, %s, 10" % (s(S_T2), s(S_T2)))
    em.i("s_add_u32 %s, %s, %s" % (s(S_T2), s(S_T2), s(S_T0)))
    em.i("s_and_b32 %s, %s, 1" % (s(S_T3), s(S_CG)))
    em.i("s_lshl_b32 %s, %s, 3" % (s(S_T3), s(S_T3)))
    em.i("s_add_u32 %s, %s, %s" % (s(S_T2), s(S_T2), s(S_T3)))
    em.i("s_add_u32 %s, %s, %d" % (s(S_T2), s(S_T2), 16 * 1024))
    em.i("v_lshlrev_b32 %s, 4, %s" % (v(VE + 1), v(VL)))
    VST = VE + 1

    pool = [accM(0, 4), accM(1, 4), accM(2, 4), accM(3, 4), 120, 128, 136, 144, 224, 232, 240, 248]

    def unit(t, e, regs):
        S, A_, B_ = regs
        M, M2, SUM = A_, A_ + 2, A_ + 4
        O, OR = B_, B_ + 4
        Q = v(accM(t, e), 4)
        Kc = v(accM(t, 2 + e), 4)
        Kp = v(accM(t - 1, 2 + e), 4) if t > 0 else v(KP[e], 4)
        mp = MPF if (t == 0 and rh == 0) else MP
        VH = (VHa, VHb)[e]
        L = []
        L.append(mfma(v(S, 4), Kp, Q, v(mp, 4)))
        L.append(mfma(v(S + 4, 4), Kc, Q, v(MC, 4)))
        L.append("v_max3_f32 %s, %s, %s, %s" % (v(M), v(S), v(S + 1), v(S + 2)))
        L.append("v_max3_f32 %s, %s, %s, %s" % (v(M2), v(S + 3), v(S + 4), v(S + 5)))
        L.append("v_max3_f32 %s, %s, %s, %s" % (v(M), v(M), v(S + 6), v(S + 7)))
        L.append("v_max_f32 %s, %s, %s" % (v(M), v(M), v(M2)))
        L.append("v_mov_b32 %s, %s" % (v(M2), v(M)))
        L.append("v_permlane16_swap_b32 %s, %s" % (v(M), v(M2)))
        L.append("v_max_f32 %s, %s, %s" % (v(M), v(M), v(M2)))
        L.append("v_mov_b32 %s, %s" % (v(M2), v(M)))
        L.append("v_permlane32_swap_b32 %s, %s" % (v(M), v(M2)))
        L.append("v_max_f32 %s, %s, %s" % (v(M), v(M), v(M2)))
        L.append("v_mul_f32 %s, %s, %s" % (v(M), s(S_C0), v(M)))
        for k in range(0, 8, 2):
            L.append("v_pk_fma_f32 %s, %s, %s, %s op_sel_hi:[1,0,0] neg_lo:[0,0,1] neg_hi:[0,0,1]" % (
                v(S + k, 2), v(S + k, 2), s(S_C0, 2), v(M, 2)))
        for k in range(8):
            L.append("v_exp_f32 %s, %s" % (v(S + k), v(S + k)))
        for k in range(4):
            L.append("v_cvt_pk_bf16_f32 %s, %s, %s" % (v(S + k), v(S + 2 * k), v(S + 2 * k + 1)))
        P = v(S, 4)
        L.append(mfma(v(SUM, 4), v(ONES, 4), P, "0"))
        L.append(mfma(v(O, 4), v(VH + 2 * t, 4), P, "0"))
        L.append(mfma(v(OR, 4), v(VRr + 2 * t, 4), P, "0"))
        L.append("v_rcp_f32 %s, %s" % (v(M), v(SUM)))
        L.append("v_pk_mul_f32 %s, %s, %s op_sel_hi:[1,0]" % (v(O, 2), v(O, 2), v(M, 2)))
        L.append("v_pk_mul_f32 %s, %s, %s op_sel_hi:[1,0]" % (v(O + 2, 2), v(O + 2, 2), v(M, 2)))
        L.append("v_pk_mul_f32 %s, %s, %s op_sel_hi:[1,0]" % (v(OR, 2), v(OR, 2), v(M, 2)))
        L.append("v_pk_mul_f32 %s, %s, %s op_sel_hi:[1,0]" % (v(OR + 2, 2), v(OR + 2, 2), v(M, 2)))
        dst = accM(t, 0) + 2 * e
        L.append("v_cvt_pk_bf16_f32 %s, %s, %s" % (v(dst), v(O), v(O + 1)))
        L.append("v_cvt_pk_bf16_f32 %s, %s, %s" % (v(dst + 1), v(O + 2), v(O + 3)))
        L.append("v_cvt_pk_bf16_f32 %s, %s, %s" % (v(OR), v(OR), v(OR + 1)))
        L.append("v_cvt_pk_bf16_f32 %s, %s, %s" % (v(OR + 1), v(OR + 2), v(OR + 3)))
        return L

    for half in range(2):
        ul = []
        us = []
        for n, (t, e) in enumerate([(2 * half, 0), (2 * half, 1), (2 * half + 1, 0), (2 * half + 1, 1)]):
            regs = (pool[n], pool[4 + n], pool[8 + n])
            us.append((t, e, regs))
            ul.append(unit(t, e, regs))
        for x in interleave(ul):
            em.i(x)
        for n in (0, 2):
            t = us[n][0]
            ORa = us[n][2][2] + 4
            ORb = us[n + 1][2][2] + 4
            em.i("v_cndmask_b32 %s, %s, %s, %s" % (v(ORa), v(ORa), v(ORb), s(S_EX, 2)))
            em.i("v_cndmask_b32 %s, %s, %s, %s" % (v(ORa + 1), v(ORa + 1), v(ORb + 1), s(S_EX, 2)))
            em.i("s_add_u32 %s, %s, 0x%x" % (s(S_T3), s(S_T1), t * TILE_B))
            em.i("buffer_store_dwordx4 %s, %s, %s, %s offen%s" % (v(accM(t, 0), 4), v(VST), s(SRD_WS, 4), s(S_T3), WT))
            em.i("s_add_u32 %s, %s, 0x%x" % (s(S_T4), s(S_T2), t * TILE_B))
            em.i("s_mov_b32 %s, 0" % ("exec_hi" if hp == 0 else "exec_lo"))
            em.i("buffer_store_dwordx2 %s, %s, %s, %s offen%s" % (v(ORa, 2), v(VST), s(SRD_WS, 4), s(S_T4), WT))
            em.i("s_mov_b64 exec, -1")
    stamp_end(em, VS, SRD_WS, S_WV, 0)
    em.i("s_endpgm")


def gen_h(em):
    VL, VT = 0, 1
    VWD, VXD = 8, 14
    VXA0, VXA1 = 18, 19
    VWA = 20
    ACC = 24
    acc = lambda t, u: ACC + (t * 6 + u) * 4
    RIN = 120
    ROUT = 152
    GX = 152
    VG, VRS, VGX, VGW, VRL = 192, 193, 194, 195, 196
    VS = 198
    BIAS = 200
    TMP = 200
    S_R0, S_R1 = 82, 83
    FR = lambda st, k: st * 40 + k * 4
    em.label("L_h")
    em.fence()
    em.i("s_lshr_b32 %s, %s, 1" % (s(S_T5), s(S_WV)))
    em.i("v_lshrrev_b32 %s, 3, %s" % (v(VT), v(VL)))
    em.i("v_mul_u32_u24 %s, 0xa00, %s" % (v(VT), v(VT)))
    em.i("v_lshrrev_b32 %s, 4, %s" % (v(VT + 1), v(VL)))
    em.i("v_xor_b32 %s, %s, %s" % (v(VT + 1), v(VT + 1), v(VL)))
    em.i("v_and_b32 %s, 7, %s" % (v(VT + 1), v(VT + 1)))
    em.i("v_lshl_add_u32 %s, %s, 4, %s" % (v(VT + 2), v(VT + 1), v(VT)))
    em.i("v_xor_b32 %s, 64, %s" % (v(VT + 3), v(VT + 2)))
    em.i("s_lshl_b32 %s, %s, 8" % (s(S_T0), s(S_B)))
    em.i("s_add_u32 %s, %s, %s" % (s(S_T0), s(S_T0), s(S_P)))
    em.i("s_lshl_b32 %s, %s, 6" % (s(S_T1), s(S_WV)))
    em.i("s_add_u32 %s, %s, %s" % (s(S_T1), s(S_T1), s(S_T0)))
    em.i("s_mul_i32 %s, %s, 0x500" % (s(S_T1), s(S_T1)))
    for n in range(4):
        em.i("s_add_u32 %s, %s, 0x%x" % (s(S_T3), s(S_T1), 20480 * n))
        em.i("v_add_u32 %s, %s, %s" % (v(VXD + n), s(S_T3), v(VT + 2 + (n & 1))))
    em.i("s_mul_i32 %s, %s, 384" % (s(S_T4), s(S_CG)))
    em.i("s_mul_i32 %s, %s, 0x%x" % (s(S_T3), s(S_WV), 16 * 3072))
    em.i("s_add_u32 %s, %s, %s" % (s(S_T4), s(S_T4), s(S_T3)))
    for n in range(6):
        d = VWD + n
        em.i("v_add_u32 %s, 0x%x, %s" % (v(VT), 64 * n, v(VL)))
        em.i("v_mul_u32_u24 %s, 0xaab, %s" % (v(VT + 1), v(VT)))
        em.i("v_lshrrev_b32 %s, 16, %s" % (v(VT + 1), v(VT + 1)))
        em.i("v_mul_u32_u24 %s, 24, %s" % (v(VT + 4), v(VT + 1)))
        em.i("v_sub_u32 %s, %s, %s" % (v(VT), v(VT), v(VT + 4)))
        em.i("v_and_b32 %s, 2, %s" % (v(VT + 4), v(VT + 1)))
        em.i("v_lshrrev_b32 %s, 1, %s" % (v(VT + 5), v(VT + 1)))
        em.i("v_and_or_b32 %s, %s, 4, %s" % (v(VT + 4), v(VT + 5), v(VT + 4)))
        em.i("v_xor_b32 %s, %s, %s" % (v(VT), v(VT), v(VT + 4)))
        em.i("v_mul_u32_u24 %s, 0xc00, %s" % (v(VT + 1), v(VT + 1)))
        em.i("v_lshl_add_u32 %s, %s, 4, %s" % (v(VT), v(VT), v(VT + 1)))
        em.i("v_add_u32 %s, %s, %s" % (v(d), s(S_T4), v(VT)))
    em.i("v_and_b32 %s, 15, %s" % (v(VT), v(VL)))
    em.i("v_lshrrev_b32 %s, 4, %s" % (v(VT + 1), v(VL)))
    em.i("s_and_b32 %s, %s, 1" % (s(S_T2), s(S_WV)))
    em.i("s_mul_i32 %s, %s, 192" % (s(S_T3), s(S_T2)))
    em.i("s_mul_i32 %s, %s, 384" % (s(S_T4), s(S_CG)))
    em.i("s_add_u32 %s, %s, %s" % (s(S_T3), s(S_T3), s(S_T4)))
    em.i("v_lshlrev_b32 %s, 3, %s" % (v(VT + 4), v(VT + 1)))

    dma = []
    for n in range(4):
        dma.append(("s_add_u32 m0, %s, 0x%x" % (s(S_C1), 1024 * n),
                    "buffer_load_dwordx4 %s, %s, %s offen lds" % (v(VXD + n), s(SRD_X, 4), s(S_XOFF))))
    for n in range(6):
        dma.append(("s_add_u32 m0, %s, 0x%x" % (s(S_C1 + 1), H_XSZ + 1024 * n),
                    "buffer_load_dwordx4 %s, %s, %s offen lds" % (v(VWD + n), s(SRD_W, 4), s(S_WOFF))))
    adv = advance_dma(H_SLOT, 64 * 3072) + [
        "s_add_u32 %s, %s, %s" % (s(S_C1), s(S_DM), s(S_WOFF2)),
        "s_add_u32 %s, %s, %s" % (s(S_C1 + 1), s(S_DM), s(S_EX))]
    em.i("s_lshl_b32 %s, %s, 12" % (s(S_WOFF2), s(S_WV)))
    em.i("s_mul_i32 %s, %s, 6144" % (s(S_EX), s(S_WV)))
    em.i("s_mov_b32 %s, %s" % (s(S_C1), s(S_WOFF2)))
    em.i("s_mov_b32 %s, %s" % (s(S_C1 + 1), s(S_EX)))
    rot_init(em, 1, 64 * 3072)
    em.i("s_mov_b32 %s, 0" % s(S_DM))
    em.i("s_mov_b32 %s, 0" % s(S_STG))
    em.i("s_mov_b32 %s, 0" % s(S_RD))
    em.i("s_waitcnt lgkmcnt(0)")
    stamp_put(em, VS, 0)
    stamp_put(em, VS, 1)
    stamp_get(em, 0)
    srd(em, SRD_X, 4, X_BYTES)
    srd(em, SRD_W, 12, W1_BYTES)
    srd(em, SRD_T2, 14, 3072)
    for u in range(6):
        em.i("buffer_load_dwordx2 %s, %s, %s, %s offen offset:%d" % (v(BIAS + 2 * u, 2), v(VT + 4), s(SRD_T2, 4), s(S_T3), 32 * u))
    for m, l in dma:
        em.i(m)
        em.i(l)
    for x in adv:
        em.i(x)
    for m, l in dma[:5]:
        em.i(m)
        em.i(l)
    srd(em, SRD_WS, 20, WS_SIZE)
    srd(em, SRD_T2, 18, 1280)
    em.i("v_lshrrev_b32 %s, 1, %s" % (v(VT + 2), v(VT)))
    em.i("v_xor_b32 %s, %s, %s" % (v(VT + 2), v(VT + 2), v(VT + 1)))
    em.i("v_lshlrev_b32 %s, 4, %s" % (v(VT + 2), v(VT + 2)))
    em.i("v_lshl_add_u32 %s, %s, 7, %s" % (v(VT + 2), v(VT), v(VT + 2)))
    em.i("s_lshl_b32 %s, %s, 13" % (s(S_T1), s(S_T5)))
    em.i("v_add_u32 %s, %s, %s" % (v(VXA0), s(S_T1), v(VT + 2)))
    em.i("v_xor_b32 %s, 64, %s" % (v(VXA1), v(VXA0)))
    em.i("v_bfe_u32 %s, %s, 2, 2" % (v(VT + 2), v(VL)))
    em.i("v_lshl_add_u32 %s, %s, 3, %s" % (v(VT + 3), v(VT + 1), v(VT + 2)))
    em.i("v_mul_u32_u24 %s, 0x180, %s" % (v(VT + 3), v(VT + 3)))
    em.i("v_and_b32 %s, 3, %s" % (v(VT + 4), v(VL)))
    em.i("v_lshl_add_u32 %s, %s, 3, %s" % (v(VT + 3), v(VT + 4), v(VT + 3)))
    em.i("v_lshrrev_b32 %s, 1, %s" % (v(VT + 2), v(VT + 2)))
    em.i("v_and_b32 %s, 1, %s" % (v(VT + 4), v(VT + 1)))
    em.i("v_lshl_or_b32 %s, %s, 1, %s" % (v(VT + 2), v(VT + 4), v(VT + 2)))
    em.i("s_mul_i32 %s, %s, 6" % (s(S_T2), s(S_T2)))
    for u in range(4):
        em.i("s_add_u32 %s, %s, %d" % (s(S_T3), s(S_T2), u))
        em.i("v_xor_b32 %s, %s, %s" % (v(VT + 4), s(S_T3), v(VT + 2)))
        em.i("v_lshl_add_u32 %s, %s, 5, %s" % (v(VWA + u), v(VT + 4), v(VT + 3)))
    em.i("v_lshlrev_b32 %s, 4, %s" % (v(VGW), v(VT)))
    em.i("s_lshl_b32 %s, %s, 5" % (s(S_T1), s(S_CG)))
    em.i("s_lshl_b32 %s, %s, 3" % (s(S_T2), s(S_WV)))
    em.i("s_add_u32 %s, %s, %s" % (s(S_T1), s(S_T1), s(S_T2)))
    em.i("s_add_u32 %s, %s, %s" % (s(S_T1), s(S_T1), s(S_T0)))
    em.i("s_mul_i32 %s, %s, 0x500" % (s(S_T1), s(S_T1)))
    em.i("v_mul_u32_u24 %s, 0xa00, %s" % (v(VT + 3), v(VT + 1)))
    em.i("v_add3_u32 %s, %s, %s, %s" % (v(VGX), v(VT + 3), v(VGW), s(S_T1)))
    em.i("s_lshl_b32 %s, %s, 3" % (s(S_UNIT), s(S_P)))
    em.i("s_add_u32 %s, %s, %s" % (s(S_UNIT), s(S_UNIT), s(S_B)))
    em.i("s_lshl_b32 %s, %s, 3" % (s(S_UNIT), s(S_UNIT)))
    em.i("s_add_u32 %s, %s, %s" % (s(S_UNIT), s(S_UNIT), s(S_CG)))
    em.i("s_lshl_b32 %s, %s, 2" % (s(S_UNIT), s(S_UNIT)))
    em.i("s_add_u32 %s, %s, %s" % (s(S_UNIT), s(S_UNIT), s(S_WV)))
    em.i("s_mul_i32 %s, %s, 0xcccd" % (s(S_T0), s(S_UNIT)))
    em.i("s_lshr_b32 %s, %s, 18" % (s(S_T0), s(S_T0)))
    em.i("s_mul_i32 %s, %s, 5" % (s(S_T1), s(S_T0)))
    em.i("s_sub_u32 %s, %s, %s" % (s(S_T1), s(S_UNIT), s(S_T1)))
    em.i("s_lshl_b32 %s, %s, 5" % (s(S_T2), s(S_T0)))
    em.i("s_sub_u32 %s, %s, 640" % (s(S_T2), s(S_T2)))
    em.i("s_mov_b32 %s, 16" % s(S_T3))
    em.i("s_mov_b32 %s, 4" % s(S_T4))
    em.i("s_mul_i32 %s, %s, 160" % (s(S_C0), s(S_T0)))
    em.i("s_sub_u32 %s, %s, %d" % (s(S_C0), s(S_C0), 2560 - 16))
    em.i("s_mov_b32 %s, 0x%x" % (s(SRD_T + 2), W2_BYTES))
    em.i("s_mov_b32 %s, 0x20000" % s(SRD_T + 3))
    em.i("s_cmp_lt_u32 %s, 20" % s(S_T0))
    em.i("s_cselect_b32 %s, %s, %s" % (s(S_T2), s(S_C0), s(S_T2)))
    em.i("s_cselect_b32 %s, 80, %s" % (s(S_T3), s(S_T3)))
    em.i("s_cselect_b32 %s, 20, %s" % (s(S_T4), s(S_T4)))
    em.i("s_cselect_b32 %s, %s, %s" % (s(SRD_T), s(8), s(16)))
    em.i("s_cselect_b32 %s, %s, %s" % (s(SRD_T + 1), s(9), s(17)))
    em.i("s_cselect_b32 %s, 0x%x, %s" % (s(SRD_T + 2), WO_BYTES, s(SRD_T + 2)))
    em.i("s_mul_i32 %s, %s, 40" % (s(S_C0), s(S_T0)))
    em.i("s_cmp_lt_u32 %s, 16" % s(S_T0))
    em.i("s_cselect_b32 %s, %s, %s" % (s(S_T2), s(S_C0), s(S_T2)))
    em.i("s_cselect_b32 %s, 20, %s" % (s(S_T3), s(S_T3)))
    em.i("s_cselect_b32 %s, 4, %s" % (s(S_T4), s(S_T4)))
    em.i("s_mul_i32 %s, %s, 0x500" % (s(S_T4), s(S_T4)))
    em.i("v_mad_u32_u24 %s, %s, %s, %s" % (v(VRL), v(VT + 1), s(S_T4), v(VGW)))
    em.i("s_mul_i32 %s, %s, 0x500" % (s(S_T2), s(S_T2)))
    em.i("s_lshl_b32 %s, %s, 8" % (s(S_C0), s(S_T1)))
    em.i("s_add_u32 %s, %s, %s" % (s(S_R0), s(S_T2), s(S_C0)))
    em.i("s_mul_i32 %s, %s, 0x500" % (s(S_T3), s(S_T3)))
    em.i("s_add_u32 %s, %s, %s" % (s(S_R1), s(S_T3), s(S_R0)))
    em.i("s_mul_i32 %s, %s, 40" % (s(S_T0), s(S_T0)))
    em.i("s_lshl_b32 %s, %s, 3" % (s(S_T1), s(S_T1)))
    em.i("s_add_u32 %s, %s, %s" % (s(S_T0), s(S_T0), s(S_T1)))
    em.i("s_lshl_b32 %s, %s, 10" % (s(S_T0), s(S_T0)))
    em.i("s_add_u32 %s, %s, 0x%x" % (s(S_T0), s(S_T0), WF_OFF))
    em.i("s_cmp_ge_u32 %s, 340" % s(S_UNIT))
    em.i("s_cselect_b32 %s, 0x%x, %s" % (s(S_T0), BIGOFF, s(S_T0)))
    em.i("s_cselect_b32 %s, 0x%x, %s" % (s(S_R0), BIGOFF, s(S_R0)))
    em.i("s_cselect_b32 %s, 0x%x, %s" % (s(S_R1), BIGOFF, s(S_R1)))
    em.i("v_lshrrev_b32 %s, 1, %s" % (v(VT + 5), v(VT)))
    em.i("v_lshlrev_b32 %s, 10, %s" % (v(VT + 5), v(VT + 5)))
    em.i("v_and_b32 %s, 1, %s" % (v(VT + 6), v(VT)))
    em.i("v_lshl_add_u32 %s, %s, 7, %s" % (v(VT + 5), v(VT + 6), v(VT + 5)))
    em.i("v_lshl_add_u32 %s, %s, 8, %s" % (v(VT + 5), v(VT + 1), v(VT + 5)))
    em.i("v_add_u32 %s, %s, %s" % (v(VRS), s(S_T0), v(VT + 5)))
    em.i("s_waitcnt vmcnt(15)")
    F = []
    for t in range(4):
        for u in range(6):
            F.append("v_lshlrev_b32 %s, 16, %s" % (v(acc(t, u)), v(BIAS + 2 * u)))
            F.append("v_and_b32 %s, 0xffff0000, %s" % (v(acc(t, u) + 1), v(BIAS + 2 * u)))
            F.append("v_lshlrev_b32 %s, 16, %s" % (v(acc(t, u) + 2), v(BIAS + 2 * u + 1)))
            F.append("v_and_b32 %s, 0xffff0000, %s" % (v(acc(t, u) + 3), v(BIAS + 2 * u + 1)))
    for n, (m, l) in enumerate(dma[5:]):
        em.i(m)
        em.i(l)
        for x in F[20 * n:20 * (n + 1)]:
            em.i(x)
    for x in adv:
        em.i(x)
    if not EARLY:
        for m, l in dma[:5]:
            em.i(m)
            em.i(l)

    def reads(st, ks):
        xa = VXA1 if ks else VXA0
        R = []
        for t in range(4):
            R.append("ds_read_b128 %s, %s offset:%d" % (a(FR(st, t), 4), v(xa), t * 2048))
        for u in range(6):
            for h in range(2):
                R.append("ds_read_b64_tr_b16 %s, %s offset:%d" % (
                    a(FR(st, 4 + u) + 2 * h, 2), v(VWA + (u & 3)), H_XSZ + (32 * ks + 4 * h) * 384 + 128 * (u >> 2)))
        return R

    def mfmas(st):
        L = []
        for t in range(4):
            for u in range(6):
                L.append(mfma(v(acc(t, u), 4), a(FR(st, 4 + u), 4), a(FR(st, t), 4)))
        return L

    stamp_get(em, 3)
    em.i("s_waitcnt vmcnt(%d)" % (10 if EARLY else 15))
    stamp_get(em, 1)
    em.i("s_barrier")
    stamp_get(em, 2)
    stamp_put(em, VS, 0, True)
    stamp_put(em, VS, 3)
    for r in reads(0, 0):
        em.i(r)
    if EARLY:
        for m, l in dma[:5]:
            em.i(m)
            em.i(l)
    em.i("s_mov_b32 %s, 10" % s(S_CNT))
    em.label("L_h_loop")
    top = em.mark()
    em.i("s_waitcnt lgkmcnt(0)")
    stamp_get(em, 0)
    stamp_put(em, VS, 1)
    stamp_put(em, VS, 2)
    ex = [(18 + k // 3, x) for k, x in enumerate(adv)]
    ex += [(16, x) for x in advance_rd(H_SLOT)]
    ex.append((17, "v_add_u32 %s, %s, %s" % (v(VXA0), s(S_DELTA), v(VXA0))))
    ex.append((17, "v_add_u32 %s, %s, %s" % (v(VXA1), s(S_DELTA), v(VXA1))))
    for u in range(4):
        ex.append((22 + u // 2, "v_add_u32 %s, %s, %s" % (v(VWA + u), s(S_DELTA), v(VWA + u))))
    phase(em, mfmas(0), reads(1, 1), dma[5:], extra=ex, dma_start=1, dma_step=4)
    stamp_get(em, 3)
    em.i("s_waitcnt vmcnt(10) lgkmcnt(0)")
    stamp_get(em, 1)
    em.i("s_barrier")
    stamp_get(em, 2)
    stamp_put(em, VS, 0)
    stamp_put(em, VS, 3)
    phase(em, mfmas(1), reads(0, 0), dma[:5], extra=[(20, "s_sub_u32 %s, %s, 1" % (s(S_CNT), s(S_CNT))),
                                                    (21, "s_cmp_lg_u32 %s, 0" % s(S_CNT))], dma_start=1, dma_step=4)
    em.i("s_cbranch_scc1 L_h_loop")
    em.check_backedge(top)
    stamp_get(em, 0)
    stamp_put(em, VS, 1, True)
    stamp_put(em, VS, 2)
    stamp_put(em, VS, 0)
    SL = []
    for n in range(5):
        SL.append("buffer_load_dwordx4 %s, %s, %s, 0 offen offset:%d" % (v(GX + 4 * n, 4), v(VGX), s(SRD_X, 4), 256 * n))
        SL.append("buffer_load_dwordx4 %s, %s, %s, 0 offen offset:%d" % (v(GX + 20 + 4 * n, 4), v(VGW), s(SRD_T2, 4), 256 * n))
    for j in range(8):
        SL.append("buffer_load_dwordx4 %s, %s, %s, %s offen offset:%d" % (
            v(RIN + 4 * j, 4), v(VRL), s(SRD_T, 4), s(S_R0 if j < 4 else S_R1), 1280 * (j & 3)))
    P = []
    P.append("s_lshl_b32 %s, %s, 6" % (s(S_T0), s(S_P)))
    P.append("s_lshl_b32 %s, %s, 3" % (s(S_T1), s(S_B)))
    P.append("s_add_u32 %s, %s, %s" % (s(S_T0), s(S_T0), s(S_T1)))
    P.append("s_add_u32 %s, %s, %s" % (s(S_T3), s(S_T0), s(S_CG)))
    P.append("s_lshl_b32 %s, %s, 2" % (s(S_T3), s(S_T3)))
    P.append("s_add_u32 %s, %s, %s" % (s(S_T3), s(S_T3), s(S_WV)))
    P.append("s_lshl_b32 %s, %s, 4" % (s(S_T3), s(S_T3)))
    P.append("s_add_u32 %s, %s, 0x%x" % (s(S_T3), s(S_T3), G_OFF))
    P.append("s_lshl_b32 %s, %s, 2" % (s(S_T1), s(S_T5)))
    P.append("s_add_u32 %s, %s, %s" % (s(S_T0), s(S_T0), s(S_T1)))
    P.append("s_mul_i32 %s, %s, 68" % (s(S_T0), s(S_T0)))
    P.append("s_mul_i32 %s, %s, 6" % (s(S_T1), s(S_CG)))
    P.append("s_add_u32 %s, %s, %s" % (s(S_T0), s(S_T0), s(S_T1)))
    P.append("s_and_b32 %s, %s, 1" % (s(S_T1), s(S_WV)))
    P.append("s_mul_i32 %s, %s, 3" % (s(S_T1), s(S_T1)))
    P.append("s_add_u32 %s, %s, %s" % (s(S_T0), s(S_T0), s(S_T1)))
    P.append("s_add_u32 %s, %s, 20" % (s(S_T0), s(S_T0)))
    P.append("s_lshl_b32 %s, %s, 10" % (s(S_T0), s(S_T0)))
    P.append("v_lshlrev_b32 %s, 4, %s" % (v(VT), v(VL)))
    c0 = -2.0 * math.log2(math.e) * math.sqrt(2.0 / math.pi)
    c1 = c0 * 0.044715
    em.i("s_mov_b32 %s, 0x%x" % (s(S_C0), f2u(c0)))
    em.i("s_mov_b32 %s, 0x%x" % (s(S_C0 + 1), f2u(c0)))
    em.i("v_mov_b32 %s, 0x%x" % (v(VT + 1), f2u(c1)))
    em.i("v_mov_b32 %s, 0x%x" % (v(VT + 2), f2u(c1)))
    C1 = VT + 1
    assert C1 % 2 == 0
    SC = []
    SC.append("v_dot2_f32_bf16 %s, %s, %s, 0" % (v(VG), v(GX), v(GX + 20)))
    for n in range(1, 20):
        SC.append("v_dot2_f32_bf16 %s, %s, %s, %s" % (v(VG), v(GX + n), v(GX + 20 + n), v(VG)))
    for rot in (8, 4, 2, 1):
        SC.append("v_add_f32_dpp %s, %s, %s row_ror:%d row_mask:0xf bank_mask:0xf" % (v(VT + 3), v(VG), v(VG), rot))
        SC.append("v_mov_b32 %s, %s" % (v(VG), v(VT + 3)))
    SC.append("v_cvt_pk_bf16_f32 %s, %s, %s" % (v(VG), v(VG), v(VG)))
    SC.append("v_lshlrev_b32 %s, 16, %s" % (v(VG), v(VG)))
    SC.append("v_mul_f32 %s, 0x%x, %s" % (v(VG), f2u(-math.log2(math.e)), v(VG)))
    SC.append("v_exp_f32 %s, %s" % (v(VG), v(VG)))
    SC.append("v_lshrrev_b32 %s, 4, %s" % (v(VT + 3), v(VL)))
    SC.append("v_add_f32 %s, 1.0, %s" % (v(VG), v(VG)))
    SC.append("v_rcp_f32 %s, %s" % (v(VG), v(VG)))
    SC.append("v_lshlrev_b32 %s, 2, %s" % (v(VT + 3), v(VT + 3)))
    SC.append("v_cvt_pk_bf16_f32 %s, %s, %s" % (v(VG), v(VG), v(VG)))
    SC.append("v_lshlrev_b32 %s, 16, %s" % (v(VG), v(VG)))
    SC.append("buffer_store_dword %s, %s, %s, %s offen%s" % (v(VG), v(VT + 3), s(SRD_WS, 4), s(S_T3), WT))
    SC.append("s_mov_b32 %s, 0x05040100" % s(S_R0))
    SC.append("s_mov_b32 %s, 0x07060302" % s(S_R1))
    for d in range(4):
        for e in range(2):
            for jj in range(4):
                SC.append("v_perm_b32 %s, %s, %s, %s" % (
                    v(ROUT + (2 * d + e) * 4 + jj), v(RIN + (2 * jj + 1) * 4 + d), v(RIN + (2 * jj) * 4 + d), s(S_R0 + e)))
            n = 2 * d + e
            SC.append("buffer_store_dwordx4 %s, %s, %s, 0 offen offset:%d%s" % (v(ROUT + 4 * n, 4), v(VRS), s(SRD_WS, 4), 16 * n, WT))

    def gelu_pair(x, tmp, dst):
        X = v(x, 2)
        T = v(tmp, 2)
        return [
            "v_pk_mul_f32 %s, %s, %s" % (T, X, X),
            "v_pk_fma_f32 %s, %s, %s, %s" % (T, T, v(C1, 2), s(S_C0, 2)),
            "v_pk_mul_f32 %s, %s, %s" % (T, T, X),
            "v_exp_f32 %s, %s" % (v(tmp), v(tmp)),
            "v_exp_f32 %s, %s" % (v(tmp + 1), v(tmp + 1)),
            "v_pk_add_f32 %s, %s, 1.0 op_sel_hi:[1,0]" % (T, T),
            "v_rcp_f32 %s, %s" % (v(tmp), v(tmp)),
            "v_rcp_f32 %s, %s" % (v(tmp + 1), v(tmp + 1)),
            "v_pk_mul_f32 %s, %s, %s" % (T, T, X),
            "v_cvt_pk_bf16_f32 %s, %s, %s" % (v(dst), v(tmp), v(tmp + 1)),
        ]

    grp = 0
    SIDE0 = 5
    NSC = 4
    per = (len(SC) + NSC - 1) // NSC
    for t in range(4):
        for uu in range(3):
            base = acc(t, 2 * uu)
            outr = TMP + 8 + 4 * (grp % 4)
            ls = [gelu_pair(base + 2 * k, TMP + 2 * k + 24 * (grp & 1), outr + k) for k in range(4)]
            if grp == 0:
                ls += [SL[:9], SL[9:], P[:10], P[10:]]
                ls = ls[:4] + [SL[:9], SL[9:]] + [P[0::2], P[1::2]]
            if grp == SIDE0:
                em.i("s_waitcnt vmcnt(%d)" % SIDE0)
            if SIDE0 <= grp < SIDE0 + NSC:
                ch = SC[per * (grp - SIDE0):per * (grp - SIDE0 + 1)]
                ls += [ch[0::2], ch[1::2]]
            for x in interleave(ls):
                em.i(x)
            em.i("s_add_u32 %s, %s, 0x%x" % (s(S_T1 + (grp & 1)), s(S_T0), t * TILE_B + 1024 * uu))
            em.i("buffer_store_dwordx4 %s, %s, %s, %s offen%s" % (v(outr, 4), v(VT), s(SRD_WS, 4), s(S_T1 + (grp & 1)), WT))
            grp += 1
    stamp_end(em, VS, SRD_WS, S_WV, 0)
    em.i("s_endpgm")


def gen_k1(em):
    em.raw(".globl k1_kernel")
    em.raw(".p2align 8")
    em.raw(".type k1_kernel,@function")
    em.label("k1_kernel")
    em.fence()
    em.i("s_cmp_ge_u32 s2, 256")
    em.i("s_cbranch_scc1 L_k1_end")
    stamp_get(em, 0, True)
    stamp_get(em, 1)
    if PROF:
        em.i("s_mov_b32 %s, 0" % s(S_TI))
    em.i("s_load_dwordx4 s[4:7], s[0:1], 0")
    em.i("s_load_dwordx2 s[8:9], s[0:1], 16")
    em.i("s_load_dwordx4 s[12:15], s[0:1], 32")
    em.i("s_load_dwordx2 s[16:17], s[0:1], 48")
    em.i("s_load_dwordx2 s[18:19], s[0:1], 64")
    em.i("s_load_dwordx2 s[20:21], s[0:1], 88")
    em.i("v_lshrrev_b32 v1, 6, v0")
    em.i("v_and_b32 v0, 63, v0")
    em.i("v_readfirstlane_b32 %s, v1" % s(S_WV))
    em.i("s_and_b32 %s, s2, 1" % s(S_P))
    em.i("s_lshr_b32 %s, s2, 5" % s(S_B))
    em.i("s_bfe_u32 %s, s2, 0x20001" % s(S_CG))
    em.i("s_lshl_b32 %s, %s, 1" % (s(S_CG), s(S_CG)))
    em.i("s_bfe_u32 %s, s2, 0x10003" % s(S_T0))
    em.i("s_add_u32 %s, %s, %s" % (s(S_CG), s(S_CG), s(S_T0)))
    em.i("s_bitcmp1_b32 s2, 4")
    em.i("s_cbranch_scc1 L_h")
    em.i("s_cmp_eq_u32 %s, 1" % s(S_WV))
    em.i("s_cbranch_scc1 L_q1")
    em.i("s_cmp_eq_u32 %s, 2" % s(S_WV))
    em.i("s_cbranch_scc1 L_q2")
    em.i("s_cmp_eq_u32 %s, 3" % s(S_WV))
    em.i("s_cbranch_scc1 L_q3")
    gen_q(em, 0, 0)
    gen_q(em, 0, 1)
    gen_q(em, 1, 0)
    gen_q(em, 1, 1)
    gen_h(em)
    em.label("L_k1_end")
    em.i("s_endpgm")


K2_LDS = 4 * 3 * 5 * 1024


def gen_k2(em, depth=5):
    NB = depth + 1
    SW, SO, SB2 = 8, 12, 16
    S_W_, S_RB, S_C = 20, 21, 22
    S_AO, S_AH, S_WO, S_WH = 24, 25, 26, 27
    S_A, S_Wf = 28, 30
    T0, T1, T2 = 32, 33, 34
    VL, VT = 0, 1
    VA = 8
    VW, VW4 = 12, 13
    VG = 14
    GP = 16
    OP = 24
    B2 = 32
    accA = lambda t, j: 44 + (t * 5 + j) * 4
    accB = lambda t, j: 124 + (t * 5 + j) * 4
    RED = 204
    FR = lambda b, k: b * 36 + k * 4
    em.raw(".globl k2_kernel")
    em.raw(".p2align 8")
    em.raw(".type k2_kernel,@function")
    em.label("k2_kernel")
    em.fence()
    em.i("s_cmp_ge_u32 s2, 256")
    em.i("s_cbranch_scc1 L_k2_end")
    stamp_get(em, 0, True)
    stamp_get(em, 1)
    if PROF:
        em.i("s_mov_b32 %s, 0" % s(S_TI))
    em.i("s_load_dwordx2 s[4:5], s[0:1], 88")
    em.i("s_load_dwordx2 s[6:7], s[0:1], 72")
    em.i("s_load_dwordx2 s[36:37], s[0:1], 56")
    em.i("v_lshrrev_b32 v1, 6, v0")
    em.i("v_and_b32 v0, 63, v0")
    em.i("v_readfirstlane_b32 %s, v1" % s(S_W_))
    em.i("s_bfe_u32 %s, s2, 0x20001" % s(S_RB))
    em.i("s_lshl_b32 %s, %s, 3" % (s(S_RB), s(S_RB)))
    em.i("s_lshr_b32 %s, s2, 5" % s(T0))
    em.i("s_add_u32 %s, %s, %s" % (s(S_RB), s(S_RB), s(T0)))
    em.i("s_and_b32 %s, s2, 1" % s(S_C))
    em.i("s_lshl_b32 %s, %s, 2" % (s(S_C), s(S_C)))
    em.i("s_bfe_u32 %s, s2, 0x20003" % s(T0))
    em.i("s_add_u32 %s, %s, %s" % (s(S_C), s(S_C), s(T0)))
    em.i("v_lshlrev_b32 %s, 4, %s" % (v(VT), v(VL)))
    em.i("s_mul_i32 %s, %s, 0x%x" % (s(T0), s(S_RB), 4 * TILE_B))
    for t in range(4):
        em.i("s_add_u32 %s, %s, 0x%x" % (s(T1), s(T0), t * TILE_B))
        em.i("v_add_u32 %s, %s, %s" % (v(VA + t), s(T1), v(VT)))
    em.i("s_mul_i32 %s, %s, 5120" % (s(T0), s(S_C)))
    em.i("s_add_u32 %s, %s, 0x%x" % (s(T0), s(T0), WF_OFF))
    em.i("v_add_u32 %s, %s, %s" % (v(VW), s(T0), v(VT)))
    em.i("v_add_u32 %s, 0x1000, %s" % (v(VW4), v(VW)))
    em.i("s_mul_i32 %s, %s, 5120" % (s(S_AO), s(S_W_)))
    em.i("s_mul_i32 %s, %s, 12288" % (s(S_AH), s(S_W_)))
    em.i("s_add_u32 %s, %s, 20480" % (s(S_AH), s(S_AH)))
    em.i("s_mul_i32 %s, %s, 40" % (s(S_WO), s(S_AO)))
    em.i("s_mul_i32 %s, %s, 40" % (s(S_WH), s(S_AH)))
    em.i("v_and_b32 %s, 15, %s" % (v(VT + 1), v(VL)))
    em.i("v_lshlrev_b32 %s, 2, %s" % (v(VT + 2), v(VT + 1)))
    em.i("s_lshl_b32 %s, %s, 8" % (s(T2), s(S_RB)))
    em.i("s_add_u32 %s, %s, 0x%x" % (s(T2), s(T2), G_OFF))
    em.i("v_lshrrev_b32 %s, 4, %s" % (v(VT + 3), v(VL)))
    em.i("v_lshlrev_b32 %s, 3, %s" % (v(VT + 4), v(VT + 3)))
    em.i("s_mul_i32 %s, %s, 160" % (s(T1), s(S_C)))
    em.i("s_waitcnt lgkmcnt(0)")
    VS = 14
    stamp_put(em, VS, 0)
    stamp_put(em, VS, 1)
    stamp_get(em, 0)
    srd(em, SW, 4, WS_SIZE)
    srd(em, SO, 6, X_BYTES)
    srd(em, SB2, 36, 1280)

    def loads(ks):
        b = ks % NB
        L = []
        if ks < 5:
            L.append("s_add_u32 %s, %s, 0x%x" % (s(S_A + (ks & 1)), s(S_AO), 1024 * ks))
            L.append("s_add_u32 %s, %s, 0x%x" % (s(S_Wf + (ks & 1)), s(S_WO), 40960 * ks))
        else:
            L.append("s_add_u32 %s, %s, 0x%x" % (s(S_A + (ks & 1)), s(S_AH), 1024 * (ks - 5)))
            L.append("s_add_u32 %s, %s, 0x%x" % (s(S_Wf + (ks & 1)), s(S_WH), 40960 * (ks - 5)))
        order = [("a", 0), ("w", 0), ("a", 1), ("a", 2), ("a", 3), ("w", 1), ("w", 2), ("w", 3), ("w", 4)]
        for kd, n in order:
            if kd == "a":
                L.append("buffer_load_dwordx4 %s, %s, %s, %s offen" % (a(FR(b, n), 4), v(VA + n), s(SW, 4), s(S_A + (ks & 1))))
            elif n < 4:
                L.append("buffer_load_dwordx4 %s, %s, %s, %s offen offset:%d" % (a(FR(b, 4 + n), 4), v(VW), s(SW, 4), s(S_Wf + (ks & 1)), 1024 * n))
            else:
                L.append("buffer_load_dwordx4 %s, %s, %s, %s offen" % (a(FR(b, 8), 4), v(VW4), s(SW, 4), s(S_Wf + (ks & 1))))
        return L

    for x in loads(0):
        em.i(x)
    for t in range(4):
        em.i("buffer_load_dword %s, %s, %s, %s offen offset:%d" % (v(GP + 2 * t), v(VT + 2), s(SW, 4), s(T2), 64 * t))
    for j in range(5):
        em.i("buffer_load_dwordx2 %s, %s, %s, %s offen offset:%d" % (v(B2 + 2 * j, 2), v(VT + 4), s(SB2, 4), s(T1), 32 * j))
    for ks in range(1, depth):
        for x in loads(ks):
            em.i(x)
    NK = 17
    for ks in range(NK):
        b = ks % NB
        accf = accA if ks < 5 else accB
        first = ks in (0, 5)
        mf = []
        for j in range(5):
            for t in range(4):
                mf.append(mfma(v(accf(t, j), 4), a(FR(b, 4 + j), 4), a(FR(b, t), 4), "0" if first else None))
        nxt = loads(ks + depth) if ks + depth < NK else []
        young = 9 * (min(ks + depth - 1, NK - 1) - ks) + (9 if ks == 0 else 0)
        stamp_get(em, 1)
        em.i("s_waitcnt vmcnt(%d)" % min(63, young))
        stamp_put(em, VS, 0, True)
        stamp_put(em, VS, 1)
        stamp_get(em, 0)
        k = 0
        for m in mf:
            em.i(m)
            if k < len(nxt):
                em.i(nxt[k])
                k += 1
        while k < len(nxt):
            em.i(nxt[k])
            k += 1
    stamp_get(em, 1)
    stamp_put(em, VS, 0, True)
    stamp_put(em, VS, 1)
    for t in range(4):
        em.i("v_sub_f32 %s, 1.0, %s" % (v(OP + 2 * t), v(GP + 2 * t)))
        em.i("v_cvt_pk_bf16_f32 %s, %s, %s" % (v(OP + 2 * t), v(OP + 2 * t), v(OP + 2 * t)))
        em.i("v_lshlrev_b32 %s, 16, %s" % (v(OP + 2 * t), v(OP + 2 * t)))
    for t in range(4):
        for j in range(5):
            for h in range(2):
                A_ = v(accA(t, j) + 2 * h, 2)
                B_ = v(accB(t, j) + 2 * h, 2)
                em.i("v_pk_mul_f32 %s, %s, %s op_sel_hi:[1,0]" % (A_, A_, v(GP + 2 * t, 2)))
                em.i("v_pk_fma_f32 %s, %s, %s, %s op_sel_hi:[1,0,1]" % (A_, B_, v(OP + 2 * t, 2), A_))
    for w in range(4):
        if w < 3:
            em.i("s_cmp_lg_u32 %s, %d" % (s(S_W_), w))
            em.i("s_cbranch_scc1 L_k2_w%d" % (w + 1))
        for t in range(4):
            if t == w:
                continue
            sl = (w - t - 1) % 4
            for j in range(5):
                em.i("ds_write_b128 %s, %s offset:%d" % (v(VT), v(accA(t, j), 4), ((t * 3 + sl) * 5 + j) * 1024))
        stamp_get(em, 0)
        em.i("s_waitcnt lgkmcnt(0)")
        stamp_get(em, 1)
        em.i("s_barrier")
        stamp_get(em, 2)
        stamp_put(em, VS, 0, True)
        stamp_put(em, VS, 1)
        stamp_put(em, VS, 2)
        for sl in range(3):
            for j in range(5):
                em.i("ds_read_b128 %s, %s offset:%d" % (v(accB(sl, j), 4), v(VT), ((w * 3 + sl) * 5 + j) * 1024))
        for j in range(5):
            em.i("v_lshlrev_b32 %s, 16, %s" % (v(RED), v(B2 + 2 * j)))
            em.i("v_and_b32 %s, 0xffff0000, %s" % (v(RED + 1), v(B2 + 2 * j)))
            em.i("v_lshlrev_b32 %s, 16, %s" % (v(RED + 2), v(B2 + 2 * j + 1)))
            em.i("v_and_b32 %s, 0xffff0000, %s" % (v(RED + 3), v(B2 + 2 * j + 1)))
            for h in range(2):
                A_ = v(accA(w, j) + 2 * h, 2)
                em.i("v_pk_fma_f32 %s, %s, %s, %s op_sel_hi:[1,0,1]" % (A_, v(RED + 2 * h, 2), v(OP + 2 * w, 2), A_))
        em.i("s_lshl_b32 %s, %s, 2" % (s(T0), s(S_RB)))
        em.i("s_add_u32 %s, %s, %d" % (s(T0), s(T0), w))
        em.i("s_lshr_b32 %s, %s, 6" % (s(T2), s(T0)))
        em.i("s_and_b32 %s, %s, 63" % (s(T0), s(T0)))
        em.i("s_lshl_b32 %s, %s, 5" % (s(T0), s(T0)))
        em.i("s_add_u32 %s, %s, %s" % (s(T0), s(T0), s(T2)))
        em.i("s_mul_i32 %s, %s, 0x500" % (s(T0), s(T0)))
        em.i("s_add_u32 %s, %s, %s" % (s(T0), s(T0), s(T1)))
        em.i("v_mul_u32_u24 %s, 0xa00, %s" % (v(VT + 5), v(VT + 1)))
        em.i("v_add_u32 %s, %s, %s" % (v(VT + 5), v(VT + 5), v(VT + 4)))
        for sl in range(3):
            em.i("s_waitcnt lgkmcnt(%d)" % (5 * (2 - sl)))
            for j in range(5):
                for h in range(2):
                    A_ = v(accA(w, j) + 2 * h, 2)
                    em.i("v_pk_add_f32 %s, %s, %s" % (A_, A_, v(accB(sl, j) + 2 * h, 2)))
        for j in range(5):
            r = accA(w, j)
            em.i("v_cvt_pk_bf16_f32 %s, %s, %s" % (v(r), v(r), v(r + 1)))
            em.i("v_cvt_pk_bf16_f32 %s, %s, %s" % (v(r + 1), v(r + 2), v(r + 3)))
            em.i("buffer_store_dwordx2 %s, %s, %s, %s offen offset:%d%s" % (v(r, 2), v(VT + 5), s(SO, 4), s(T0), 32 * j, WT2))
        stamp_end(em, VS, SW, S_W_, 0x40000)
        em.i("s_endpgm")
        if w < 3:
            em.label("L_k2_w%d" % (w + 1))
            em.i("s_nop 1")
    em.label("L_k2_end")
    em.i("s_endpgm")
    return NB * 36


def desc(name, nfv, acc_off):
    return """.amdhsa_kernel %s
  .amdhsa_next_free_vgpr %d
  .amdhsa_next_free_sgpr 96
  .amdhsa_accum_offset %d
  .amdhsa_group_segment_fixed_size 0
  .amdhsa_kernarg_size 96
  .amdhsa_user_sgpr_count 2
  .amdhsa_user_sgpr_kernarg_segment_ptr 1
  .amdhsa_system_sgpr_workgroup_id_x 1
.end_amdhsa_kernel
""" % (name, nfv, acc_off)


def main(out, which="12"):
    em = Em()
    if "1" in which:
        em.raw("; @launch kernel=k1_kernel grid=(256,1,1) block=(256,1,1) lds=%d" % K1_LDS)
    if "2" in which:
        em.raw("; @launch kernel=k2_kernel grid=(256,1,1) block=(256,1,1) lds=%d" % K2_LDS)
    em.raw('.amdgcn_target "amdgcn-amd-amdhsa--gfx950"')
    em.raw(".text")
    if "1" in which:
        gen_k1(em)
    if "2" in which:
        na = gen_k2(em, K2DEPTH)
    em.raw('.section .rodata,"a"')
    if "1" in which:
        em.raw(".p2align 6")
        em.raw(desc("k1_kernel", 256 + 104, 256))
    if "2" in which:
        em.raw(".p2align 6")
        em.raw(desc("k2_kernel", 208 + na, 208))
    open(out, "w").write(em.text())
    print("wrote", out, "lines", len(em.lines), "nop states", em.nops)


if __name__ == "__main__":
    main(sys.argv[1], sys.argv[2] if len(sys.argv) > 2 else "12")
```

```python
import math
import struct
import sys

from em import Em, interleave


def f2u(x):
    return struct.unpack("<I", struct.pack("<f", x))[0]


import os
PROF = int(os.environ.get("PROF", "0"))
K2DEPTH = int(os.environ.get("K2DEPTH", "3"))
ROT = int(os.environ.get("ROT", "1"))
WT = os.environ.get("WT", "")
WT2 = os.environ.get("WT2", "")
EARLY = int(os.environ.get("EARLY", "1"))
TOUCH2 = int(os.environ.get("TOUCH2", "0"))
TG = int(os.environ.get("TG", "128"))
TL2 = int(os.environ.get("TL2", "3"))
TOUCHPOS2 = int(os.environ.get("TOUCHPOS2", "1"))
AFF = int(os.environ.get("AFF", "3"))
NKS = 68
ACT_OFF = 0
WF_OFF = 0x900000
G_OFF = 0xC00000
WS_SIZE = 0xE00000 if PROF else 0xC02000
PROF_OFF = 0xD00000
S_TM = 72
S_TI = 80
TILE_B = NKS * 1024

X_BYTES = 2048 * 640 * 2
WQKV_BYTES = 640 * 1920 * 2
W1_BYTES = 640 * 1536 * 2
WO_BYTES = 640 * 640 * 2
W2_BYTES = 1536 * 640 * 2

Q_SLOT = 49152
Q_XSZ = 18432
H_SLOT = 40960
H_XSZ = 16384
K1_LDS = 3 * Q_SLOT


def v(n, cnt=1):
    return "v%d" % n if cnt == 1 else "v[%d:%d]" % (n, n + cnt - 1)


def a(n, cnt=1):
    return "a%d" % n if cnt == 1 else "a[%d:%d]" % (n, n + cnt - 1)


def s(n, cnt=1):
    return "s%d" % n if cnt == 1 else "s[%d:%d]" % (n, n + cnt - 1)


def mfma(d, A, B, C=None):
    return "v_mfma_f32_16x16x32_bf16 %s, %s, %s, %s" % (d, A, B, d if C is None else C)


def stamp_get(em, r=0, real=False):
    if PROF:
        em.i("%s s[%d:%d]" % ("s_memrealtime" if real else "s_memtime", S_TM + 2 * r, S_TM + 2 * r + 1))


def stamp_put(em, vs, r=0, wait=False):
    if not PROF:
        return
    if wait:
        em.i("s_waitcnt lgkmcnt(0)")
    em.i("v_cmp_eq_u32 vcc, %s, v0" % s(S_TI))
    em.i("v_mov_b32 %s, %s" % (v(vs + 1), s(S_TM + 2 * r)))
    em.i("v_cndmask_b32 %s, %s, %s, vcc" % (v(vs), v(vs), v(vs + 1)))
    em.i("s_add_u32 %s, %s, 1" % (s(S_TI), s(S_TI)))


def stamp(em, vs, real=False):
    stamp_get(em, 0, real)
    stamp_put(em, vs, 0, True)


def stamp_end(em, vs, srdws, swave, koff):
    if not PROF:
        return
    stamp(em, vs)
    em.i("s_waitcnt vmcnt(0)")
    stamp(em, vs)
    stamp(em, vs, True)
    em.i("s_lshl_b32 %s, s2, 2" % s(S_TI))
    em.i("s_add_u32 %s, %s, %s" % (s(S_TI), s(S_TI), s(swave)))
    em.i("s_lshl_b32 %s, %s, 8" % (s(S_TI), s(S_TI)))
    em.i("s_add_u32 %s, %s, 0x%x" % (s(S_TI), s(S_TI), PROF_OFF + koff))
    em.i("v_lshlrev_b32 %s, 2, v0" % v(vs + 1))
    em.i("buffer_store_dword %s, %s, %s, %s offen" % (v(vs), v(vs + 1), s(srdws, 4), s(S_TI)))


def phase(em, mf, reads, dmas, extra=(), dma_start=1, dma_step=None):
    n = len(mf)
    if dmas:
        if dma_step is None:
            dma_step = max(1, (n - dma_start - 1) // len(dmas))
    dpos = {dma_start + k * dma_step: d for k, d in enumerate(dmas)} if dmas else {}
    assert all(p < n for p in dpos), (dpos.keys(), n)
    ri = 0
    ex = {}
    for p, ins in extra:
        ex.setdefault(p, []).append(ins)
    for k, m in enumerate(mf):
        if k in dpos:
            em.i(dpos[k][0])
        em.i(m)
        if k in dpos:
            em.i(dpos[k][1])
        if ri < len(reads):
            em.i(reads[ri])
            ri += 1
        for ins in ex.get(k, []):
            em.i(ins)
    while ri < len(reads):
        em.i(reads[ri])
        ri += 1


SRD_X, SRD_W, SRD_WS, SRD_T, SRD_T2 = 24, 28, 32, 36, 40
S_P, S_B, S_CG, S_WV = 44, 45, 46, 47
S_WOFF, S_WOFF2, S_XOFF, S_DM, S_RD, S_DELTA, S_CNT, S_STG = 48, 49, 50, 51, 52, 53, 54, 55
S_T0, S_T1, S_T2, S_T3, S_T4, S_T5 = 56, 57, 58, 59, 60, 61
S_C0 = 62
S_C1 = 64
S_UNIT = 66
S_EX = 68
S_RT = 70
BIGOFF = 0x7F000000


def srd(em, dst, base, nbytes, add=0):
    if add:
        em.i("s_add_u32 %s, %s, 0x%x" % (s(dst), s(base), add))
        em.i("s_addc_u32 %s, %s, 0" % (s(dst + 1), s(base + 1)))
    else:
        em.i("s_mov_b32 %s, %s" % (s(dst), s(base)))
        em.i("s_mov_b32 %s, %s" % (s(dst + 1), s(base + 1)))
    em.i("s_mov_b32 %s, 0x%x" % (s(dst + 2), nbytes))
    em.i("s_mov_b32 %s, 0x20000" % s(dst + 3))


def advance_dma(slot, wstep):
    L = []
    L.append("s_add_u32 %s, %s, 0x%x" % (s(S_WOFF), s(S_WOFF), wstep))
    L.append("s_add_u32 %s, %s, 1" % (s(S_STG), s(S_STG)))
    L.append("s_add_u32 %s, %s, 0x80" % (s(S_XOFF), s(S_XOFF)))
    if ROT:
        L.append("s_cmp_eq_u32 %s, 0x500" % s(S_XOFF))
        L.append("s_cselect_b32 %s, 0, %s" % (s(S_XOFF), s(S_XOFF)))
        L.append("s_cselect_b32 %s, 0, %s" % (s(S_WOFF), s(S_WOFF)))
    L.append("s_cmp_ge_u32 %s, 10" % s(S_STG))
    L.append("s_cselect_b32 %s, 0x%x, %s" % (s(S_XOFF), BIGOFF, s(S_XOFF)))
    if ROT:
        L.append("s_cselect_b32 %s, 0x%x, %s" % (s(S_WOFF), BIGOFF, s(S_WOFF)))
    L.append("s_add_u32 %s, %s, 0x%x" % (s(S_DM), s(S_DM), slot))
    L.append("s_cmp_eq_u32 %s, 0x%x" % (s(S_DM), 3 * slot))
    L.append("s_cselect_b32 %s, 0, %s" % (s(S_DM), s(S_DM)))
    return L


def rot_init(em, typ, wstep):
    if not ROT:
        em.i("s_mov_b32 %s, 0" % s(S_WOFF))
        em.i("s_mov_b32 %s, 0" % s(S_XOFF))
        return
    em.i("s_and_b32 %s, %s, 1" % (s(S_XOFF), s(S_CG)))
    em.i("s_mul_i32 %s, %s, 5" % (s(S_XOFF), s(S_XOFF)))
    em.i("s_add_u32 %s, %s, %s" % (s(S_XOFF), s(S_XOFF), s(S_B)))
    if typ:
        em.i("s_add_u32 %s, %s, 2" % (s(S_XOFF), s(S_XOFF)))
    em.i("s_sub_u32 %s, %s, 10" % (s(S_WOFF), s(S_XOFF)))
    em.i("s_cmp_ge_u32 %s, 10" % s(S_XOFF))
    em.i("s_cselect_b32 %s, %s, %s" % (s(S_XOFF), s(S_WOFF), s(S_XOFF)))
    em.i("s_mul_i32 %s, %s, 0x%x" % (s(S_WOFF), s(S_XOFF), wstep))
    em.i("s_lshl_b32 %s, %s, 7" % (s(S_XOFF), s(S_XOFF)))


def advance_rd(slot):
    L = []
    L.append("s_add_u32 %s, %s, 0x%x" % (s(S_RT), s(S_RD), slot))
    L.append("s_cmp_eq_u32 %s, 0x%x" % (s(S_RT), 3 * slot))
    L.append("s_cselect_b32 %s, 0, %s" % (s(S_RT), s(S_RT)))
    L.append("s_sub_u32 %s, %s, %s" % (s(S_DELTA), s(S_RT), s(S_RD)))
    L.append("s_mov_b32 %s, %s" % (s(S_RD), s(S_RT)))
    return L


def gen_q(em, rh, hp):
    w = 2 * rh + hp
    tag = "q%d" % w
    ha, hb = 2 * hp, 2 * hp + 1
    VL = 0
    VT = 1
    VWD = 8
    VXD = 12
    VXA0, VXA1, VWM, VWR = 18, 19, 20, 21
    ACC = 24
    accM = lambda t, c: ACC + (t * 6 + c) * 4
    accR = lambda n: ACC + 96 + n * 4
    accH = lambda n: ACC + 120 + n * 4
    NACC = 132
    EPI = 156
    FR = lambda st, k: st * 52 + k * 4
    wp = [range(0, 4), range(4, 8), range(8, 12), range(12, 15)][w]
    xi = [range(0, 4), range(4, 8), range(8, 12), range(12, 18)][w]
    em.label("L_%s" % tag)
    em.fence()
    em.i("v_lshrrev_b32 %s, 3, %s" % (v(VT), v(VL)))
    em.i("v_mul_u32_u24 %s, 0xa00, %s" % (v(VT), v(VT)))
    em.i("v_lshrrev_b32 %s, 4, %s" % (v(VT + 1), v(VL)))
    em.i("v_xor_b32 %s, %s, %s" % (v(VT + 1), v(VT + 1), v(VL)))
    em.i("v_and_b32 %s, 7, %s" % (v(VT + 1), v(VT + 1)))
    em.i("v_lshl_add_u32 %s, %s, 4, %s" % (v(VT + 2), v(VT + 1), v(VT)))
    em.i("v_xor_b32 %s, 64, %s" % (v(VT + 3), v(VT + 2)))
    em.i("s_lshl_b32 %s, %s, 8" % (s(S_T0), s(S_B)))
    em.i("s_add_u32 %s, %s, %s" % (s(S_T0), s(S_T0), s(S_P)))
    em.i("s_mul_i32 %s, %s, 0x500" % (s(S_T0), s(S_T0)))
    em.i("s_sub_u32 %s, %s, 0x%x" % (s(S_T1), s(S_T0), 32 * 1280))
    em.i("s_cmp_eq_u32 %s, 0" % s(S_B))
    em.i("s_cselect_b32 %s, %s, %s" % (s(S_T2), s(S_T0), s(S_T1)))
    for n, i in enumerate(xi):
        src = VT + 2 + (i & 1)
        if i < 2:
            em.i("s_add_u32 %s, %s, 0x%x" % (s(S_T3), s(S_T2), 20480))
        else:
            em.i("s_add_u32 %s, %s, 0x%x" % (s(S_T3), s(S_T1), 20480 * i))
        em.i("v_add_u32 %s, %s, %s" % (v(VXD + n), s(S_T3), v(src)))
    em.i("s_mul_i32 %s, %s, 160" % (s(S_T4), s(S_CG)))
    for n, i in enumerate(wp):
        d = VWD + n
        em.i("v_add_u32 %s, 0x%x, %s" % (v(VT), 64 * i, v(VL)))
        em.i("v_mul_u32_u24 %s, 0x889, %s" % (v(VT + 1), v(VT)))
        em.i("v_lshrrev_b32 %s, 16, %s" % (v(VT + 1), v(VT + 1)))
        em.i("v_mul_u32_u24 %s, 30, %s" % (v(VT + 4), v(VT + 1)))
        em.i("v_sub_u32 %s, %s, %s" % (v(VT), v(VT), v(VT + 4)))
        em.i("v_mul_u32_u24 %s, 0xcd, %s" % (v(VT + 4), v(VT)))
        em.i("v_lshrrev_b32 %s, 11, %s" % (v(VT + 4), v(VT + 4)))
        em.i("v_mul_u32_u24 %s, 0x460, %s" % (v(VT + 4), v(VT + 4)))
        em.i("v_lshl_add_u32 %s, %s, 4, %s" % (v(VT), v(VT), v(VT + 4)))
        em.i("v_and_b32 %s, 0x13, %s" % (v(VT + 4), v(VT + 1)))
        em.i("v_and_b32 %s, 4, %s" % (v(VT + 5), v(VT + 1)))
        em.i("v_lshl_or_b32 %s, %s, 1, %s" % (v(VT + 4), v(VT + 5), v(VT + 4)))
        em.i("v_and_b32 %s, 8, %s" % (v(VT + 5), v(VT + 1)))
        em.i("v_lshrrev_b32 %s, 1, %s" % (v(VT + 5), v(VT + 5)))
        em.i("v_or_b32 %s, %s, %s" % (v(VT + 4), v(VT + 4), v(VT + 5)))
        em.i("v_mul_u32_u24 %s, 0xf00, %s" % (v(VT + 4), v(VT + 4)))
        em.i("v_add3_u32 %s, %s, %s, %s" % (v(d), v(VT), v(VT + 4), s(S_T4)))

    dma = []
    xl = [("s_add_u32 m0, %s, 0x%x" % (s(S_DM), 1024 * i),
           "buffer_load_dwordx4 %s, %s, %s offen lds" % (v(VXD + n), s(SRD_X, 4), s(S_XOFF))) for n, i in enumerate(xi)]
    wl = []
    for n, i in enumerate(wp):
        wl.append(("s_add_u32 m0, %s, 0x%x" % (s(S_DM), Q_XSZ + 1024 * i),
                   "buffer_load_dwordx4 %s, %s, %s offen lds" % (v(VWD + n), s(SRD_W, 4), s(S_WOFF))))
    for n, i in enumerate(wp):
        wl.append(("s_add_u32 m0, %s, 0x%x" % (s(S_DM), Q_XSZ + 1024 * (i + 15)),
                   "buffer_load_dwordx4 %s, %s, %s offen lds" % (v(VWD + n), s(SRD_W, 4), s(S_WOFF2))))
    dma = xl + wl
    assert len(dma) == 12
    adv = advance_dma(Q_SLOT, 64 * 3840) + ["s_add_u32 %s, %s, 0x%x" % (s(S_WOFF2), s(S_WOFF), 32 * 3840)]

    rot_init(em, 0, 64 * 3840)
    em.i("s_add_u32 %s, %s, 0x%x" % (s(S_WOFF2), s(S_WOFF), 32 * 3840))
    em.i("s_mov_b32 %s, 0" % s(S_DM))
    em.i("s_mov_b32 %s, 0" % s(S_STG))
    em.i("s_mov_b32 %s, 0" % s(S_RD))
    em.i("s_waitcnt lgkmcnt(0)")
    VS = 22
    stamp_put(em, VS, 0)
    stamp_put(em, VS, 1)
    stamp_get(em, 0)
    srd(em, SRD_X, 4, X_BYTES)
    srd(em, SRD_W, 6, WQKV_BYTES)
    srd(em, SRD_WS, 20, WS_SIZE)
    for m, l in dma:
        em.i(m)
        em.i(l)
    for x in adv:
        em.i(x)
    F = []
    F.append("v_and_b32 %s, 15, %s" % (v(VT), v(VL)))
    F.append("v_lshrrev_b32 %s, 1, %s" % (v(VT + 1), v(VT)))
    F.append("v_lshrrev_b32 %s, 4, %s" % (v(VT + 2), v(VL)))
    F.append("v_xor_b32 %s, %s, %s" % (v(VT + 1), v(VT + 1), v(VT + 2)))
    F.append("v_lshlrev_b32 %s, 4, %s" % (v(VT + 1), v(VT + 1)))
    F.append("v_lshl_add_u32 %s, %s, 7, %s" % (v(VXA0), v(VT), v(VT + 1)))
    F.append("v_xor_b32 %s, 64, %s" % (v(VXA1), v(VXA0)))
    F.append("v_lshrrev_b32 %s, 5, %s" % (v(VT), v(VL)))
    F.append("v_lshlrev_b32 %s, 4, %s" % (v(VT), v(VT)))
    F.append("v_bfe_u32 %s, %s, 4, 1" % (v(VT + 1), v(VL)))
    F.append("v_lshl_add_u32 %s, %s, 2, %s" % (v(VT), v(VT + 1), v(VT)))
    F.append("v_bfe_u32 %s, %s, 2, 2" % (v(VT + 1), v(VL)))
    F.append("v_add_u32 %s, %s, %s" % (v(VT), v(VT), v(VT + 1)))
    F.append("v_mul_u32_u24 %s, 0x1e0, %s" % (v(VT), v(VT)))
    F.append("v_and_b32 %s, 3, %s" % (v(VT + 1), v(VL)))
    F.append("v_lshl_add_u32 %s, %s, 3, %s" % (v(VWM), v(VT + 1), v(VT)))
    F.append("v_mul_u32_u24 %s, 40, %s" % (v(VT + 1), v(VT + 1)))
    F.append("v_add3_u32 %s, %s, %s, 32" % (v(VWR), v(VT), v(VT + 1)))
    for r in range(ACC, ACC + NACC, 2):
        F.append("v_mov_b64 %s, 0" % v(r, 2))
    per = (len(F) + 11) // 12
    for n, (m, l) in enumerate(dma):
        em.i(m)
        em.i(l)
        for x in F[per * n:per * (n + 1)]:
            em.i(x)
    for x in adv:
        em.i(x)
    if not EARLY:
        for m, l in dma[:6]:
            em.i(m)
            em.i(l)

    def reads(st, ks):
        L = []
        xa = VXA1 if ks else VXA0
        R = []
        for t in range(4):
            R.append("ds_read_b128 %s, %s offset:%d" % (a(FR(st, t), 4), v(xa), (1 + 4 * rh + t) * 2048))
        R.append("ds_read_b128 %s, %s offset:0" % (a(FR(st, 4), 4), v(xa)))
        Wl = []
        cols = [(0, ha), (0, hb), (1, ha), (1, hb), (2, ha), (2, hb)]
        for c, (P, hd) in enumerate(cols):
            for h in range(2):
                Wl.append("ds_read_b64_tr_b16 %s, %s offset:%d" % (
                    a(FR(st, 5 + c) + 2 * h, 2), v(VWM), Q_XSZ + (32 * ks + 8 * h) * 480 + 160 * P + 40 * hd))
        for c, P in enumerate([0 if hp == 0 else 2, 1]):
            for h in range(2):
                Wl.append("ds_read_b64_tr_b16 %s, %s offset:%d" % (
                    a(FR(st, 11 + c) + 2 * h, 2), v(VWR), Q_XSZ + (32 * ks + 8 * h) * 480 + 160 * P))
        return R + Wl

    krt = (0, 1) if hp == 0 else (2, 3)

    def mfmas(st):
        X = lambda t: a(FR(st, t), 4)
        XH = a(FR(st, 4), 4)
        W = lambda c: a(FR(st, 5 + c), 4)
        R0, R1 = a(FR(st, 11), 4), a(FR(st, 12), 4)
        L = []
        for t in range(4):
            for c in range(4):
                L.append(mfma(v(accM(t, c), 4), W(c), X(t)))
            for c in (4, 5):
                L.append(mfma(v(accM(t, c), 4), X(t), W(c)))
            if hp == 0:
                L.append(mfma(v(accR(t), 4), R0, X(t)))
            else:
                L.append(mfma(v(accR(t), 4), X(t), R0))
        for n, t in enumerate(krt):
            L.append(mfma(v(accR(4 + n), 4), R1, X(t)))
        if rh == 0:
            L.append(mfma(v(accH(0), 4), W(2), XH))
            L.append(mfma(v(accH(1), 4), W(3), XH))
            if hp == 0:
                L.append(mfma(v(accH(2), 4), R1, XH))
            else:
                L.append(mfma(v(accH(2), 4), XH, R0))
        else:
            L.append(mfma(v(accH(0), 4), XH, W(4)))
            L.append(mfma(v(accH(1), 4), XH, W(5)))
        return L

    stamp_get(em, 3)
    em.i("s_waitcnt vmcnt(%d)" % (12 if EARLY else 18))
    stamp_get(em, 1)
    em.i("s_barrier")
    stamp_get(em, 2)
    stamp_put(em, VS, 0, True)
    stamp_put(em, VS, 3)
    for r in reads(0, 0):
        em.i(r)
    if EARLY:
        for m, l in dma[:6]:
            em.i(m)
            em.i(l)
    em.i("s_mov_b32 %s, 10" % s(S_CNT))
    em.label("L_%s_loop" % tag)
    top = em.mark()
    em.i("s_waitcnt lgkmcnt(0)")
    stamp_get(em, 0)
    stamp_put(em, VS, 1)
    stamp_put(em, VS, 2)
    ex = [(24 + k // 3, x) for k, x in enumerate(adv)]
    ex += [(22, x) for x in advance_rd(Q_SLOT)]
    ex.append((23, "v_add_u32 %s, %s, %s" % (v(VXA0), s(S_DELTA), v(VXA0))))
    ex.append((29, "v_add_u32 %s, %s, %s" % (v(VXA1), s(S_DELTA), v(VXA1))))
    ex.append((30, "v_add_u32 %s, %s, %s" % (v(VWM), s(S_DELTA), v(VWM))))
    ex.append((30, "v_add_u32 %s, %s, %s" % (v(VWR), s(S_DELTA), v(VWR))))
    phase(em, mfmas(0), reads(1, 1), dma[6:], extra=ex, dma_start=1, dma_step=4)
    stamp_get(em, 3)
    em.i("s_waitcnt vmcnt(12) lgkmcnt(0)")
    stamp_get(em, 1)
    em.i("s_barrier")
    stamp_get(em, 2)
    stamp_put(em, VS, 0)
    stamp_put(em, VS, 3)
    phase(em, mfmas(1), reads(0, 0), dma[:6], extra=[(26, "s_sub_u32 %s, %s, 1" % (s(S_CNT), s(S_CNT))),
                                                    (27, "s_cmp_lg_u32 %s, 0" % s(S_CNT))], dma_start=1, dma_step=4)
    em.i("s_cbranch_scc1 L_%s_loop" % tag)
    em.check_backedge(top)
    stamp_get(em, 0)
    em.i("s_waitcnt vmcnt(0) lgkmcnt(0)")
    stamp_put(em, VS, 1)
    stamp_put(em, VS, 2)
    stamp_put(em, VS, 0)
    stamp_get(em, 1)
    em.i("s_barrier")
    stamp_get(em, 2)
    Rs = lambda ty, tl: (ty * 9 + tl) * 512
    PMs = lambda wh, kd, hd: (27 + wh * 8 + kd * 4 + hd) * 512
    VE = EPI
    VHa, VHb, VRr = EPI + 2, EPI + 12, EPI + 22
    KP = (EPI + 32, EPI + 36)
    MC, MP, MPF = EPI + 40, EPI + 44, EPI + 48
    ONES = EPI + 52
    VMA, VMB = EPI + 56, EPI + 57
    QR = EPI + 58
    em.i("v_lshlrev_b32 %s, 3, %s" % (v(VE), v(VL)))

    def cvt2(dst, src):
        return ["v_cvt_pk_bf16_f32 %s, %s, %s" % (v(dst), v(src), v(src + 1)),
                "v_cvt_pk_bf16_f32 %s, %s, %s" % (v(dst + 1), v(src + 2), v(src + 3))]

    wr = []
    for t in range(4):
        wr.append((accR(t), Rs(0 if hp == 0 else 2, 1 + 4 * rh + t)))
    for n, t in enumerate(krt):
        wr.append((accR(4 + n), Rs(1, 1 + 4 * rh + t)))
    if rh == 0:
        wr.append((accH(0), PMs(0, 0, ha)))
        wr.append((accH(1), PMs(0, 0, hb)))
        wr.append((accH(2), Rs(1 if hp == 0 else 2, 0)))
    else:
        wr.append((accH(0), PMs(0, 1, ha)))
        wr.append((accH(1), PMs(0, 1, hb)))
    for r, off in wr:
        for x in cvt2(r, r):
            em.i(x)
        em.i("ds_write_b64 %s, %s offset:%d" % (v(VE), v(r, 2), off))
    for t in (3, 0, 1, 2):
        for e, c in ((0, 2), (1, 3)):
            for x in cvt2(accM(t, c), accM(t, c)):
                em.i(x)
            if t == 3 and rh == 0:
                em.i("ds_write_b64 %s, %s offset:%d" % (v(VE), v(accM(t, c), 2), PMs(1, 0, (ha, hb)[e])))
        for e, c in ((0, 4), (1, 5)):
            dst = (VHa, VHb)[e] + 2 + 2 * t
            for x in cvt2(dst, accM(t, c)):
                em.i(x)
            if t == 3 and rh == 0:
                em.i("ds_write_b64 %s, %s offset:%d" % (v(VE), v(dst, 2), PMs(1, 1, (ha, hb)[e])))
        if t == 3:
            em.i("s_waitcnt lgkmcnt(0)")
            stamp_put(em, VS, 1)
            stamp_put(em, VS, 2)
            stamp_get(em, 1)
            em.i("s_barrier")
            stamp_get(em, 2)
            for tt in range(4):
                em.i("ds_read_b64 %s, %s offset:%d" % (v(QR + 2 * tt, 2), v(VE), Rs(0, 1 + 4 * rh + tt)))
            for e in range(2):
                em.i("ds_read_b64 %s, %s offset:%d" % (v(KP[e], 2), v(VE), PMs(rh, 0, (ha, hb)[e])))
                em.i("ds_read_b64 %s, %s offset:%d" % (v(KP[e] + 2, 2), v(VE), Rs(1, 4 * rh)))
                em.i("ds_read_b64 %s, %s offset:%d" % (v((VHa, VHb)[e], 2), v(VE), PMs(rh, 1, (ha, hb)[e])))
            for tt in range(5):
                em.i("ds_read_b64 %s, %s offset:%d" % (v(VRr + 2 * tt, 2), v(VE), Rs(2, 4 * rh + tt)))
            em.i("ds_read_b64 %s, %s offset:%d" % (v(accM(3, 2) + 2, 2), v(VE), Rs(1, 4 + 4 * rh)))
            em.i("s_waitcnt lgkmcnt(8)")
            em.i("ds_read_b64 %s, %s offset:%d" % (v(accM(3, 3) + 2, 2), v(VE), Rs(1, 4 + 4 * rh)))
        else:
            em.i("ds_read_b64 %s, %s offset:%d" % (v(accM(t, 2) + 2, 2), v(VE), Rs(1, 1 + 4 * rh + t)))
            em.i("ds_read_b64 %s, %s offset:%d" % (v(accM(t, 3) + 2, 2), v(VE), Rs(1, 1 + 4 * rh + t)))
    for t in range(4):
        for c in (0, 1):
            for x in cvt2(accM(t, c), accM(t, c)):
                em.i(x)
    NEG = f2u(-1.0e30)
    em.i("v_and_b32 %s, 15, %s" % (v(VT), v(VL)))
    em.i("v_lshrrev_b32 %s, 4, %s" % (v(VT + 1), v(VL)))
    em.i("v_lshlrev_b32 %s, 2, %s" % (v(VT + 2), v(VT + 1)))
    em.i("v_sub_u32 %s, %s, %s" % (v(VT + 2), v(VT), v(VT + 2)))
    em.i("v_mov_b32 %s, 0x%x" % (v(VT + 3), NEG))
    for r in range(4):
        em.i("v_subrev_u32 %s, %d, %s" % (v(VT + 4), r, v(VT + 2)))
        em.i("v_cmp_gt_u32 vcc, 8, %s" % v(VT + 4))
        em.i("v_cndmask_b32 %s, %s, 0, vcc" % (v(MC + r), v(VT + 3)))
        em.i("v_cmp_ge_i32 vcc, -9, %s" % v(VT + 4))
        em.i("v_cndmask_b32 %s, %s, 0, vcc" % (v(MP + r), v(VT + 3)))
    if rh == 0:
        em.i("s_cmp_eq_u32 %s, 0" % s(S_B))
        em.i("s_cselect_b64 %s, -1, 0" % s(S_EX, 2))
        for r in range(4):
            em.i("v_cndmask_b32 %s, %s, %s, %s" % (v(MPF + r), v(MP + r), v(VT + 3), s(S_EX, 2)))
    for r in range(4):
        em.i("v_mov_b32 %s, 0x3f803f80" % v(ONES + r))
    em.i("v_cmp_eq_u32 vcc, %d, %s" % (ha, v(VT + 1)))
    em.i("v_cndmask_b32 %s, 0, -1, vcc" % v(VMA))
    em.i("v_cmp_eq_u32 %s, %d, %s" % (s(S_EX, 2), hb, v(VT + 1)))
    em.i("v_cndmask_b32 %s, 0, -1, %s" % (v(VMB), s(S_EX, 2)))
    em.i("s_mov_b32 %s, 0x%x" % (s(S_C0), f2u(20.0 ** -0.5 * math.log2(math.e))))
    em.i("s_mov_b32 %s, 0x%x" % (s(S_C0 + 1), f2u(20.0 ** -0.5 * math.log2(math.e))))
    em.i("s_waitcnt lgkmcnt(0)")
    stamp_put(em, VS, 1)
    stamp_put(em, VS, 2)
    stamp(em, VS)
    for t in range(4):
        for e in range(2):
            for d in range(2):
                em.i("v_and_b32 %s, %s, %s" % (v(accM(t, e) + 2 + d), v((VMA, VMB)[e]), v(QR + 2 * t + d)))
    em.i("s_lshl_b32 %s, %s, 6" % (s(S_T0), s(S_P)))
    em.i("s_lshl_b32 %s, %s, 3" % (s(S_T1), s(S_B)))
    em.i("s_add_u32 %s, %s, %s" % (s(S_T0), s(S_T0), s(S_T1)))
    em.i("s_add_u32 %s, %s, %d" % (s(S_T0), s(S_T0), 4 * rh))
    em.i("s_mul_i32 %s, %s, 0x%x" % (s(S_T0), s(S_T0), TILE_B))
    em.i("s_lshl_b32 %s, %s, 11" % (s(S_T1), s(S_CG)))
    em.i("s_add_u32 %s, %s, %s" % (s(S_T1), s(S_T1), s(S_T0)))
    em.i("s_add_u32 %s, %s, %d" % (s(S_T1), s(S_T1), 1024 * hp))
    em.i("s_lshr_b32 %s, %s, 1" % (s(S_T2), s(S_CG)))
    em.i("s_lshl_b32 %s, %s, 10" % (s(S_T2), s(S_T2)))
    em.i("s_add_u32 %s, %s, %s" % (s(S_T2), s(S_T2), s(S_T0)))
    em.i("s_and_b32 %s, %s, 1" % (s(S_T3), s(S_CG)))
    em.i("s_lshl_b32 %s, %s, 3" % (s(S_T3), s(S_T3)))
    em.i("s_add_u32 %s, %s, %s" % (s(S_T2), s(S_T2), s(S_T3)))
    em.i("s_add_u32 %s, %s, %d" % (s(S_T2), s(S_T2), 16 * 1024))
    em.i("v_lshlrev_b32 %s, 4, %s" % (v(VE + 1), v(VL)))
    VST = VE + 1

    pool = [accM(0, 4), accM(1, 4), accM(2, 4), accM(3, 4), 120, 128, 136, 144, 224, 232, 240, 248]

    def unit(t, e, regs):
        S, A_, B_ = regs
        M, M2, SUM = A_, A_ + 2, A_ + 4
        O, OR = B_, B_ + 4
        Q = v(accM(t, e), 4)
        Kc = v(accM(t, 2 + e), 4)
        Kp = v(accM(t - 1, 2 + e), 4) if t > 0 else v(KP[e], 4)
        mp = MPF if (t == 0 and rh == 0) else MP
        VH = (VHa, VHb)[e]
        L = []
        L.append(mfma(v(S, 4), Kp, Q, v(mp, 4)))
        L.append(mfma(v(S + 4, 4), Kc, Q, v(MC, 4)))
        L.append("v_max3_f32 %s, %s, %s, %s" % (v(M), v(S), v(S + 1), v(S + 2)))
        L.append("v_max3_f32 %s, %s, %s, %s" % (v(M2), v(S + 3), v(S + 4), v(S + 5)))
        L.append("v_max3_f32 %s, %s, %s, %s" % (v(M), v(M), v(S + 6), v(S + 7)))
        L.append("v_max_f32 %s, %s, %s" % (v(M), v(M), v(M2)))
        L.append("v_mov_b32 %s, %s" % (v(M2), v(M)))
        L.append("v_permlane16_swap_b32 %s, %s" % (v(M), v(M2)))
        L.append("v_max_f32 %s, %s, %s" % (v(M), v(M), v(M2)))
        L.append("v_mov_b32 %s, %s" % (v(M2), v(M)))
        L.append("v_permlane32_swap_b32 %s, %s" % (v(M), v(M2)))
        L.append("v_max_f32 %s, %s, %s" % (v(M), v(M), v(M2)))
        L.append("v_mul_f32 %s, %s, %s" % (v(M), s(S_C0), v(M)))
        for k in range(0, 8, 2):
            L.append("v_pk_fma_f32 %s, %s, %s, %s op_sel_hi:[1,0,0] neg_lo:[0,0,1] neg_hi:[0,0,1]" % (
                v(S + k, 2), v(S + k, 2), s(S_C0, 2), v(M, 2)))
        for k in range(8):
            L.append("v_exp_f32 %s, %s" % (v(S + k), v(S + k)))
        for k in range(4):
            L.append("v_cvt_pk_bf16_f32 %s, %s, %s" % (v(S + k), v(S + 2 * k), v(S + 2 * k + 1)))
        P = v(S, 4)
        L.append(mfma(v(SUM, 4), v(ONES, 4), P, "0"))
        L.append(mfma(v(O, 4), v(VH + 2 * t, 4), P, "0"))
        L.append(mfma(v(OR, 4), v(VRr + 2 * t, 4), P, "0"))
        L.append("v_rcp_f32 %s, %s" % (v(M), v(SUM)))
        L.append("v_pk_mul_f32 %s, %s, %s op_sel_hi:[1,0]" % (v(O, 2), v(O, 2), v(M, 2)))
        L.append("v_pk_mul_f32 %s, %s, %s op_sel_hi:[1,0]" % (v(O + 2, 2), v(O + 2, 2), v(M, 2)))
        L.append("v_pk_mul_f32 %s, %s, %s op_sel_hi:[1,0]" % (v(OR, 2), v(OR, 2), v(M, 2)))
        L.append("v_pk_mul_f32 %s, %s, %s op_sel_hi:[1,0]" % (v(OR + 2, 2), v(OR + 2, 2), v(M, 2)))
        dst = accM(t, 0) + 2 * e
        L.append("v_cvt_pk_bf16_f32 %s, %s, %s" % (v(dst), v(O), v(O + 1)))
        L.append("v_cvt_pk_bf16_f32 %s, %s, %s" % (v(dst + 1), v(O + 2), v(O + 3)))
        L.append("v_cvt_pk_bf16_f32 %s, %s, %s" % (v(OR), v(OR), v(OR + 1)))
        L.append("v_cvt_pk_bf16_f32 %s, %s, %s" % (v(OR + 1), v(OR + 2), v(OR + 3)))
        return L

    for half in range(2):
        ul = []
        us = []
        for n, (t, e) in enumerate([(2 * half, 0), (2 * half, 1), (2 * half + 1, 0), (2 * half + 1, 1)]):
            regs = (pool[n], pool[4 + n], pool[8 + n])
            us.append((t, e, regs))
            ul.append(unit(t, e, regs))
        for x in interleave(ul):
            em.i(x)
        for n in (0, 2):
            t = us[n][0]
            ORa = us[n][2][2] + 4
            ORb = us[n + 1][2][2] + 4
            em.i("v_cndmask_b32 %s, %s, %s, %s" % (v(ORa), v(ORa), v(ORb), s(S_EX, 2)))
            em.i("v_cndmask_b32 %s, %s, %s, %s" % (v(ORa + 1), v(ORa + 1), v(ORb + 1), s(S_EX, 2)))
            em.i("s_add_u32 %s, %s, 0x%x" % (s(S_T3), s(S_T1), t * TILE_B))
            em.i("buffer_store_dwordx4 %s, %s, %s, %s offen%s" % (v(accM(t, 0), 4), v(VST), s(SRD_WS, 4), s(S_T3), WT))
            em.i("s_add_u32 %s, %s, 0x%x" % (s(S_T4), s(S_T2), t * TILE_B))
            em.i("s_mov_b32 %s, 0" % ("exec_hi" if hp == 0 else "exec_lo"))
            em.i("buffer_store_dwordx2 %s, %s, %s, %s offen%s" % (v(ORa, 2), v(VST), s(SRD_WS, 4), s(S_T4), WT))
            em.i("s_mov_b64 exec, -1")
    stamp_end(em, VS, SRD_WS, S_WV, 0)
    em.i("s_endpgm")


def gen_h(em):
    VL, VT = 0, 1
    VWD, VXD = 8, 14
    VXA0, VXA1 = 18, 19
    VWA = 20
    ACC = 24
    acc = lambda t, u: ACC + (t * 6 + u) * 4
    RIN = 120
    ROUT = 152
    GX = 152
    VG, VRS, VGX, VGW, VRL = 192, 193, 194, 195, 196
    VS = 198
    BIAS = 200
    TMP = 200
    S_R0, S_R1 = 82, 83
    FR = lambda st, k: st * 40 + k * 4
    em.label("L_h")
    em.fence()
    em.i("s_lshr_b32 %s, %s, 1" % (s(S_T5), s(S_WV)))
    em.i("v_lshrrev_b32 %s, 3, %s" % (v(VT), v(VL)))
    em.i("v_mul_u32_u24 %s, 0xa00, %s" % (v(VT), v(VT)))
    em.i("v_lshrrev_b32 %s, 4, %s" % (v(VT + 1), v(VL)))
    em.i("v_xor_b32 %s, %s, %s" % (v(VT + 1), v(VT + 1), v(VL)))
    em.i("v_and_b32 %s, 7, %s" % (v(VT + 1), v(VT + 1)))
    em.i("v_lshl_add_u32 %s, %s, 4, %s" % (v(VT + 2), v(VT + 1), v(VT)))
    em.i("v_xor_b32 %s, 64, %s" % (v(VT + 3), v(VT + 2)))
    em.i("s_lshl_b32 %s, %s, 8" % (s(S_T0), s(S_B)))
    em.i("s_add_u32 %s, %s, %s" % (s(S_T0), s(S_T0), s(S_P)))
    em.i("s_lshl_b32 %s, %s, 6" % (s(S_T1), s(S_WV)))
    em.i("s_add_u32 %s, %s, %s" % (s(S_T1), s(S_T1), s(S_T0)))
    em.i("s_mul_i32 %s, %s, 0x500" % (s(S_T1), s(S_T1)))
    for n in range(4):
        em.i("s_add_u32 %s, %s, 0x%x" % (s(S_T3), s(S_T1), 20480 * n))
        em.i("v_add_u32 %s, %s, %s" % (v(VXD + n), s(S_T3), v(VT + 2 + (n & 1))))
    em.i("s_mul_i32 %s, %s, 384" % (s(S_T4), s(S_CG)))
    em.i("s_mul_i32 %s, %s, 0x%x" % (s(S_T3), s(S_WV), 16 * 3072))
    em.i("s_add_u32 %s, %s, %s" % (s(S_T4), s(S_T4), s(S_T3)))
    for n in range(6):
        d = VWD + n
        em.i("v_add_u32 %s, 0x%x, %s" % (v(VT), 64 * n, v(VL)))
        em.i("v_mul_u32_u24 %s, 0xaab, %s" % (v(VT + 1), v(VT)))
        em.i("v_lshrrev_b32 %s, 16, %s" % (v(VT + 1), v(VT + 1)))
        em.i("v_mul_u32_u24 %s, 24, %s" % (v(VT + 4), v(VT + 1)))
        em.i("v_sub_u32 %s, %s, %s" % (v(VT), v(VT), v(VT + 4)))
        em.i("v_and_b32 %s, 2, %s" % (v(VT + 4), v(VT + 1)))
        em.i("v_lshrrev_b32 %s, 1, %s" % (v(VT + 5), v(VT + 1)))
        em.i("v_and_or_b32 %s, %s, 4, %s" % (v(VT + 4), v(VT + 5), v(VT + 4)))
        em.i("v_xor_b32 %s, %s, %s" % (v(VT), v(VT), v(VT + 4)))
        em.i("v_mul_u32_u24 %s, 0xc00, %s" % (v(VT + 1), v(VT + 1)))
        em.i("v_lshl_add_u32 %s, %s, 4, %s" % (v(VT), v(VT), v(VT + 1)))
        em.i("v_add_u32 %s, %s, %s" % (v(d), s(S_T4), v(VT)))
    em.i("v_and_b32 %s, 15, %s" % (v(VT), v(VL)))
    em.i("v_lshrrev_b32 %s, 4, %s" % (v(VT + 1), v(VL)))
    em.i("s_and_b32 %s, %s, 1" % (s(S_T2), s(S_WV)))
    em.i("s_mul_i32 %s, %s, 192" % (s(S_T3), s(S_T2)))
    em.i("s_mul_i32 %s, %s, 384" % (s(S_T4), s(S_CG)))
    em.i("s_add_u32 %s, %s, %s" % (s(S_T3), s(S_T3), s(S_T4)))
    em.i("v_lshlrev_b32 %s, 3, %s" % (v(VT + 4), v(VT + 1)))

    dma = []
    for n in range(4):
        dma.append(("s_add_u32 m0, %s, 0x%x" % (s(S_C1), 1024 * n),
                    "buffer_load_dwordx4 %s, %s, %s offen lds" % (v(VXD + n), s(SRD_X, 4), s(S_XOFF))))
    for n in range(6):
        dma.append(("s_add_u32 m0, %s, 0x%x" % (s(S_C1 + 1), H_XSZ + 1024 * n),
                    "buffer_load_dwordx4 %s, %s, %s offen lds" % (v(VWD + n), s(SRD_W, 4), s(S_WOFF))))
    adv = advance_dma(H_SLOT, 64 * 3072) + [
        "s_add_u32 %s, %s, %s" % (s(S_C1), s(S_DM), s(S_WOFF2)),
        "s_add_u32 %s, %s, %s" % (s(S_C1 + 1), s(S_DM), s(S_EX))]
    em.i("s_lshl_b32 %s, %s, 12" % (s(S_WOFF2), s(S_WV)))
    em.i("s_mul_i32 %s, %s, 6144" % (s(S_EX), s(S_WV)))
    em.i("s_mov_b32 %s, %s" % (s(S_C1), s(S_WOFF2)))
    em.i("s_mov_b32 %s, %s" % (s(S_C1 + 1), s(S_EX)))
    rot_init(em, 1, 64 * 3072)
    em.i("s_mov_b32 %s, 0" % s(S_DM))
    em.i("s_mov_b32 %s, 0" % s(S_STG))
    em.i("s_mov_b32 %s, 0" % s(S_RD))
    em.i("s_waitcnt lgkmcnt(0)")
    stamp_put(em, VS, 0)
    stamp_put(em, VS, 1)
    stamp_get(em, 0)
    srd(em, SRD_X, 4, X_BYTES)
    srd(em, SRD_W, 12, W1_BYTES)
    srd(em, SRD_T2, 14, 3072)
    for u in range(6):
        em.i("buffer_load_dwordx2 %s, %s, %s, %s offen offset:%d" % (v(BIAS + 2 * u, 2), v(VT + 4), s(SRD_T2, 4), s(S_T3), 32 * u))
    for m, l in dma:
        em.i(m)
        em.i(l)
    for x in adv:
        em.i(x)
    for m, l in dma[:5]:
        em.i(m)
        em.i(l)
    srd(em, SRD_WS, 20, WS_SIZE)
    srd(em, SRD_T2, 18, 1280)
    em.i("v_lshrrev_b32 %s, 1, %s" % (v(VT + 2), v(VT)))
    em.i("v_xor_b32 %s, %s, %s" % (v(VT + 2), v(VT + 2), v(VT + 1)))
    em.i("v_lshlrev_b32 %s, 4, %s" % (v(VT + 2), v(VT + 2)))
    em.i("v_lshl_add_u32 %s, %s, 7, %s" % (v(VT + 2), v(VT), v(VT + 2)))
    em.i("s_lshl_b32 %s, %s, 13" % (s(S_T1), s(S_T5)))
    em.i("v_add_u32 %s, %s, %s" % (v(VXA0), s(S_T1), v(VT + 2)))
    em.i("v_xor_b32 %s, 64, %s" % (v(VXA1), v(VXA0)))
    em.i("v_bfe_u32 %s, %s, 2, 2" % (v(VT + 2), v(VL)))
    em.i("v_lshl_add_u32 %s, %s, 3, %s" % (v(VT + 3), v(VT + 1), v(VT + 2)))
    em.i("v_mul_u32_u24 %s, 0x180, %s" % (v(VT + 3), v(VT + 3)))
    em.i("v_and_b32 %s, 3, %s" % (v(VT + 4), v(VL)))
    em.i("v_lshl_add_u32 %s, %s, 3, %s" % (v(VT + 3), v(VT + 4), v(VT + 3)))
    em.i("v_lshrrev_b32 %s, 1, %s" % (v(VT + 2), v(VT + 2)))
    em.i("v_and_b32 %s, 1, %s" % (v(VT + 4), v(VT + 1)))
    em.i("v_lshl_or_b32 %s, %s, 1, %s" % (v(VT + 2), v(VT + 4), v(VT + 2)))
    em.i("s_mul_i32 %s, %s, 6" % (s(S_T2), s(S_T2)))
    for u in range(4):
        em.i("s_add_u32 %s, %s, %d" % (s(S_T3), s(S_T2), u))
        em.i("v_xor_b32 %s, %s, %s" % (v(VT + 4), s(S_T3), v(VT + 2)))
        em.i("v_lshl_add_u32 %s, %s, 5, %s" % (v(VWA + u), v(VT + 4), v(VT + 3)))
    em.i("v_lshlrev_b32 %s, 4, %s" % (v(VGW), v(VT)))
    em.i("s_lshl_b32 %s, %s, 5" % (s(S_T1), s(S_CG)))
    em.i("s_lshl_b32 %s, %s, 3" % (s(S_T2), s(S_WV)))
    em.i("s_add_u32 %s, %s, %s" % (s(S_T1), s(S_T1), s(S_T2)))
    em.i("s_add_u32 %s, %s, %s" % (s(S_T1), s(S_T1), s(S_T0)))
    em.i("s_mul_i32 %s, %s, 0x500" % (s(S_T1), s(S_T1)))
    em.i("v_mul_u32_u24 %s, 0xa00, %s" % (v(VT + 3), v(VT + 1)))
    em.i("v_add3_u32 %s, %s, %s, %s" % (v(VGX), v(VT + 3), v(VGW), s(S_T1)))
    if AFF & 2:
        em.i("s_lshl_b32 %s, %s, 6" % (s(S_UNIT), s(S_WV)))
        em.i("s_lshl_b32 %s, %s, 3" % (s(S_T0), s(S_B)))
        em.i("s_add_u32 %s, %s, %s" % (s(S_UNIT), s(S_UNIT), s(S_T0)))
        em.i("s_lshl_b32 %s, %s, 2" % (s(S_T0), s(S_P)))
        em.i("s_add_u32 %s, %s, %s" % (s(S_UNIT), s(S_UNIT), s(S_T0)))
        em.i("s_and_b32 %s, %s, 3" % (s(S_T0), s(S_CG)))
        em.i("s_add_u32 %s, %s, %s" % (s(S_UNIT), s(S_UNIT), s(S_T0)))
        em.i("s_mul_i32 %s, %s, 0xcccd" % (s(S_T0), s(S_UNIT)))
        em.i("s_lshr_b32 %s, %s, 18" % (s(S_T0), s(S_T0)))
        em.i("s_mul_i32 %s, %s, 5" % (s(S_T1), s(S_T0)))
        em.i("s_sub_u32 %s, %s, %s" % (s(S_T2), s(S_UNIT), s(S_T1)))
        em.i("s_lshr_b32 %s, %s, 2" % (s(S_T3), s(S_CG)))
        em.i("s_mul_i32 %s, %s, 3" % (s(S_T1), s(S_T3)))
        em.i("s_and_b32 %s, %s, 1" % (s(S_T4), s(S_T2)))
        em.i("s_add_u32 %s, %s, %s" % (s(S_T1), s(S_T1), s(S_T4)))
        em.i("s_lshr_b32 %s, %s, 1" % (s(S_T4), s(S_T2)))
        em.i("s_cmp_eq_u32 %s, 4" % s(S_T2))
        em.i("s_cselect_b32 %s, 2, %s" % (s(S_T1), s(S_T1)))
        em.i("s_cselect_b32 %s, %s, %s" % (s(S_T4), s(S_T3), s(S_T4)))
        em.i("s_lshl_b32 %s, %s, 1" % (s(S_T0), s(S_T0)))
        em.i("s_add_u32 %s, %s, %s" % (s(S_T0), s(S_T0), s(S_T4)))
    else:
        em.i("s_lshl_b32 %s, %s, 3" % (s(S_UNIT), s(S_P)))
        em.i("s_add_u32 %s, %s, %s" % (s(S_UNIT), s(S_UNIT), s(S_B)))
        em.i("s_lshl_b32 %s, %s, 3" % (s(S_UNIT), s(S_UNIT)))
        em.i("s_add_u32 %s, %s, %s" % (s(S_UNIT), s(S_UNIT), s(S_CG)))
        em.i("s_lshl_b32 %s, %s, 2" % (s(S_UNIT), s(S_UNIT)))
        em.i("s_add_u32 %s, %s, %s" % (s(S_UNIT), s(S_UNIT), s(S_WV)))
        em.i("s_mul_i32 %s, %s, 0xcccd" % (s(S_T0), s(S_UNIT)))
        em.i("s_lshr_b32 %s, %s, 18" % (s(S_T0), s(S_T0)))
        em.i("s_mul_i32 %s, %s, 5" % (s(S_T1), s(S_T0)))
        em.i("s_sub_u32 %s, %s, %s" % (s(S_T1), s(S_UNIT), s(S_T1)))
    em.i("s_lshl_b32 %s, %s, 5" % (s(S_T2), s(S_T0)))
    em.i("s_sub_u32 %s, %s, 640" % (s(S_T2), s(S_T2)))
    em.i("s_mov_b32 %s, 16" % s(S_T3))
    em.i("s_mov_b32 %s, 4" % s(S_T4))
    em.i("s_mul_i32 %s, %s, 160" % (s(S_C0), s(S_T0)))
    em.i("s_sub_u32 %s, %s, %d" % (s(S_C0), s(S_C0), 2560 - 16))
    em.i("s_mov_b32 %s, 0x%x" % (s(SRD_T + 2), W2_BYTES))
    em.i("s_mov_b32 %s, 0x20000" % s(SRD_T + 3))
    em.i("s_cmp_lt_u32 %s, 20" % s(S_T0))
    em.i("s_cselect_b32 %s, %s, %s" % (s(S_T2), s(S_C0), s(S_T2)))
    em.i("s_cselect_b32 %s, 80, %s" % (s(S_T3), s(S_T3)))
    em.i("s_cselect_b32 %s, 20, %s" % (s(S_T4), s(S_T4)))
    em.i("s_cselect_b32 %s, %s, %s" % (s(SRD_T), s(8), s(16)))
    em.i("s_cselect_b32 %s, %s, %s" % (s(SRD_T + 1), s(9), s(17)))
    em.i("s_cselect_b32 %s, 0x%x, %s" % (s(SRD_T + 2), WO_BYTES, s(SRD_T + 2)))
    em.i("s_mul_i32 %s, %s, 40" % (s(S_C0), s(S_T0)))
    em.i("s_cmp_lt_u32 %s, 16" % s(S_T0))
    em.i("s_cselect_b32 %s, %s, %s" % (s(S_T2), s(S_C0), s(S_T2)))
    em.i("s_cselect_b32 %s, 20, %s" % (s(S_T3), s(S_T3)))
    em.i("s_cselect_b32 %s, 4, %s" % (s(S_T4), s(S_T4)))
    em.i("s_mul_i32 %s, %s, 0x500" % (s(S_T4), s(S_T4)))
    em.i("v_mad_u32_u24 %s, %s, %s, %s" % (v(VRL), v(VT + 1), s(S_T4), v(VGW)))
    em.i("s_mul_i32 %s, %s, 0x500" % (s(S_T2), s(S_T2)))
    em.i("s_lshl_b32 %s, %s, 8" % (s(S_C0), s(S_T1)))
    em.i("s_add_u32 %s, %s, %s" % (s(S_R0), s(S_T2), s(S_C0)))
    em.i("s_mul_i32 %s, %s, 0x500" % (s(S_T3), s(S_T3)))
    em.i("s_add_u32 %s, %s, %s" % (s(S_R1), s(S_T3), s(S_R0)))
    em.i("s_mul_i32 %s, %s, 40" % (s(S_T0), s(S_T0)))
    em.i("s_lshl_b32 %s, %s, 3" % (s(S_T1), s(S_T1)))
    em.i("s_add_u32 %s, %s, %s" % (s(S_T0), s(S_T0), s(S_T1)))
    em.i("s_lshl_b32 %s, %s, 10" % (s(S_T0), s(S_T0)))
    em.i("s_add_u32 %s, %s, 0x%x" % (s(S_T0), s(S_T0), WF_OFF))
    em.i("s_cmp_ge_u32 %s, %d" % (s(S_UNIT), 170 if AFF & 2 else 340))
    em.i("s_cselect_b32 %s, 0x%x, %s" % (s(S_T0), BIGOFF, s(S_T0)))
    em.i("s_cselect_b32 %s, 0x%x, %s" % (s(S_R0), BIGOFF, s(S_R0)))
    em.i("s_cselect_b32 %s, 0x%x, %s" % (s(S_R1), BIGOFF, s(S_R1)))
    em.i("v_lshrrev_b32 %s, 1, %s" % (v(VT + 5), v(VT)))
    em.i("v_lshlrev_b32 %s, 10, %s" % (v(VT + 5), v(VT + 5)))
    em.i("v_and_b32 %s, 1, %s" % (v(VT + 6), v(VT)))
    em.i("v_lshl_add_u32 %s, %s, 7, %s" % (v(VT + 5), v(VT + 6), v(VT + 5)))
    em.i("v_lshl_add_u32 %s, %s, 8, %s" % (v(VT + 5), v(VT + 1), v(VT + 5)))
    em.i("v_add_u32 %s, %s, %s" % (v(VRS), s(S_T0), v(VT + 5)))
    em.i("s_waitcnt vmcnt(15)")
    F = []
    for t in range(4):
        for u in range(6):
            F.append("v_lshlrev_b32 %s, 16, %s" % (v(acc(t, u)), v(BIAS + 2 * u)))
            F.append("v_and_b32 %s, 0xffff0000, %s" % (v(acc(t, u) + 1), v(BIAS + 2 * u)))
            F.append("v_lshlrev_b32 %s, 16, %s" % (v(acc(t, u) + 2), v(BIAS + 2 * u + 1)))
            F.append("v_and_b32 %s, 0xffff0000, %s" % (v(acc(t, u) + 3), v(BIAS + 2 * u + 1)))
    for n, (m, l) in enumerate(dma[5:]):
        em.i(m)
        em.i(l)
        for x in F[20 * n:20 * (n + 1)]:
            em.i(x)
    for x in adv:
        em.i(x)
    if not EARLY:
        for m, l in dma[:5]:
            em.i(m)
            em.i(l)

    def reads(st, ks):
        xa = VXA1 if ks else VXA0
        R = []
        for t in range(4):
            R.append("ds_read_b128 %s, %s offset:%d" % (a(FR(st, t), 4), v(xa), t * 2048))
        for u in range(6):
            for h in range(2):
                R.append("ds_read_b64_tr_b16 %s, %s offset:%d" % (
                    a(FR(st, 4 + u) + 2 * h, 2), v(VWA + (u & 3)), H_XSZ + (32 * ks + 4 * h) * 384 + 128 * (u >> 2)))
        return R

    def mfmas(st):
        L = []
        for t in range(4):
            for u in range(6):
                L.append(mfma(v(acc(t, u), 4), a(FR(st, 4 + u), 4), a(FR(st, t), 4)))
        return L

    stamp_get(em, 3)
    em.i("s_waitcnt vmcnt(%d)" % (10 if EARLY else 15))
    stamp_get(em, 1)
    em.i("s_barrier")
    stamp_get(em, 2)
    stamp_put(em, VS, 0, True)
    stamp_put(em, VS, 3)
    for r in reads(0, 0):
        em.i(r)
    if EARLY:
        for m, l in dma[:5]:
            em.i(m)
            em.i(l)
    em.i("s_mov_b32 %s, 10" % s(S_CNT))
    em.label("L_h_loop")
    top = em.mark()
    em.i("s_waitcnt lgkmcnt(0)")
    stamp_get(em, 0)
    stamp_put(em, VS, 1)
    stamp_put(em, VS, 2)
    ex = [(18 + k // 3, x) for k, x in enumerate(adv)]
    ex += [(16, x) for x in advance_rd(H_SLOT)]
    ex.append((17, "v_add_u32 %s, %s, %s" % (v(VXA0), s(S_DELTA), v(VXA0))))
    ex.append((17, "v_add_u32 %s, %s, %s" % (v(VXA1), s(S_DELTA), v(VXA1))))
    for u in range(4):
        ex.append((22 + u // 2, "v_add_u32 %s, %s, %s" % (v(VWA + u), s(S_DELTA), v(VWA + u))))
    phase(em, mfmas(0), reads(1, 1), dma[5:], extra=ex, dma_start=1, dma_step=4)
    stamp_get(em, 3)
    em.i("s_waitcnt vmcnt(10) lgkmcnt(0)")
    stamp_get(em, 1)
    em.i("s_barrier")
    stamp_get(em, 2)
    stamp_put(em, VS, 0)
    stamp_put(em, VS, 3)
    phase(em, mfmas(1), reads(0, 0), dma[:5], extra=[(20, "s_sub_u32 %s, %s, 1" % (s(S_CNT), s(S_CNT))),
                                                    (21, "s_cmp_lg_u32 %s, 0" % s(S_CNT))], dma_start=1, dma_step=4)
    em.i("s_cbranch_scc1 L_h_loop")
    em.check_backedge(top)
    stamp_get(em, 0)
    stamp_put(em, VS, 1, True)
    stamp_put(em, VS, 2)
    stamp_put(em, VS, 0)
    SL = []
    for n in range(5):
        SL.append("buffer_load_dwordx4 %s, %s, %s, 0 offen offset:%d" % (v(GX + 4 * n, 4), v(VGX), s(SRD_X, 4), 256 * n))
        SL.append("buffer_load_dwordx4 %s, %s, %s, 0 offen offset:%d" % (v(GX + 20 + 4 * n, 4), v(VGW), s(SRD_T2, 4), 256 * n))
    for j in range(8):
        SL.append("buffer_load_dwordx4 %s, %s, %s, %s offen offset:%d" % (
            v(RIN + 4 * j, 4), v(VRL), s(SRD_T, 4), s(S_R0 if j < 4 else S_R1), 1280 * (j & 3)))
    P = []
    P.append("s_lshl_b32 %s, %s, 6" % (s(S_T0), s(S_P)))
    P.append("s_lshl_b32 %s, %s, 3" % (s(S_T1), s(S_B)))
    P.append("s_add_u32 %s, %s, %s" % (s(S_T0), s(S_T0), s(S_T1)))
    P.append("s_add_u32 %s, %s, %s" % (s(S_T3), s(S_T0), s(S_CG)))
    P.append("s_lshl_b32 %s, %s, 2" % (s(S_T3), s(S_T3)))
    P.append("s_add_u32 %s, %s, %s" % (s(S_T3), s(S_T3), s(S_WV)))
    P.append("s_lshl_b32 %s, %s, 4" % (s(S_T3), s(S_T3)))
    P.append("s_add_u32 %s, %s, 0x%x" % (s(S_T3), s(S_T3), G_OFF))
    P.append("s_lshl_b32 %s, %s, 2" % (s(S_T1), s(S_T5)))
    P.append("s_add_u32 %s, %s, %s" % (s(S_T0), s(S_T0), s(S_T1)))
    P.append("s_mul_i32 %s, %s, 68" % (s(S_T0), s(S_T0)))
    P.append("s_mul_i32 %s, %s, 6" % (s(S_T1), s(S_CG)))
    P.append("s_add_u32 %s, %s, %s" % (s(S_T0), s(S_T0), s(S_T1)))
    P.append("s_and_b32 %s, %s, 1" % (s(S_T1), s(S_WV)))
    P.append("s_mul_i32 %s, %s, 3" % (s(S_T1), s(S_T1)))
    P.append("s_add_u32 %s, %s, %s" % (s(S_T0), s(S_T0), s(S_T1)))
    P.append("s_add_u32 %s, %s, 20" % (s(S_T0), s(S_T0)))
    P.append("s_lshl_b32 %s, %s, 10" % (s(S_T0), s(S_T0)))
    P.append("v_lshlrev_b32 %s, 4, %s" % (v(VT), v(VL)))
    c0 = -2.0 * math.log2(math.e) * math.sqrt(2.0 / math.pi)
    c1 = c0 * 0.044715
    em.i("s_mov_b32 %s, 0x%x" % (s(S_C0), f2u(c0)))
    em.i("s_mov_b32 %s, 0x%x" % (s(S_C0 + 1), f2u(c0)))
    em.i("v_mov_b32 %s, 0x%x" % (v(VT + 1), f2u(c1)))
    em.i("v_mov_b32 %s, 0x%x" % (v(VT + 2), f2u(c1)))
    C1 = VT + 1
    assert C1 % 2 == 0
    SC = []
    SC.append("v_dot2_f32_bf16 %s, %s, %s, 0" % (v(VG), v(GX), v(GX + 20)))
    for n in range(1, 20):
        SC.append("v_dot2_f32_bf16 %s, %s, %s, %s" % (v(VG), v(GX + n), v(GX + 20 + n), v(VG)))
    for rot in (8, 4, 2, 1):
        SC.append("v_add_f32_dpp %s, %s, %s row_ror:%d row_mask:0xf bank_mask:0xf" % (v(VT + 3), v(VG), v(VG), rot))
        SC.append("v_mov_b32 %s, %s" % (v(VG), v(VT + 3)))
    SC.append("v_cvt_pk_bf16_f32 %s, %s, %s" % (v(VG), v(VG), v(VG)))
    SC.append("v_lshlrev_b32 %s, 16, %s" % (v(VG), v(VG)))
    SC.append("v_mul_f32 %s, 0x%x, %s" % (v(VG), f2u(-math.log2(math.e)), v(VG)))
    SC.append("v_exp_f32 %s, %s" % (v(VG), v(VG)))
    SC.append("v_lshrrev_b32 %s, 4, %s" % (v(VT + 3), v(VL)))
    SC.append("v_add_f32 %s, 1.0, %s" % (v(VG), v(VG)))
    SC.append("v_rcp_f32 %s, %s" % (v(VG), v(VG)))
    SC.append("v_lshlrev_b32 %s, 2, %s" % (v(VT + 3), v(VT + 3)))
    SC.append("v_cvt_pk_bf16_f32 %s, %s, %s" % (v(VG), v(VG), v(VG)))
    SC.append("v_lshlrev_b32 %s, 16, %s" % (v(VG), v(VG)))
    SC.append("buffer_store_dword %s, %s, %s, %s offen%s" % (v(VG), v(VT + 3), s(SRD_WS, 4), s(S_T3), WT))
    SC.append("s_mov_b32 %s, 0x05040100" % s(S_R0))
    SC.append("s_mov_b32 %s, 0x07060302" % s(S_R1))
    for d in range(4):
        for e in range(2):
            for jj in range(4):
                SC.append("v_perm_b32 %s, %s, %s, %s" % (
                    v(ROUT + (2 * d + e) * 4 + jj), v(RIN + (2 * jj + 1) * 4 + d), v(RIN + (2 * jj) * 4 + d), s(S_R0 + e)))
            n = 2 * d + e
            SC.append("buffer_store_dwordx4 %s, %s, %s, 0 offen offset:%d%s" % (v(ROUT + 4 * n, 4), v(VRS), s(SRD_WS, 4), 16 * n, WT))

    def gelu_pair(x, tmp, dst):
        X = v(x, 2)
        T = v(tmp, 2)
        return [
            "v_pk_mul_f32 %s, %s, %s" % (T, X, X),
            "v_pk_fma_f32 %s, %s, %s, %s" % (T, T, v(C1, 2), s(S_C0, 2)),
            "v_pk_mul_f32 %s, %s, %s" % (T, T, X),
            "v_exp_f32 %s, %s" % (v(tmp), v(tmp)),
            "v_exp_f32 %s, %s" % (v(tmp + 1), v(tmp + 1)),
            "v_pk_add_f32 %s, %s, 1.0 op_sel_hi:[1,0]" % (T, T),
            "v_rcp_f32 %s, %s" % (v(tmp), v(tmp)),
            "v_rcp_f32 %s, %s" % (v(tmp + 1), v(tmp + 1)),
            "v_pk_mul_f32 %s, %s, %s" % (T, T, X),
            "v_cvt_pk_bf16_f32 %s, %s, %s" % (v(dst), v(tmp), v(tmp + 1)),
        ]

    grp = 0
    SIDE0 = 5
    NSC = 4
    per = (len(SC) + NSC - 1) // NSC
    for t in range(4):
        for uu in range(3):
            base = acc(t, 2 * uu)
            outr = TMP + 8 + 4 * (grp % 4)
            ls = [gelu_pair(base + 2 * k, TMP + 2 * k + 24 * (grp & 1), outr + k) for k in range(4)]
            if grp == 0:
                ls += [SL[:9], SL[9:], P[:10], P[10:]]
                ls = ls[:4] + [SL[:9], SL[9:]] + [P[0::2], P[1::2]]
            if grp == SIDE0:
                em.i("s_waitcnt vmcnt(%d)" % SIDE0)
            if SIDE0 <= grp < SIDE0 + NSC:
                ch = SC[per * (grp - SIDE0):per * (grp - SIDE0 + 1)]
                ls += [ch[0::2], ch[1::2]]
            for x in interleave(ls):
                em.i(x)
            em.i("s_add_u32 %s, %s, 0x%x" % (s(S_T1 + (grp & 1)), s(S_T0), t * TILE_B + 1024 * uu))
            em.i("buffer_store_dwordx4 %s, %s, %s, %s offen%s" % (v(outr, 4), v(VT), s(SRD_WS, 4), s(S_T1 + (grp & 1)), WT))
            grp += 1
    stamp_end(em, VS, SRD_WS, S_WV, 0)
    em.i("s_endpgm")


def gen_k1(em):
    em.raw(".globl k1_kernel")
    em.raw(".p2align 8")
    em.raw(".type k1_kernel,@function")
    em.label("k1_kernel")
    em.fence()
    em.i("s_cmp_ge_u32 s2, 256")
    em.i("s_cbranch_scc1 L_k1_end")
    stamp_get(em, 0, True)
    stamp_get(em, 1)
    if PROF:
        em.i("s_mov_b32 %s, 0" % s(S_TI))
    em.i("s_load_dwordx4 s[4:7], s[0:1], 0")
    em.i("s_load_dwordx2 s[8:9], s[0:1], 16")
    em.i("s_load_dwordx4 s[12:15], s[0:1], 32")
    em.i("s_load_dwordx2 s[16:17], s[0:1], 48")
    em.i("s_load_dwordx2 s[18:19], s[0:1], 64")
    em.i("s_load_dwordx2 s[20:21], s[0:1], 88")
    em.i("v_lshrrev_b32 v1, 6, v0")
    em.i("v_and_b32 v0, 63, v0")
    em.i("v_readfirstlane_b32 %s, v1" % s(S_WV))
    em.i("s_and_b32 %s, s2, 1" % s(S_P))
    em.i("s_lshr_b32 %s, s2, 5" % s(S_B))
    em.i("s_bfe_u32 %s, s2, 0x20001" % s(S_CG))
    em.i("s_lshl_b32 %s, %s, 1" % (s(S_CG), s(S_CG)))
    em.i("s_bfe_u32 %s, s2, 0x10003" % s(S_T0))
    em.i("s_add_u32 %s, %s, %s" % (s(S_CG), s(S_CG), s(S_T0)))
    em.i("s_bitcmp1_b32 s2, 4")
    em.i("s_cbranch_scc1 L_h")
    em.i("s_cmp_eq_u32 %s, 1" % s(S_WV))
    em.i("s_cbranch_scc1 L_q1")
    em.i("s_cmp_eq_u32 %s, 2" % s(S_WV))
    em.i("s_cbranch_scc1 L_q2")
    em.i("s_cmp_eq_u32 %s, 3" % s(S_WV))
    em.i("s_cbranch_scc1 L_q3")
    gen_q(em, 0, 0)
    gen_q(em, 0, 1)
    gen_q(em, 1, 0)
    gen_q(em, 1, 1)
    gen_h(em)
    em.label("L_k1_end")
    em.i("s_endpgm")


K2_LDS = 4 * 3 * 5 * 1024


def gen_k2(em, depth=3):
    NB = depth + 1
    SW, SO, SB2 = 8, 12, 16
    S_W_, S_RB, S_C = 20, 21, 22
    S_AO, S_AH, S_WO, S_WH = 24, 25, 26, 27
    S_A, S_Wf = 28, 30
    T0, T1, T2, T3 = 32, 33, 34, 35
    S_OUT = 38
    VL, VT = 0, 1
    VA = 8
    VW, VW4 = 12, 13
    VS = 14
    GP = 16
    OP = 24
    B2 = 32
    VTA, VTS = 42, 43
    accA = lambda t, j: 44 + (t * 5 + j) * 4
    accB = lambda t, j: 124 + (t * 5 + j) * 4
    RED = 204
    VTD = 208
    VLW = 208
    VLR = 212
    VG4 = 213
    VOUT = 214
    VB2 = 215
    FR = lambda b, k: b * 36 + k * 4
    em.raw(".globl k2_kernel")
    em.raw(".p2align 8")
    em.raw(".type k2_kernel,@function")
    em.label("k2_kernel")
    em.fence()
    em.i("s_cmp_ge_u32 s2, 256")
    em.i("s_cbranch_scc1 L_k2_end")
    stamp_get(em, 0, True)
    stamp_get(em, 1)
    if PROF:
        em.i("s_mov_b32 %s, 0" % s(S_TI))
    em.i("s_load_dwordx2 s[4:5], s[0:1], 88")
    em.i("s_load_dwordx2 s[6:7], s[0:1], 72")
    em.i("s_load_dwordx2 s[36:37], s[0:1], 56")
    em.i("v_lshrrev_b32 v1, 6, v0")
    em.i("v_and_b32 v0, 63, v0")
    em.i("v_readfirstlane_b32 %s, v1" % s(S_W_))
    if AFF & 1:
        em.i("s_and_b32 %s, s2, 1" % s(S_RB))
        em.i("s_lshl_b32 %s, %s, 4" % (s(S_RB), s(S_RB)))
        em.i("s_bfe_u32 %s, s2, 0x10001" % s(T0))
        em.i("s_lshl_b32 %s, %s, 3" % (s(T0), s(T0)))
        em.i("s_add_u32 %s, %s, %s" % (s(S_RB), s(S_RB), s(T0)))
        em.i("s_lshr_b32 %s, s2, 5" % s(T0))
        em.i("s_add_u32 %s, %s, %s" % (s(S_RB), s(S_RB), s(T0)))
        em.i("s_bfe_u32 %s, s2, 0x10002" % s(S_C))
        em.i("s_lshl_b32 %s, %s, 2" % (s(S_C), s(S_C)))
        em.i("s_bfe_u32 %s, s2, 0x20003" % s(T0))
        em.i("s_add_u32 %s, %s, %s" % (s(S_C), s(S_C), s(T0)))
    else:
        em.i("s_bfe_u32 %s, s2, 0x20001" % s(S_RB))
        em.i("s_lshl_b32 %s, %s, 3" % (s(S_RB), s(S_RB)))
        em.i("s_lshr_b32 %s, s2, 5" % s(T0))
        em.i("s_add_u32 %s, %s, %s" % (s(S_RB), s(S_RB), s(T0)))
        em.i("s_and_b32 %s, s2, 1" % s(S_C))
        em.i("s_lshl_b32 %s, %s, 2" % (s(S_C), s(S_C)))
        em.i("s_bfe_u32 %s, s2, 0x20003" % s(T0))
        em.i("s_add_u32 %s, %s, %s" % (s(S_C), s(S_C), s(T0)))
    em.i("v_lshlrev_b32 %s, 4, %s" % (v(VT), v(VL)))
    em.i("s_mul_i32 %s, %s, 0x%x" % (s(T0), s(S_RB), 4 * TILE_B))
    for n in range(4):
        em.i("s_add_u32 %s, %s, %d" % (s(T1), s(S_W_), n))
        em.i("s_and_b32 %s, %s, 3" % (s(T1), s(T1)))
        em.i("s_mul_i32 %s, %s, 0x%x" % (s(T2), s(T1), TILE_B))
        em.i("s_add_u32 %s, %s, %s" % (s(T2), s(T2), s(T0)))
        em.i("v_add_u32 %s, %s, %s" % (v(VA + n), s(T2), v(VT)))
    em.i("s_mul_i32 %s, %s, 5120" % (s(T0), s(S_C)))
    em.i("s_add_u32 %s, %s, 0x%x" % (s(T0), s(T0), WF_OFF))
    em.i("v_add_u32 %s, %s, %s" % (v(VW), s(T0), v(VT)))
    em.i("v_add_u32 %s, 0x1000, %s" % (v(VW4), v(VW)))
    em.i("s_mul_i32 %s, %s, 5120" % (s(S_AO), s(S_W_)))
    em.i("s_mul_i32 %s, %s, 12288" % (s(S_AH), s(S_W_)))
    em.i("s_add_u32 %s, %s, 20480" % (s(S_AH), s(S_AH)))
    em.i("s_mul_i32 %s, %s, 40" % (s(S_WO), s(S_AO)))
    em.i("s_mul_i32 %s, %s, 40" % (s(S_WH), s(S_AH)))

    P = []
    f = 128 // TG
    NLs, NA = 13 * f, 8 * f
    if TOUCH2:
        P.append("v_mul_u32_u24 %s, 0x%x, %s" % (v(VT + 1), {1: 0x13B2, 2: 2521}[f], v(VL)))
        P.append("v_lshrrev_b32 %s, 16, %s" % (v(VT + 1), v(VT + 1)))
        P.append("v_mul_u32_u24 %s, %d, %s" % (v(VT + 2), NLs, v(VT + 1)))
        P.append("v_sub_u32 %s, %s, %s" % (v(VT + 2), v(VL), v(VT + 2)))
        P.append("s_bfe_u32 %s, s2, 0x20003" % s(T1))
        P.append("s_lshl_b32 %s, %s, 2" % (s(T2), s(S_RB)))
        P.append("s_add_u32 %s, %s, %s" % (s(T1), s(T1), s(T2)))
        P.append("s_mul_i32 %s, %s, 0x%x" % (s(T1), s(T1), TILE_B))
        P.append("s_lshr_b32 %s, s2, 5" % s(T2))
        P.append("s_mul_i32 %s, %s, 640" % (s(T2), s(T2)))
        P.append("s_add_u32 %s, %s, %s" % (s(T2), s(T2), s(T0)))
        P.append("s_sub_u32 %s, %s, %d" % (s(T2), s(T2), NA * TG))
        P.append("v_mov_b32 %s, %s" % (v(VT + 3), s(T2)))
        P.append("v_mov_b32 %s, %s" % (v(VT + 4), s(T1)))
        P.append("v_cmp_gt_u32 vcc, %d, %s" % (NA, v(VT + 2)))
        P.append("v_cndmask_b32 %s, %s, %s, vcc" % (v(VT + 3), v(VT + 3), v(VT + 4)))
        P.append("v_mov_b32 %s, 0xa000" % v(VTS))
        P.append("v_mov_b32 %s, 0x400" % v(VT + 4))
        P.append("v_cndmask_b32 %s, %s, %s, vcc" % (v(VTS), v(VTS), v(VT + 4)))
        P.append("v_lshl_add_u32 %s, %s, %d, %s" % (v(VT + 3), v(VT + 2), {128: 7, 64: 6}[TG], v(VT + 3)))
        P.append("v_mad_u32_u24 %s, %s, %s, %s" % (v(VT + 3), v(VT + 1), v(VTS), v(VT + 3)))
        P.append("v_mov_b32 %s, 0x%x" % (v(VT + 4), BIGOFF))
        P.append("v_cmp_gt_u32 vcc, 2, %s" % v(VT + 1))
        P.append("v_cndmask_b32 %s, %s, %s, vcc" % (v(VT + 3), v(VT + 4), v(VT + 3)))
        P.append("s_mul_i32 %s, %s, 5" % (s(T1), s(S_W_)))
        P.append("s_add_u32 %s, %s, 3" % (s(T1), s(T1)))
        P.append("s_mul_i32 %s, %s, 12" % (s(T2), s(S_W_)))
        P.append("s_add_u32 %s, %s, 20" % (s(T2), s(T2)))
        P.append("v_mad_u32_u24 %s, %s, %s, %s" % (v(VT + 4), v(VTS), s(T1), v(VT + 3)))
        P.append("v_mad_u32_u24 %s, %s, %s, %s" % (v(VTA), v(VTS), s(T2), v(VT + 3)))
        P.append("v_lshlrev_b32 %s, 1, %s" % (v(VTS), v(VTS)))
    P2 = []
    P2.append("v_and_b32 %s, 15, %s" % (v(VT + 1), v(VL)))
    P2.append("v_lshlrev_b32 %s, 2, %s" % (v(VG4), v(VT + 1)))
    P2.append("v_lshrrev_b32 %s, 4, %s" % (v(VT + 3), v(VL)))
    P2.append("v_lshlrev_b32 %s, 3, %s" % (v(VB2), v(VT + 3)))
    P2.append("v_mul_u32_u24 %s, 0xa00, %s" % (v(VOUT), v(VT + 1)))
    P2.append("v_add_u32 %s, %s, %s" % (v(VOUT), v(VOUT), v(VB2)))
    GL = []
    for n in range(4):
        GL.append("s_add_u32 %s, %s, %d" % (s(T1), s(S_W_), n))
        GL.append("s_and_b32 %s, %s, 3" % (s(T1), s(T1)))
        if n:
            GL.append("s_mul_i32 %s, %s, 15360" % (s(T2), s(T1)))
            GL.append("v_add_u32 %s, %s, %s" % (v(VLW + n), s(T2), v(VT)))
        else:
            GL.append("s_mul_i32 %s, %s, 15360" % (s(T2), s(T1)))
            GL.append("v_add_u32 %s, %s, %s" % (v(VLR), s(T2), v(VT)))
        GL.append("s_lshl_b32 %s, %s, 2" % (s(T2), s(S_RB)))
        GL.append("s_add_u32 %s, %s, %s" % (s(T1), s(T1), s(T2)))
        GL.append("s_lshl_b32 %s, %s, 6" % (s(T1), s(T1)))
        GL.append("s_add_u32 %s, %s, 0x%x" % (s(T1), s(T1), G_OFF))
        GL.append("buffer_load_dword %s, %s, %s, %s offen" % (v(GP + 2 * n), v(VG4), s(SW, 4), s(T1)))
    BL = ["s_mul_i32 %s, %s, 160" % (s(T3), s(S_C))]
    for j in range(5):
        BL.append("buffer_load_dwordx2 %s, %s, %s, %s offen offset:%d" % (v(B2 + 2 * j, 2), v(VB2), s(SB2, 4), s(T3), 32 * j))
    BL.append("s_lshl_b32 %s, %s, 2" % (s(S_OUT), s(S_RB)))
    BL.append("s_add_u32 %s, %s, %s" % (s(S_OUT), s(S_OUT), s(S_W_)))
    BL.append("s_lshr_b32 %s, %s, 6" % (s(T2), s(S_OUT)))
    BL.append("s_and_b32 %s, %s, 63" % (s(S_OUT), s(S_OUT)))
    BL.append("s_lshl_b32 %s, %s, 5" % (s(S_OUT), s(S_OUT)))
    BL.append("s_add_u32 %s, %s, %s" % (s(S_OUT), s(S_OUT), s(T2)))
    BL.append("s_mul_i32 %s, %s, 0x500" % (s(S_OUT), s(S_OUT)))
    BL.append("s_add_u32 %s, %s, %s" % (s(S_OUT), s(S_OUT), s(T3)))

    for y in P2 + P:
        em.i(y)
    P, P2 = [], []
    em.i("s_waitcnt lgkmcnt(0)")
    stamp_put(em, VS, 0)
    stamp_put(em, VS, 1)
    stamp_get(em, 0)
    srd(em, SW, 4, WS_SIZE)

    seq = []

    def emit(x, tag=None):
        em.i(x)
        if x.startswith("buffer_"):
            seq.append(tag)

    def younger(tag):
        last = max(k for k, t in enumerate(seq) if t == tag)
        return len(seq) - 1 - last

    def loads(ks):
        b = ks % NB
        L = []
        if ks < 5:
            L.append("s_add_u32 %s, %s, 0x%x" % (s(S_A + (ks & 1)), s(S_AO), 1024 * ks))
            L.append("s_add_u32 %s, %s, 0x%x" % (s(S_Wf + (ks & 1)), s(S_WO), 40960 * ks))
        else:
            L.append("s_add_u32 %s, %s, 0x%x" % (s(S_A + (ks & 1)), s(S_AH), 1024 * (ks - 5)))
            L.append("s_add_u32 %s, %s, 0x%x" % (s(S_Wf + (ks & 1)), s(S_WH), 40960 * (ks - 5)))
        order = [("a", 0), ("w", 0), ("a", 1), ("a", 2), ("a", 3), ("w", 1), ("w", 2), ("w", 3), ("w", 4)]
        for kd, n in order:
            if kd == "a":
                L.append("buffer_load_dwordx4 %s, %s, %s, %s offen" % (a(FR(b, n), 4), v(VA + n), s(SW, 4), s(S_A + (ks & 1))))
            elif n < 4:
                L.append("buffer_load_dwordx4 %s, %s, %s, %s offen offset:%d" % (a(FR(b, 4 + n), 4), v(VW), s(SW, 4), s(S_Wf + (ks & 1)), 1024 * n))
            else:
                L.append("buffer_load_dwordx4 %s, %s, %s, %s offen" % (a(FR(b, 8), 4), v(VW4), s(SW, 4), s(S_Wf + (ks & 1))))
        return [(x, ("L", ks)) for x in L]

    NK = 17
    tsched = {}
    if TOUCH2:
        for k0 in range(3, NK, 2):
            tsched.setdefault(max(-1, k0 - depth - TL2), []).append(k0)

    def touch(k0):
        if k0 == 3:
            return [("buffer_load_dword %s, %s, %s, 0 offen" % (v(VTD), v(VT + 4), s(SW, 4)), "T")]
        L = [("buffer_load_dword %s, %s, %s, 0 offen" % (v(VTD), v(VTA), s(SW, 4)), "T")]
        if k0 + 2 < NK:
            L.append(("v_add_u32 %s, %s, %s" % (v(VTA), v(VTA), v(VTS)), None))
        return L

    l0 = loads(0)
    for k, (x, t) in enumerate(l0):
        emit(x, t)
        for y in P[4 * k:4 * k + 4]:
            emit(y)
    for y in P[4 * len(l0):]:
        emit(y)
    first_touch = tsched.get(-1, [])
    if TOUCHPOS2 == 0:
        for k0 in first_touch:
            for x, t in touch(k0):
                emit(x, t)
    for ks in range(1, depth):
        for x, t in loads(ks):
            emit(x, t)
        if TOUCHPOS2 == ks:
            for k0 in first_touch:
                for x, t in touch(k0):
                    emit(x, t)
    srd(em, SO, 6, X_BYTES)
    srd(em, SB2, 36, 1280)
    for y in P2:
        emit(y)
    side = {}
    side[1] = [(x, "G") for x in GL]
    side[9] = [(x, "B") for x in BL]
    og = []
    for n in range(4):
        og.append("v_sub_f32 %s, 1.0, %s" % (v(OP + 2 * n), v(GP + 2 * n)))
        og.append("v_cvt_pk_bf16_f32 %s, %s, %s" % (v(OP + 2 * n), v(OP + 2 * n), v(OP + 2 * n)))
        og.append("v_lshlrev_b32 %s, 16, %s" % (v(OP + 2 * n), v(OP + 2 * n)))
    sc = []
    for n in range(4):
        for j in range(5):
            for h in range(2):
                A_ = v(accA(n, j) + 2 * h, 2)
                sc.append("v_pk_mul_f32 %s, %s, %s op_sel_hi:[1,0]" % (A_, A_, v(GP + 2 * n, 2)))
    side[1 + depth + 1] = [(x, None) for x in og]
    assert 1 + depth + 1 != 9
    for k in range(4):
        side[10 + k] = [(x, None) for x in sc[10 * k:10 * k + 10]]
    for ks in range(NK):
        b = ks % NB
        accf = accA if ks < 5 else accB
        first = ks in (0, 5)
        mf = []
        for j in range(5):
            for t in range(4):
                mf.append(mfma(v(accf(t, j), 4), a(FR(b, 4 + j), 4), a(FR(b, t), 4), "0" if first else None))
        nxt = loads(ks + depth) if ks + depth < NK else []
        for k0 in tsched.get(ks, []):
            nxt += touch(k0)
        stamp_get(em, 1)
        em.i("s_waitcnt vmcnt(%d)" % min(63, younger(("L", ks))))
        stamp_put(em, VS, 0, True)
        stamp_put(em, VS, 1)
        stamp_get(em, 0)
        ext = side.get(ks, [])
        k = 0
        e = 0
        per = (len(ext) + 8) // 9 if ext else 0
        for mi, m in enumerate(mf):
            em.i(m)
            if k < len(nxt):
                emit(*nxt[k])
                k += 1
            elif e < len(ext):
                for _ in range(max(1, per)):
                    if e < len(ext):
                        emit(*ext[e])
                        e += 1
        while k < len(nxt):
            emit(*nxt[k])
            k += 1
        while e < len(ext):
            emit(*ext[e])
            e += 1
    stamp_get(em, 1)
    stamp_put(em, VS, 0, True)
    stamp_put(em, VS, 1)
    for n in (1, 2, 3):
        for j in range(5):
            for h in range(2):
                A_ = v(accA(n, j) + 2 * h, 2)
                B_ = v(accB(n, j) + 2 * h, 2)
                em.i("v_pk_fma_f32 %s, %s, %s, %s op_sel_hi:[1,0,1]" % (A_, B_, v(OP + 2 * n, 2), A_))
            em.i("ds_write_b128 %s, %s offset:%d" % (v(VLW + n), v(accA(n, j), 4), (n - 1) * 5120 + j * 1024))
    for j in range(5):
        R = RED if j & 1 else accB(1, 0)
        em.i("v_lshlrev_b32 %s, 16, %s" % (v(R), v(B2 + 2 * j)))
        em.i("v_and_b32 %s, 0xffff0000, %s" % (v(R + 1), v(B2 + 2 * j)))
        em.i("v_lshlrev_b32 %s, 16, %s" % (v(R + 2), v(B2 + 2 * j + 1)))
        em.i("v_and_b32 %s, 0xffff0000, %s" % (v(R + 3), v(B2 + 2 * j + 1)))
        for h in range(2):
            B_ = v(accB(0, j) + 2 * h, 2)
            em.i("v_pk_add_f32 %s, %s, %s" % (B_, B_, v(R + 2 * h, 2)))
        for h in range(2):
            A_ = v(accA(0, j) + 2 * h, 2)
            B_ = v(accB(0, j) + 2 * h, 2)
            em.i("v_pk_fma_f32 %s, %s, %s, %s op_sel_hi:[1,0,1]" % (A_, B_, v(OP, 2), A_))
    stamp_get(em, 0)
    em.i("s_waitcnt lgkmcnt(0)")
    stamp_get(em, 1)
    em.i("s_barrier")
    stamp_get(em, 2)
    stamp_put(em, VS, 0, True)
    stamp_put(em, VS, 1)
    stamp_put(em, VS, 2)
    for j in range(5):
        for sl in range(3):
            em.i("ds_read_b128 %s, %s offset:%d" % (v(accB(1 + sl, j), 4), v(VLR), sl * 5120 + j * 1024))
    for j in range(5):
        em.i("s_waitcnt lgkmcnt(%d)" % (3 * (4 - j)))
        for h in range(2):
            A_ = v(accA(0, j) + 2 * h, 2)
            B1, B2_, B3 = [v(accB(1 + sl, j) + 2 * h, 2) for sl in range(3)]
            em.i("v_pk_add_f32 %s, %s, %s" % (A_, A_, B1))
            em.i("v_pk_add_f32 %s, %s, %s" % (B2_, B2_, B3))
        for h in range(2):
            A_ = v(accA(0, j) + 2 * h, 2)
            em.i("v_pk_add_f32 %s, %s, %s" % (A_, A_, v(accB(2, j) + 2 * h, 2)))
        r = accA(0, j)
        em.i("v_cvt_pk_bf16_f32 %s, %s, %s" % (v(r), v(r), v(r + 1)))
        em.i("v_cvt_pk_bf16_f32 %s, %s, %s" % (v(r + 1), v(r + 2), v(r + 3)))
        em.i("buffer_store_dwordx2 %s, %s, %s, %s offen offset:%d%s" % (v(r, 2), v(VOUT), s(SO, 4), s(S_OUT), 32 * j, WT2))
    stamp_end(em, VS, SW, S_W_, 0x40000)
    em.label("L_k2_end")
    em.i("s_endpgm")
    return NB * 36


def desc(name, nfv, acc_off):
    return """.amdhsa_kernel %s
  .amdhsa_next_free_vgpr %d
  .amdhsa_next_free_sgpr 96
  .amdhsa_accum_offset %d
  .amdhsa_group_segment_fixed_size 0
  .amdhsa_kernarg_size 96
  .amdhsa_user_sgpr_count 2
  .amdhsa_user_sgpr_kernarg_segment_ptr 1
  .amdhsa_system_sgpr_workgroup_id_x 1
.end_amdhsa_kernel
""" % (name, nfv, acc_off)


def main(out, which="12"):
    em = Em()
    if "1" in which:
        em.raw("; @launch kernel=k1_kernel grid=(256,1,1) block=(256,1,1) lds=%d" % K1_LDS)
    if "2" in which:
        em.raw("; @launch kernel=k2_kernel grid=(256,1,1) block=(256,1,1) lds=%d" % K2_LDS)
    em.raw('.amdgcn_target "amdgcn-amd-amdhsa--gfx950"')
    em.raw(".text")
    if "1" in which:
        gen_k1(em)
    if "2" in which:
        na = gen_k2(em, K2DEPTH)
    em.raw('.section .rodata,"a"')
    if "1" in which:
        em.raw(".p2align 6")
        em.raw(desc("k1_kernel", 256 + 104, 256))
    if "2" in which:
        em.raw(".p2align 6")
        em.raw(desc("k2_kernel", 216 + na, 216))
    open(out, "w").write(em.text())
    print("wrote", out, "lines", len(em.lines), "nop states", em.nops)


if __name__ == "__main__":
    main(sys.argv[1], sys.argv[2] if len(sys.argv) > 2 else "12")
```

```python
import math
import struct
import sys

from em import Em, interleave


def f2u(x):
    return struct.unpack("<I", struct.pack("<f", x))[0]


import os
PROF = int(os.environ.get("PROF", "0"))
K2DEPTH = int(os.environ.get("K2DEPTH", "3"))
ROT = int(os.environ.get("ROT", "5"))
WT = os.environ.get("WT", "")
WTH = os.environ.get("WTH", " sc1")
WTO = os.environ.get("WTO", "")
WTS = os.environ.get("WTS", " sc1")
QT = int(os.environ.get("QT", "1"))
SIDE = int(os.environ.get("SIDE", "1"))
WT2 = os.environ.get("WT2", "")
EARLY = int(os.environ.get("EARLY", "1"))
TOUCH2 = int(os.environ.get("TOUCH2", "0"))
TG = int(os.environ.get("TG", "128"))
TL2 = int(os.environ.get("TL2", "3"))
TOUCHPOS2 = int(os.environ.get("TOUCHPOS2", "1"))
AFF = int(os.environ.get("AFF", "3"))
TCH = int(os.environ.get("TCH", "0"))
if TCH:
    ROT = 0
NODMA = int(os.environ.get("NODMA", "10"))
ROT2 = int(os.environ.get("ROT2", "0"))
S_TW, S_TX = 88, 89
TWV = [int(c) for c in os.environ.get("TWV", "0123")]
VTW1, VTW2, VTX1, VTX2, VTDST = 250, 251, 252, 253, 254
NKS = 68
ACT_OFF = 0
WF_OFF = 0x900000
G_OFF = 0xC00000
WS_SIZE = 0xE00000 if PROF else 0xC02000
PROF_OFF = 0xD00000
S_TM = 72
S_TI = 80
TILE_B = NKS * 1024

X_BYTES = 2048 * 640 * 2
WQKV_BYTES = 640 * 1920 * 2
W1_BYTES = 640 * 1536 * 2
WO_BYTES = 640 * 640 * 2
W2_BYTES = 1536 * 640 * 2

Q_SLOT = 49152
Q_XSZ = 18432
H_SLOT = 40960
H_XSZ = 16384
XCH = 2 * Q_SLOT + Q_XSZ + 15 * 1024
K1_LDS = XCH + 43 * 512 if QT else 3 * Q_SLOT


def v(n, cnt=1):
    return "v%d" % n if cnt == 1 else "v[%d:%d]" % (n, n + cnt - 1)


def a(n, cnt=1):
    return "a%d" % n if cnt == 1 else "a[%d:%d]" % (n, n + cnt - 1)


def s(n, cnt=1):
    return "s%d" % n if cnt == 1 else "s[%d:%d]" % (n, n + cnt - 1)


def mfma(d, A, B, C=None):
    return "v_mfma_f32_16x16x32_bf16 %s, %s, %s, %s" % (d, A, B, d if C is None else C)


def stamp_get(em, r=0, real=False):
    if PROF == 2:
        if real:
            em.i("s_memrealtime s[84:85]")
        return
    if PROF:
        em.i("%s s[%d:%d]" % ("s_memrealtime" if real else "s_memtime", S_TM + 2 * r, S_TM + 2 * r + 1))


def stamp_put(em, vs, r=0, wait=False):
    if PROF != 1:
        return
    if wait:
        em.i("s_waitcnt lgkmcnt(0)")
    em.i("v_cmp_eq_u32 vcc, %s, v0" % s(S_TI))
    em.i("v_mov_b32 %s, %s" % (v(vs + 1), s(S_TM + 2 * r)))
    em.i("v_cndmask_b32 %s, %s, %s, vcc" % (v(vs), v(vs), v(vs + 1)))
    em.i("s_add_u32 %s, %s, 1" % (s(S_TI), s(S_TI)))


def stamp(em, vs, real=False):
    stamp_get(em, 0, real)
    stamp_put(em, vs, 0, True)


def stamp_end(em, vs, srdws, swave, koff):
    if not PROF:
        return
    if PROF == 2:
        em.i("s_waitcnt vmcnt(0)")
        em.i("s_memrealtime s[86:87]")
        em.i("s_waitcnt lgkmcnt(0)")
        em.i("v_mov_b32 %s, s84" % v(vs))
        em.i("v_writelane_b32 %s, s86, 1" % v(vs))
    else:
        stamp(em, vs)
        em.i("s_waitcnt vmcnt(0)")
        stamp(em, vs)
        stamp(em, vs, True)
    em.i("s_lshl_b32 %s, s2, 2" % s(S_TI))
    em.i("s_add_u32 %s, %s, %s" % (s(S_TI), s(S_TI), s(swave)))
    em.i("s_lshl_b32 %s, %s, 8" % (s(S_TI), s(S_TI)))
    em.i("s_add_u32 %s, %s, 0x%x" % (s(S_TI), s(S_TI), PROF_OFF + koff))
    em.i("v_lshlrev_b32 %s, 2, v0" % v(vs + 1))
    em.i("buffer_store_dword %s, %s, %s, %s offen" % (v(vs), v(vs + 1), s(srdws, 4), s(S_TI)))


def phase(em, mf, reads, dmas, extra=(), dma_start=1, dma_step=None):
    n = len(mf)
    if dmas:
        if dma_step is None:
            dma_step = max(1, (n - dma_start - 1) // len(dmas))
    dpos = {dma_start + k * dma_step: d for k, d in enumerate(dmas)} if dmas else {}
    assert all(p < n for p in dpos), (dpos.keys(), n)
    ri = 0
    ex = {}
    for p, ins in extra:
        ex.setdefault(p, []).append(ins)
    for k, m in enumerate(mf):
        if k in dpos:
            em.i(dpos[k][0])
        em.i(m)
        if k in dpos:
            em.i(dpos[k][1])
        if ri < len(reads):
            em.i(reads[ri])
            ri += 1
        for ins in ex.get(k, []):
            em.i(ins)
    while ri < len(reads):
        em.i(reads[ri])
        ri += 1


SRD_X, SRD_W, SRD_WS, SRD_T, SRD_T2 = 24, 28, 32, 36, 40
S_P, S_B, S_CG, S_WV = 44, 45, 46, 47
S_WOFF, S_WOFF2, S_XOFF, S_DM, S_RD, S_DELTA, S_CNT, S_STG = 48, 49, 50, 51, 52, 53, 54, 55
S_T0, S_T1, S_T2, S_T3, S_T4, S_T5 = 56, 57, 58, 59, 60, 61
S_C0 = 62
S_C1 = 64
S_UNIT = 66
S_EX = 68
S_RT = 70
BIGOFF = 0x7F000000


def srd(em, dst, base, nbytes, add=0):
    if add:
        em.i("s_add_u32 %s, %s, 0x%x" % (s(dst), s(base), add))
        em.i("s_addc_u32 %s, %s, 0" % (s(dst + 1), s(base + 1)))
    else:
        em.i("s_mov_b32 %s, %s" % (s(dst), s(base)))
        em.i("s_mov_b32 %s, %s" % (s(dst + 1), s(base + 1)))
    em.i("s_mov_b32 %s, 0x%x" % (s(dst + 2), nbytes))
    em.i("s_mov_b32 %s, 0x20000" % s(dst + 3))


PF = int(os.environ.get("PF", "15"))
PFN = int(os.environ.get("PFN", "5"))
_pfn = [0]


def code_pf(lo, hi, idx, nper):
    _pfn[0] += 1
    h = "L_pf%d" % _pfn[0]
    L = ["s_mul_i32 s92, %s, %d" % (s(idx), 64 * nper),
         "s_min_u32 s92, s92, %s-%s-%d" % (hi, lo, 64 * nper),
         "s_getpc_b64 s[90:91]",
         "@" + h,
         "s_add_u32 s92, s92, %s-%s" % (lo, h),
         "s_add_u32 s90, s90, s92",
         "s_addc_u32 s91, s91, 0"]
    for k in range(nper):
        L.append("s_load_dword s93, s[90:91], %d" % (64 * k))
    return L


def emit_pf(em, L):
    for x in L:
        if x.startswith("@"):
            em.label(x[1:])
        elif "L_" in x or "_kernel" in x or x.startswith("s_getpc") or x.startswith("s_load"):
            em.raw("    " + x)
        else:
            em.i(x)


def advance_dma(slot, wstep):
    L = []
    L.append("s_add_u32 %s, %s, 0x%x" % (s(S_WOFF), s(S_WOFF), wstep))
    L.append("s_add_u32 %s, %s, 1" % (s(S_STG), s(S_STG)))
    L.append("s_add_u32 %s, %s, 0x80" % (s(S_XOFF), s(S_XOFF)))
    if ROT:
        L.append("s_cmp_eq_u32 %s, 0x500" % s(S_XOFF))
        L.append("s_cselect_b32 %s, 0, %s" % (s(S_XOFF), s(S_XOFF)))
        L.append("s_cselect_b32 %s, 0, %s" % (s(S_WOFF), s(S_WOFF)))
    L.append("s_cmp_ge_u32 %s, %d" % (s(S_STG), NODMA))
    L.append("s_cselect_b32 %s, 0x%x, %s" % (s(S_XOFF), BIGOFF, s(S_XOFF)))
    if ROT:
        L.append("s_cselect_b32 %s, 0x%x, %s" % (s(S_WOFF), BIGOFF, s(S_WOFF)))
    L.append("s_add_u32 %s, %s, 0x%x" % (s(S_DM), s(S_DM), slot))
    L.append("s_cmp_eq_u32 %s, 0x%x" % (s(S_DM), 3 * slot))
    L.append("s_cselect_b32 %s, 0, %s" % (s(S_DM), s(S_DM)))
    return L


def rot_init(em, typ, wstep):
    if not ROT:
        em.i("s_mov_b32 %s, 0" % s(S_WOFF))
        em.i("s_mov_b32 %s, 0" % s(S_XOFF))
        return
    if ROT >= 2:
        G = ROT
        em.i("s_and_b32 %s, %s, 1" % (s(S_XOFF), s(S_CG)))
        em.i("s_lshl_b32 %s, %s, 1" % (s(S_XOFF), s(S_XOFF)))
        em.i("s_add_u32 %s, %s, %s" % (s(S_XOFF), s(S_XOFF), s(S_B)))
        if typ:
            em.i("s_add_u32 %s, %s, 1" % (s(S_XOFF), s(S_XOFF)))
        em.i("s_mul_i32 %s, %s, %d" % (s(S_WOFF), s(S_XOFF), (256 + G - 1) // G))
        em.i("s_lshr_b32 %s, %s, 8" % (s(S_WOFF), s(S_WOFF)))
        em.i("s_mul_i32 %s, %s, %d" % (s(S_WOFF), s(S_WOFF), G))
        em.i("s_sub_u32 %s, %s, %s" % (s(S_XOFF), s(S_XOFF), s(S_WOFF)))
        em.i("s_mul_i32 %s, %s, %d" % (s(S_XOFF), s(S_XOFF), round(160 / G)))
        em.i("s_lshr_b32 %s, %s, 4" % (s(S_XOFF), s(S_XOFF)))
        em.i("s_mul_i32 %s, %s, 0x%x" % (s(S_WOFF), s(S_XOFF), wstep))
        em.i("s_lshl_b32 %s, %s, 7" % (s(S_XOFF), s(S_XOFF)))
        for tt in range(11):
            assert (tt * ((256 + G - 1) // G)) >> 8 == tt // G
        return
    em.i("s_and_b32 %s, %s, 1" % (s(S_XOFF), s(S_CG)))
    em.i("s_mul_i32 %s, %s, 5" % (s(S_XOFF), s(S_XOFF)))
    em.i("s_add_u32 %s, %s, %s" % (s(S_XOFF), s(S_XOFF), s(S_B)))
    if typ:
        em.i("s_add_u32 %s, %s, 2" % (s(S_XOFF), s(S_XOFF)))
    em.i("s_sub_u32 %s, %s, 10" % (s(S_WOFF), s(S_XOFF)))
    em.i("s_cmp_ge_u32 %s, 10" % s(S_XOFF))
    em.i("s_cselect_b32 %s, %s, %s" % (s(S_XOFF), s(S_WOFF), s(S_XOFF)))
    em.i("s_mul_i32 %s, %s, 0x%x" % (s(S_WOFF), s(S_XOFF), wstep))
    em.i("s_lshl_b32 %s, %s, 7" % (s(S_XOFF), s(S_XOFF)))


def advance_rd(slot):
    L = []
    L.append("s_add_u32 %s, %s, 0x%x" % (s(S_RT), s(S_RD), slot))
    L.append("s_cmp_eq_u32 %s, 0x%x" % (s(S_RT), 3 * slot))
    L.append("s_cselect_b32 %s, 0, %s" % (s(S_RT), s(S_RT)))
    L.append("s_sub_u32 %s, %s, %s" % (s(S_DELTA), s(S_RT), s(S_RD)))
    L.append("s_mov_b32 %s, %s" % (s(S_RD), s(S_RT)))
    return L


def gen_q(em, rh, hp):
    w = 2 * rh + hp
    tag = "q%d" % w
    ha, hb = 2 * hp, 2 * hp + 1
    VL = 0
    VT = 1
    VWD = 8
    VXD = 12
    VXA0, VXA1, VWM, VWR = 18, 19, 20, 21
    ACC = 24
    accM = lambda t, c: ACC + (t * 6 + c) * 4
    accR = lambda n: ACC + 96 + n * 4
    accH = lambda n: ACC + 120 + n * 4
    NACC = 132
    EPI = 156
    FR = lambda st, k: st * 52 + k * 4
    wp = [range(0, 4), range(4, 8), range(8, 12), range(12, 15)][w]
    xi = [range(0, 4), range(4, 8), range(8, 12), range(12, 18)][w]
    em.label("L_%s" % tag)
    em.fence()
    em.i("v_lshrrev_b32 %s, 3, %s" % (v(VT), v(VL)))
    em.i("v_mul_u32_u24 %s, 0xa00, %s" % (v(VT), v(VT)))
    em.i("v_lshrrev_b32 %s, 4, %s" % (v(VT + 1), v(VL)))
    em.i("v_xor_b32 %s, %s, %s" % (v(VT + 1), v(VT + 1), v(VL)))
    em.i("v_and_b32 %s, 7, %s" % (v(VT + 1), v(VT + 1)))
    em.i("v_lshl_add_u32 %s, %s, 4, %s" % (v(VT + 2), v(VT + 1), v(VT)))
    em.i("v_xor_b32 %s, 64, %s" % (v(VT + 3), v(VT + 2)))
    em.i("s_lshl_b32 %s, %s, 8" % (s(S_T0), s(S_B)))
    em.i("s_add_u32 %s, %s, %s" % (s(S_T0), s(S_T0), s(S_P)))
    em.i("s_mul_i32 %s, %s, 0x500" % (s(S_T0), s(S_T0)))
    em.i("s_sub_u32 %s, %s, 0x%x" % (s(S_T1), s(S_T0), 32 * 1280))
    em.i("s_cmp_eq_u32 %s, 0" % s(S_B))
    em.i("s_cselect_b32 %s, %s, %s" % (s(S_T2), s(S_T0), s(S_T1)))
    for n, i in enumerate(xi):
        src = VT + 2 + (i & 1)
        if i < 2:
            em.i("s_add_u32 %s, %s, 0x%x" % (s(S_T3), s(S_T2), 20480))
        else:
            em.i("s_add_u32 %s, %s, 0x%x" % (s(S_T3), s(S_T1), 20480 * i))
        em.i("v_add_u32 %s, %s, %s" % (v(VXD + n), s(S_T3), v(src)))
    em.i("s_mul_i32 %s, %s, 160" % (s(S_T4), s(S_CG)))
    for n, i in enumerate(wp):
        d = VWD + n
        em.i("v_add_u32 %s, 0x%x, %s" % (v(VT), 64 * i, v(VL)))
        em.i("v_mul_u32_u24 %s, 0x889, %s" % (v(VT + 1), v(VT)))
        em.i("v_lshrrev_b32 %s, 16, %s" % (v(VT + 1), v(VT + 1)))
        em.i("v_mul_u32_u24 %s, 30, %s" % (v(VT + 4), v(VT + 1)))
        em.i("v_sub_u32 %s, %s, %s" % (v(VT), v(VT), v(VT + 4)))
        em.i("v_mul_u32_u24 %s, 0xcd, %s" % (v(VT + 4), v(VT)))
        em.i("v_lshrrev_b32 %s, 11, %s" % (v(VT + 4), v(VT + 4)))
        em.i("v_mul_u32_u24 %s, 0x460, %s" % (v(VT + 4), v(VT + 4)))
        em.i("v_lshl_add_u32 %s, %s, 4, %s" % (v(VT), v(VT), v(VT + 4)))
        em.i("v_and_b32 %s, 0x13, %s" % (v(VT + 4), v(VT + 1)))
        em.i("v_and_b32 %s, 4, %s" % (v(VT + 5), v(VT + 1)))
        em.i("v_lshl_or_b32 %s, %s, 1, %s" % (v(VT + 4), v(VT + 5), v(VT + 4)))
        em.i("v_and_b32 %s, 8, %s" % (v(VT + 5), v(VT + 1)))
        em.i("v_lshrrev_b32 %s, 1, %s" % (v(VT + 5), v(VT + 5)))
        em.i("v_or_b32 %s, %s, %s" % (v(VT + 4), v(VT + 4), v(VT + 5)))
        em.i("v_mul_u32_u24 %s, 0xf00, %s" % (v(VT + 4), v(VT + 4)))
        em.i("v_add3_u32 %s, %s, %s, %s" % (v(d), v(VT), v(VT + 4), s(S_T4)))

    if TCH:
        wst = 64 * 3840
        em.i("s_and_b32 %s, %s, 1" % (s(S_T0), s(S_CG)))
        em.i("s_lshl_b32 %s, %s, 1" % (s(S_T1), s(S_B)))
        em.i("s_add_u32 %s, %s, %s" % (s(S_T0), s(S_T0), s(S_T1)))
        em.i("s_mul_i32 %s, %s, %d" % (s(S_T0), s(S_T0), 4 * 3840))
        em.i("s_lshr_b32 %s, %s, 1" % (s(S_T1), s(S_CG)))
        em.i("s_mul_i32 %s, %s, 320" % (s(S_T1), s(S_T1)))
        em.i("s_add_u32 %s, %s, %s" % (s(S_T0), s(S_T0), s(S_T1)))
        em.i("v_mul_u32_u24 %s, 86, %s" % (v(VT), v(VL)))
        em.i("v_lshrrev_b32 %s, 8, %s" % (v(VT), v(VT)))
        em.i("v_mul_u32_u24 %s, 0x380, %s" % (v(VT), v(VT)))
        em.i("v_lshl_add_u32 %s, %s, 7, %s" % (v(VT), v(VL), v(VT)))
        em.i("v_add_u32 %s, %s, %s" % (v(VT), s(S_T0), v(VT)))
        em.i("v_mov_b32 %s, 0x%x" % (v(VT + 4), BIGOFF))
        em.i("v_cmp_gt_u32 vcc, 36, %s" % v(VL))
        em.i("v_cndmask_b32 %s, %s, %s, vcc" % (v(VTW1), v(VT + 4), v(VT)))
    dma = []
    xl = [("s_add_u32 m0, %s, 0x%x" % (s(S_DM), 1024 * i),
           "buffer_load_dwordx4 %s, %s, %s offen lds" % (v(VXD + n), s(SRD_X, 4), s(S_XOFF))) for n, i in enumerate(xi)]
    wl = []
    for n, i in enumerate(wp):
        wl.append(("s_add_u32 m0, %s, 0x%x" % (s(S_DM), Q_XSZ + 1024 * i),
                   "buffer_load_dwordx4 %s, %s, %s offen lds" % (v(VWD + n), s(SRD_W, 4), s(S_WOFF))))
    for n, i in enumerate(wp):
        wl.append(("s_add_u32 m0, %s, 0x%x" % (s(S_DM), Q_XSZ + 1024 * (i + 15)),
                   "buffer_load_dwordx4 %s, %s, %s offen lds" % (v(VWD + n), s(SRD_W, 4), s(S_WOFF2))))
    dma = xl + wl
    assert len(dma) == 12
    adv = advance_dma(Q_SLOT, 64 * 3840) + ["s_add_u32 %s, %s, 0x%x" % (s(S_WOFF2), s(S_WOFF), 32 * 3840)]

    rot_init(em, 0, 64 * 3840)
    em.i("s_add_u32 %s, %s, 0x%x" % (s(S_WOFF2), s(S_WOFF), 32 * 3840))
    em.i("s_mov_b32 %s, 0" % s(S_DM))
    em.i("s_mov_b32 %s, 0" % s(S_STG))
    em.i("s_mov_b32 %s, 0" % s(S_RD))
    em.i("s_waitcnt lgkmcnt(0)")
    VS = 22
    stamp_put(em, VS, 0)
    stamp_put(em, VS, 1)
    stamp_get(em, 0)
    srd(em, SRD_X, 4, X_BYTES)
    srd(em, SRD_W, 6, WQKV_BYTES)
    if TCH and w == TWV[0]:
        em.i("s_mov_b32 %s, 0x%x" % (s(S_TW), 64 * 3840))
        em.i("buffer_load_dword %s, %s, %s, %s offen" % (v(VTDST), v(VTW1), s(SRD_W, 4), s(S_TW)))
    srd(em, SRD_WS, 20, WS_SIZE)
    for m, l in dma:
        em.i(m)
        em.i(l)
    for x in adv:
        em.i(x)
    if PF & 1 and QT:
        em.i("s_and_b32 s94, %s, 1" % s(S_CG))
        em.i("s_lshl1_add_u32 s94, %s, s94" % s(S_B))
        emit_pf(em, code_pf("L_%s_tail" % tag, "L_%s_end" % tag, 94, 4))
    F = []
    F.append("v_and_b32 %s, 15, %s" % (v(VT), v(VL)))
    F.append("v_lshrrev_b32 %s, 1, %s" % (v(VT + 1), v(VT)))
    F.append("v_lshrrev_b32 %s, 4, %s" % (v(VT + 2), v(VL)))
    F.append("v_xor_b32 %s, %s, %s" % (v(VT + 1), v(VT + 1), v(VT + 2)))
    F.append("v_lshlrev_b32 %s, 4, %s" % (v(VT + 1), v(VT + 1)))
    F.append("v_lshl_add_u32 %s, %s, 7, %s" % (v(VXA0), v(VT), v(VT + 1)))
    F.append("v_xor_b32 %s, 64, %s" % (v(VXA1), v(VXA0)))
    F.append("v_lshrrev_b32 %s, 5, %s" % (v(VT), v(VL)))
    F.append("v_lshlrev_b32 %s, 4, %s" % (v(VT), v(VT)))
    F.append("v_bfe_u32 %s, %s, 4, 1" % (v(VT + 1), v(VL)))
    F.append("v_lshl_add_u32 %s, %s, 2, %s" % (v(VT), v(VT + 1), v(VT)))
    F.append("v_bfe_u32 %s, %s, 2, 2" % (v(VT + 1), v(VL)))
    F.append("v_add_u32 %s, %s, %s" % (v(VT), v(VT), v(VT + 1)))
    F.append("v_mul_u32_u24 %s, 0x1e0, %s" % (v(VT), v(VT)))
    F.append("v_and_b32 %s, 3, %s" % (v(VT + 1), v(VL)))
    F.append("v_lshl_add_u32 %s, %s, 3, %s" % (v(VWM), v(VT + 1), v(VT)))
    F.append("v_mul_u32_u24 %s, 40, %s" % (v(VT + 1), v(VT + 1)))
    F.append("v_add3_u32 %s, %s, %s, 32" % (v(VWR), v(VT), v(VT + 1)))
    for r in range(ACC, ACC + NACC, 2):
        F.append("v_mov_b64 %s, 0" % v(r, 2))
    VE = EPI
    VHa, VHb, VRr = EPI + 2, EPI + 12, EPI + 22
    KP = (EPI + 32, EPI + 36)
    MC, MP, MPF = EPI + 40, EPI + 44, EPI + 48
    ONES = EPI + 52
    VMA, VMB = EPI + 56, EPI + 57
    QR = EPI + 58
    MKP, MKC = 222, 6

    class _L:
        def __init__(self):
            self.l = []

        def i(self, x):
            self.l.append(x)
    em_real = em
    em = _L()
    NEG = f2u(-1.0e30)
    em.i("v_and_b32 %s, 15, %s" % (v(VT), v(VL)))
    em.i("v_lshrrev_b32 %s, 4, %s" % (v(VT + 1), v(VL)))
    em.i("v_lshlrev_b32 %s, 2, %s" % (v(VT + 2), v(VT + 1)))
    em.i("v_sub_u32 %s, %s, %s" % (v(VT + 2), v(VT), v(VT + 2)))
    em.i("v_mov_b32 %s, 0x%x" % (v(VT + 3), NEG))
    for r in range(4):
        em.i("v_subrev_u32 %s, %d, %s" % (v(VT + 4), r, v(VT + 2)))
        em.i("v_cmp_gt_u32 vcc, 8, %s" % v(VT + 4))
        em.i("v_cndmask_b32 %s, %s, 0, vcc" % (v(MC + r), v(VT + 3)))
        em.i("v_cmp_ge_i32 vcc, -9, %s" % v(VT + 4))
        em.i("v_cndmask_b32 %s, %s, 0, vcc" % (v(MP + r), v(VT + 3)))
    if rh == 0:
        em.i("s_cmp_eq_u32 %s, 0" % s(S_B))
        em.i("s_cselect_b64 %s, -1, 0" % s(S_EX, 2))
        for r in range(4):
            em.i("v_cndmask_b32 %s, %s, %s, %s" % (v(MPF + r), v(MP + r), v(VT + 3), s(S_EX, 2)))
    for r in range(4):
        em.i("v_mov_b32 %s, 0x3f803f80" % v(ONES + r))
    em.i("v_cmp_eq_u32 vcc, %d, %s" % (ha, v(VT + 1)))
    em.i("v_cndmask_b32 %s, 0, -1, vcc" % v(VMA))
    em.i("v_cmp_eq_u32 %s, %d, %s" % (s(S_EX, 2), hb, v(VT + 1)))
    em.i("v_cndmask_b32 %s, 0, -1, %s" % (v(VMB), s(S_EX, 2)))
    em.i("s_mov_b32 %s, 0x%x" % (s(S_C0), f2u(20.0 ** -0.5 * math.log2(math.e))))
    em.i("s_mov_b32 %s, 0x%x" % (s(S_C0 + 1), f2u(20.0 ** -0.5 * math.log2(math.e))))
    em.i("s_lshl_b32 %s, %s, 6" % (s(S_T0), s(S_P)))
    em.i("s_lshl_b32 %s, %s, 3" % (s(S_T1), s(S_B)))
    em.i("s_add_u32 %s, %s, %s" % (s(S_T0), s(S_T0), s(S_T1)))
    em.i("s_add_u32 %s, %s, %d" % (s(S_T0), s(S_T0), 4 * rh))
    em.i("s_mul_i32 %s, %s, 0x%x" % (s(S_T0), s(S_T0), TILE_B))
    em.i("s_lshl_b32 %s, %s, 11" % (s(S_T1), s(S_CG)))
    em.i("s_add_u32 %s, %s, %s" % (s(S_T1), s(S_T1), s(S_T0)))
    em.i("s_add_u32 %s, %s, %d" % (s(S_T1), s(S_T1), 1024 * hp))
    em.i("s_lshr_b32 %s, %s, 1" % (s(S_T2), s(S_CG)))
    em.i("s_lshl_b32 %s, %s, 10" % (s(S_T2), s(S_T2)))
    em.i("s_add_u32 %s, %s, %s" % (s(S_T2), s(S_T2), s(S_T0)))
    em.i("s_and_b32 %s, %s, 1" % (s(S_T3), s(S_CG)))
    em.i("s_lshl_b32 %s, %s, 3" % (s(S_T3), s(S_T3)))
    em.i("s_add_u32 %s, %s, %s" % (s(S_T2), s(S_T2), s(S_T3)))
    em.i("s_add_u32 %s, %s, %d" % (s(S_T2), s(S_T2), 16 * 1024))
    em.i("v_lshlrev_b32 %s, 4, %s" % (v(VE + 1), v(VL)))
    em.i("s_movk_i32 %s, 0x7fff" % s(S_T3))
    em.i("s_lshl1_add_u32 %s, %s, 1" % (s(S_T3), s(S_T3)))
    for dst, src in ((MKP, MP), (MKC, MC)):
        for h in range(2):
            em.i("v_ashrrev_i32 %s, 31, %s" % (v(VT), v(src + 2 * h)))
            em.i("v_ashrrev_i32 %s, 31, %s" % (v(VT + 1), v(src + 2 * h + 1)))
            em.i("v_bfi_b32 %s, %s, %s, %s" % (v(VT), s(S_T3), v(VT), v(VT + 1)))
            em.i("v_not_b32 %s, %s" % (v(dst + h), v(VT)))
    em.i("v_lshlrev_b32 %s, 3, %s" % (v(VE), v(VL)))
    em.i("v_add_u32 %s, 0x%x, %s" % (v(VE), XCH, v(VE)))
    PRE = em.l
    em = em_real
    if QT:
        F += PRE
    per = (len(F) + 11) // 12
    cut = [min(len(F), per * n) for n in range(13)]
    cut = [c - 1 if 0 < c < len(F) and F[c - 1].startswith("s_cmp") else c for c in cut]
    for n, (m, l) in enumerate(dma):
        em.i(m)
        em.i(l)
        for x in F[cut[n]:cut[n + 1]]:
            em.i(x)
    for x in adv:
        em.i(x)
    if TCH:
        em.i("s_mov_b32 %s, 0x%x" % (s(S_TW), 2 * 64 * 3840 if w == TWV[1] else 3 * 64 * 3840 if w == TWV[2] else BIGOFF))
        em.i("buffer_load_dword %s, %s, %s, %s offen" % (v(VTDST), v(VTW1), s(SRD_W, 4), s(S_TW)))
        em.i("s_mov_b32 %s, 0x%x" % (s(S_TW), 4 * 64 * 3840 if w == TWV[3] else BIGOFF))
    if not EARLY:
        for m, l in dma[:6]:
            em.i(m)
            em.i(l)

    def reads(st, ks):
        L = []
        xa = VXA1 if ks else VXA0
        R = []
        for t in range(4):
            R.append("ds_read_b128 %s, %s offset:%d" % (a(FR(st, t), 4), v(xa), (1 + 4 * rh + t) * 2048))
        R.append("ds_read_b128 %s, %s offset:0" % (a(FR(st, 4), 4), v(xa)))
        Wl = []
        cols = [(0, ha), (0, hb), (1, ha), (1, hb), (2, ha), (2, hb)]
        for c, (P, hd) in enumerate(cols):
            for h in range(2):
                Wl.append("ds_read_b64_tr_b16 %s, %s offset:%d" % (
                    a(FR(st, 5 + c) + 2 * h, 2), v(VWM), Q_XSZ + (32 * ks + 8 * h) * 480 + 160 * P + 40 * hd))
        for c, P in enumerate([0 if hp == 0 else 2, 1]):
            for h in range(2):
                Wl.append("ds_read_b64_tr_b16 %s, %s offset:%d" % (
                    a(FR(st, 11 + c) + 2 * h, 2), v(VWR), Q_XSZ + (32 * ks + 8 * h) * 480 + 160 * P))
        return R + Wl

    krt = (0, 1) if hp == 0 else (2, 3)

    def mfmas(st):
        X = lambda t: a(FR(st, t), 4)
        XH = a(FR(st, 4), 4)
        W = lambda c: a(FR(st, 5 + c), 4)
        R0, R1 = a(FR(st, 11), 4), a(FR(st, 12), 4)
        L = []
        for t in range(4):
            for c in range(4):
                L.append(mfma(v(accM(t, c), 4), W(c), X(t)))
            for c in (4, 5):
                L.append(mfma(v(accM(t, c), 4), X(t), W(c)))
            if hp == 0:
                L.append(mfma(v(accR(t), 4), R0, X(t)))
            else:
                L.append(mfma(v(accR(t), 4), X(t), R0))
        for n, t in enumerate(krt):
            L.append(mfma(v(accR(4 + n), 4), R1, X(t)))
        if rh == 0:
            L.append(mfma(v(accH(0), 4), W(2), XH))
            L.append(mfma(v(accH(1), 4), W(3), XH))
            if hp == 0:
                L.append(mfma(v(accH(2), 4), R1, XH))
            else:
                L.append(mfma(v(accH(2), 4), XH, R0))
        else:
            L.append(mfma(v(accH(0), 4), XH, W(4)))
            L.append(mfma(v(accH(1), 4), XH, W(5)))
        return L

    stamp_get(em, 3)
    em.i("s_waitcnt vmcnt(%d)" % ((12 if EARLY else 18) + TCH))
    stamp_get(em, 1)
    em.i("s_barrier")
    stamp_get(em, 2)
    stamp_put(em, VS, 0, True)
    stamp_put(em, VS, 3)
    for r in reads(0, 0):
        em.i(r)
    if EARLY:
        for m, l in dma[:6]:
            em.i(m)
            em.i(l)
    em.i("s_mov_b32 %s, %d" % (s(S_CNT), 9 if QT else 10))
    em.label("L_%s_loop" % tag)
    top = em.mark()
    em.i("s_waitcnt lgkmcnt(0)")
    stamp_get(em, 0)
    stamp_put(em, VS, 1)
    stamp_put(em, VS, 2)
    ex = [(24 + k // 3, x) for k, x in enumerate(adv)]
    ex += [(22, x) for x in advance_rd(Q_SLOT)]
    ex.append((23, "v_add_u32 %s, %s, %s" % (v(VXA0), s(S_DELTA), v(VXA0))))
    ex.append((29, "v_add_u32 %s, %s, %s" % (v(VXA1), s(S_DELTA), v(VXA1))))
    ex.append((30, "v_add_u32 %s, %s, %s" % (v(VWM), s(S_DELTA), v(VWM))))
    ex.append((30, "v_add_u32 %s, %s, %s" % (v(VWR), s(S_DELTA), v(VWR))))
    phase(em, mfmas(0), reads(1, 1), dma[6:], extra=ex, dma_start=1, dma_step=4)
    stamp_get(em, 3)
    em.i("s_waitcnt vmcnt(%d) lgkmcnt(0)" % (12 + TCH))
    stamp_get(em, 1)
    em.i("s_barrier")
    stamp_get(em, 2)
    stamp_put(em, VS, 0)
    stamp_put(em, VS, 3)
    tq = []
    if TCH:
        tq = [(0, "buffer_load_dword %s, %s, %s, %s offen" % (v(VTDST), v(VTW1), s(SRD_W, 4), s(S_TW))),
              (2, "s_add_u32 %s, %s, 0x%x" % (s(S_TW), s(S_TW), 64 * 3840))]
    phase(em, mfmas(1), reads(0, 0), dma[:6], extra=tq + [(26, "s_sub_u32 %s, %s, 1" % (s(S_CNT), s(S_CNT))),
                                                    (27, "s_cmp_lg_u32 %s, 0" % s(S_CNT))], dma_start=1, dma_step=4)
    em.i("s_cbranch_scc1 L_%s_loop" % tag)
    em.check_backedge(top)
    Rs = lambda ty, tl: (ty * 9 + tl) * 512
    PMs = lambda wh, kd, hd: (27 + wh * 8 + kd * 4 + hd) * 512

    def cvt2(dst, src):
        return ["v_cvt_pk_bf16_f32 %s, %s, %s" % (v(dst), v(src), v(src + 1)),
                "v_cvt_pk_bf16_f32 %s, %s, %s" % (v(dst + 1), v(src + 2), v(src + 3))]

    if QT:
        em.label("L_%s_tail" % tag)
        em.i("s_waitcnt lgkmcnt(0)")
        stamp_get(em, 0)
        stamp_put(em, VS, 1)
        stamp_put(em, VS, 2)
        phase(em, mfmas(0), reads(1, 1), [])
        stamp_get(em, 3)
        em.i("s_waitcnt lgkmcnt(0)")
        stamp_get(em, 1)
        stamp_get(em, 2)
        stamp_put(em, VS, 0, True)
        stamp_put(em, VS, 3)
        mf = {int(m.split()[1][2:].split(":")[0]): m for m in mfmas(1)}
        post = {}
        wr = []
        for tt in range(4):
            wr.append((accR(tt), Rs(0 if hp == 0 else 2, 1 + 4 * rh + tt)))
        for n, tt in enumerate(krt):
            wr.append((accR(4 + n), Rs(1, 1 + 4 * rh + tt)))
        if rh == 0:
            wr += [(accH(0), PMs(0, 0, ha)), (accH(1), PMs(0, 0, hb)), (accH(2), Rs(1 if hp == 0 else 2, 0))]
        else:
            wr += [(accH(0), PMs(0, 1, ha)), (accH(1), PMs(0, 1, hb))]
        order = []
        for r, off in wr:
            order.append(r)
            post[r] = cvt2(r, r) + ["ds_write_b64 %s, %s offset:%d" % (v(VE), v(r, 2), off)]
        late = {}
        for tt in (3, 0, 1, 2):
            for e, c in ((0, 2), (1, 3)):
                r = accM(tt, c)
                order.append(r)
                post[r] = cvt2(r, r)
                if tt == 3 and rh == 0:
                    post[r].append("ds_write_b64 %s, %s offset:%d" % (v(VE), v(r, 2), PMs(1, 0, (ha, hb)[e])))
                late[r] = "ds_read_b64 %s, %s offset:%d" % (v(r + 2, 2), v(VE), Rs(1, 1 + 4 * rh + tt))
            for e, c in ((0, 4), (1, 5)):
                r = accM(tt, c)
                dst = (VHa, VHb)[e] + 2 + 2 * tt
                order.append(r)
                post[r] = cvt2(dst, r)
                if tt == 3 and rh == 0:
                    post[r].append("ds_write_b64 %s, %s offset:%d" % (v(VE), v(dst, 2), PMs(1, 1, (ha, hb)[e])))
        for tt in range(4):
            for c in (0, 1):
                r = accM(tt, c)
                order.append(r)
                post[r] = cvt2(r, r)
        assert sorted(order) == sorted(mf), (order, mf.keys())
        nwr = sum(1 for r in order for x in post[r] if x.startswith("ds_write"))
        XR = []
        for tt in range(4):
            XR.append("ds_read_b64 %s, %s offset:%d" % (v(QR + 2 * tt, 2), v(VE), Rs(0, 1 + 4 * rh + tt)))
        for e in range(2):
            XR.append("ds_read_b64 %s, %s offset:%d" % (v(KP[e], 2), v(VE), PMs(rh, 0, (ha, hb)[e])))
            XR.append("ds_read_b64 %s, %s offset:%d" % (v(KP[e] + 2, 2), v(VE), Rs(1, 4 * rh)))
            XR.append("ds_read_b64 %s, %s offset:%d" % (v((VHa, VHb)[e], 2), v(VE), PMs(rh, 1, (ha, hb)[e])))
        for tt in range(5):
            XR.append("ds_read_b64 %s, %s offset:%d" % (v(VRr + 2 * tt, 2), v(VE), Rs(2, 4 * rh + tt)))
        q = []
        st = {"w": 0, "bar": None, "done": set(), "lg": 0}
        BARK = int(os.environ.get("BARK", "24"))

        def put(x, r=None):
            if x.startswith("ds_"):
                if st["lg"] >= 15:
                    em.i("s_waitcnt lgkmcnt(7)")
                    st["lg"] = 7
                st["lg"] += 1
            em.i(x)
            if x.startswith("ds_write"):
                st["w"] += 1

        def barrier():
            em.i("s_waitcnt lgkmcnt(0)")
            st["lg"] = 0
            stamp_get(em, 1)
            em.i("s_barrier")
            stamp_get(em, 2)
            st["bar"] = True
            q[:0] = [(0, x, None) for x in XR] + [(0, late[r], None) for r in late if r in st["done"]]

        def drain(k, n):
            while n and q and q[0][0] <= k:
                _, x, r = q.pop(0)
                put(x)
                n -= 1
                if r is not None and not any(z[2] == r for z in q):
                    st["done"].add(r)
                    if st["bar"] and r in late:
                        q.insert(0, (0, late[r], None))
        for k, r in enumerate(order):
            em.i(mf[r])
            q.extend((k + 3, x, r) for x in post[r])
            drain(k, 3)
            if not st["bar"] and st["w"] == nwr and k >= BARK:
                barrier()
        if not st["bar"]:
            while st["w"] < nwr:
                drain(99, 1)
            barrier()
        drain(99, 999)
        stamp_get(em, 0)
        stamp_put(em, VS, 1, True)
        stamp_put(em, VS, 2)
        stamp_put(em, VS, 0)
        em.i("s_waitcnt lgkmcnt(0)")
        stamp(em, VS)
        stamp(em, VS)
        stamp(em, VS)
        stamp(em, VS)
        stamp(em, VS)
        for tt in range(4):
            for e in range(2):
                for d in range(2):
                    em.i("v_and_b32 %s, %s, %s" % (v(accM(tt, e) + 2 + d), v((VMA, VMB)[e]), v(QR + 2 * tt + d)))
    else:
        stamp_get(em, 0)
        em.i("s_waitcnt vmcnt(0) lgkmcnt(0)")
        stamp_put(em, VS, 1)
        stamp_put(em, VS, 2)
        stamp_put(em, VS, 0)
        stamp_get(em, 1)
        em.i("s_barrier")
        stamp_get(em, 2)
        Rs = lambda ty, tl: (ty * 9 + tl) * 512
        PMs = lambda wh, kd, hd: (27 + wh * 8 + kd * 4 + hd) * 512
        VE = EPI
        VHa, VHb, VRr = EPI + 2, EPI + 12, EPI + 22
        KP = (EPI + 32, EPI + 36)
        MC, MP, MPF = EPI + 40, EPI + 44, EPI + 48
        ONES = EPI + 52
        VMA, VMB = EPI + 56, EPI + 57
        QR = EPI + 58
        em.i("v_lshlrev_b32 %s, 3, %s" % (v(VE), v(VL)))

        def cvt2(dst, src):
            return ["v_cvt_pk_bf16_f32 %s, %s, %s" % (v(dst), v(src), v(src + 1)),
                    "v_cvt_pk_bf16_f32 %s, %s, %s" % (v(dst + 1), v(src + 2), v(src + 3))]

        wr = []
        for t in range(4):
            wr.append((accR(t), Rs(0 if hp == 0 else 2, 1 + 4 * rh + t)))
        for n, t in enumerate(krt):
            wr.append((accR(4 + n), Rs(1, 1 + 4 * rh + t)))
        if rh == 0:
            wr.append((accH(0), PMs(0, 0, ha)))
            wr.append((accH(1), PMs(0, 0, hb)))
            wr.append((accH(2), Rs(1 if hp == 0 else 2, 0)))
        else:
            wr.append((accH(0), PMs(0, 1, ha)))
            wr.append((accH(1), PMs(0, 1, hb)))
        for r, off in wr:
            for x in cvt2(r, r):
                em.i(x)
            em.i("ds_write_b64 %s, %s offset:%d" % (v(VE), v(r, 2), off))
        for t in (3, 0, 1, 2):
            for e, c in ((0, 2), (1, 3)):
                for x in cvt2(accM(t, c), accM(t, c)):
                    em.i(x)
                if t == 3 and rh == 0:
                    em.i("ds_write_b64 %s, %s offset:%d" % (v(VE), v(accM(t, c), 2), PMs(1, 0, (ha, hb)[e])))
            for e, c in ((0, 4), (1, 5)):
                dst = (VHa, VHb)[e] + 2 + 2 * t
                for x in cvt2(dst, accM(t, c)):
                    em.i(x)
                if t == 3 and rh == 0:
                    em.i("ds_write_b64 %s, %s offset:%d" % (v(VE), v(dst, 2), PMs(1, 1, (ha, hb)[e])))
            if t == 3:
                em.i("s_waitcnt lgkmcnt(0)")
                stamp_put(em, VS, 1)
                stamp_put(em, VS, 2)
                stamp_get(em, 1)
                em.i("s_barrier")
                stamp_get(em, 2)
                for tt in range(4):
                    em.i("ds_read_b64 %s, %s offset:%d" % (v(QR + 2 * tt, 2), v(VE), Rs(0, 1 + 4 * rh + tt)))
                for e in range(2):
                    em.i("ds_read_b64 %s, %s offset:%d" % (v(KP[e], 2), v(VE), PMs(rh, 0, (ha, hb)[e])))
                    em.i("ds_read_b64 %s, %s offset:%d" % (v(KP[e] + 2, 2), v(VE), Rs(1, 4 * rh)))
                    em.i("ds_read_b64 %s, %s offset:%d" % (v((VHa, VHb)[e], 2), v(VE), PMs(rh, 1, (ha, hb)[e])))
                for tt in range(5):
                    em.i("ds_read_b64 %s, %s offset:%d" % (v(VRr + 2 * tt, 2), v(VE), Rs(2, 4 * rh + tt)))
                em.i("ds_read_b64 %s, %s offset:%d" % (v(accM(3, 2) + 2, 2), v(VE), Rs(1, 4 + 4 * rh)))
                em.i("s_waitcnt lgkmcnt(8)")
                em.i("ds_read_b64 %s, %s offset:%d" % (v(accM(3, 3) + 2, 2), v(VE), Rs(1, 4 + 4 * rh)))
            else:
                em.i("ds_read_b64 %s, %s offset:%d" % (v(accM(t, 2) + 2, 2), v(VE), Rs(1, 1 + 4 * rh + t)))
                em.i("ds_read_b64 %s, %s offset:%d" % (v(accM(t, 3) + 2, 2), v(VE), Rs(1, 1 + 4 * rh + t)))
        for t in range(4):
            for c in (0, 1):
                for x in cvt2(accM(t, c), accM(t, c)):
                    em.i(x)
        NEG = f2u(-1.0e30)
        em.i("v_and_b32 %s, 15, %s" % (v(VT), v(VL)))
        em.i("v_lshrrev_b32 %s, 4, %s" % (v(VT + 1), v(VL)))
        em.i("v_lshlrev_b32 %s, 2, %s" % (v(VT + 2), v(VT + 1)))
        em.i("v_sub_u32 %s, %s, %s" % (v(VT + 2), v(VT), v(VT + 2)))
        em.i("v_mov_b32 %s, 0x%x" % (v(VT + 3), NEG))
        for r in range(4):
            em.i("v_subrev_u32 %s, %d, %s" % (v(VT + 4), r, v(VT + 2)))
            em.i("v_cmp_gt_u32 vcc, 8, %s" % v(VT + 4))
            em.i("v_cndmask_b32 %s, %s, 0, vcc" % (v(MC + r), v(VT + 3)))
            em.i("v_cmp_ge_i32 vcc, -9, %s" % v(VT + 4))
            em.i("v_cndmask_b32 %s, %s, 0, vcc" % (v(MP + r), v(VT + 3)))
        if rh == 0:
            em.i("s_cmp_eq_u32 %s, 0" % s(S_B))
            em.i("s_cselect_b64 %s, -1, 0" % s(S_EX, 2))
            for r in range(4):
                em.i("v_cndmask_b32 %s, %s, %s, %s" % (v(MPF + r), v(MP + r), v(VT + 3), s(S_EX, 2)))
        for r in range(4):
            em.i("v_mov_b32 %s, 0x3f803f80" % v(ONES + r))
        em.i("v_cmp_eq_u32 vcc, %d, %s" % (ha, v(VT + 1)))
        em.i("v_cndmask_b32 %s, 0, -1, vcc" % v(VMA))
        em.i("v_cmp_eq_u32 %s, %d, %s" % (s(S_EX, 2), hb, v(VT + 1)))
        em.i("v_cndmask_b32 %s, 0, -1, %s" % (v(VMB), s(S_EX, 2)))
        em.i("s_mov_b32 %s, 0x%x" % (s(S_C0), f2u(20.0 ** -0.5 * math.log2(math.e))))
        em.i("s_mov_b32 %s, 0x%x" % (s(S_C0 + 1), f2u(20.0 ** -0.5 * math.log2(math.e))))
        em.i("s_waitcnt lgkmcnt(0)")
        stamp_put(em, VS, 1)
        stamp_put(em, VS, 2)
        stamp(em, VS)
        for t in range(4):
            for e in range(2):
                for d in range(2):
                    em.i("v_and_b32 %s, %s, %s" % (v(accM(t, e) + 2 + d), v((VMA, VMB)[e]), v(QR + 2 * t + d)))
        em.i("s_lshl_b32 %s, %s, 6" % (s(S_T0), s(S_P)))
        em.i("s_lshl_b32 %s, %s, 3" % (s(S_T1), s(S_B)))
        em.i("s_add_u32 %s, %s, %s" % (s(S_T0), s(S_T0), s(S_T1)))
        em.i("s_add_u32 %s, %s, %d" % (s(S_T0), s(S_T0), 4 * rh))
        em.i("s_mul_i32 %s, %s, 0x%x" % (s(S_T0), s(S_T0), TILE_B))
        em.i("s_lshl_b32 %s, %s, 11" % (s(S_T1), s(S_CG)))
        em.i("s_add_u32 %s, %s, %s" % (s(S_T1), s(S_T1), s(S_T0)))
        em.i("s_add_u32 %s, %s, %d" % (s(S_T1), s(S_T1), 1024 * hp))
        em.i("s_lshr_b32 %s, %s, 1" % (s(S_T2), s(S_CG)))
        em.i("s_lshl_b32 %s, %s, 10" % (s(S_T2), s(S_T2)))
        em.i("s_add_u32 %s, %s, %s" % (s(S_T2), s(S_T2), s(S_T0)))
        em.i("s_and_b32 %s, %s, 1" % (s(S_T3), s(S_CG)))
        em.i("s_lshl_b32 %s, %s, 3" % (s(S_T3), s(S_T3)))
        em.i("s_add_u32 %s, %s, %s" % (s(S_T2), s(S_T2), s(S_T3)))
        em.i("s_add_u32 %s, %s, %d" % (s(S_T2), s(S_T2), 16 * 1024))
        em.i("v_lshlrev_b32 %s, 4, %s" % (v(VE + 1), v(VL)))
    VST = VE + 1

    pool = [accM(0, 4), accM(1, 4), accM(2, 4), accM(3, 4), 120, 128, 136, 144, 224, 232, 240, 248]

    def unit(t, e, regs):
        S, A_, B_ = regs
        M, M2, SUM = A_, A_ + 2, A_ + 4
        O, OR = B_, B_ + 4
        Q = v(accM(t, e), 4)
        Kc = v(accM(t, 2 + e), 4)
        Kp = v(accM(t - 1, 2 + e), 4) if t > 0 else v(KP[e], 4)
        mp = MPF if (t == 0 and rh == 0) else MP
        VH = (VHa, VHb)[e]
        L = []
        L.append(mfma(v(S, 4), Kp, Q, v(mp, 4)))
        L.append(mfma(v(S + 4, 4), Kc, Q, v(MC, 4)))
        if QT:
            for k in range(4):
                L.append("v_max_f32 %s, %s, %s" % (v(S + k), v(S + k), v(S + 4 + k)))
            L.append("v_max3_f32 %s, %s, %s, %s" % (v(M), v(S), v(S + 1), v(S + 2)))
            L.append("v_max_f32 %s, %s, %s" % (v(M), v(M), v(S + 3)))
        else:
            L.append("v_max3_f32 %s, %s, %s, %s" % (v(M), v(S), v(S + 1), v(S + 2)))
            L.append("v_max3_f32 %s, %s, %s, %s" % (v(M2), v(S + 3), v(S + 4), v(S + 5)))
            L.append("v_max3_f32 %s, %s, %s, %s" % (v(M), v(M), v(S + 6), v(S + 7)))
            L.append("v_max_f32 %s, %s, %s" % (v(M), v(M), v(M2)))
        L.append("v_mov_b32 %s, %s" % (v(M2), v(M)))
        L.append("v_permlane16_swap_b32 %s, %s" % (v(M), v(M2)))
        L.append("v_max_f32 %s, %s, %s" % (v(M), v(M), v(M2)))
        L.append("v_mov_b32 %s, %s" % (v(M2), v(M)))
        L.append("v_permlane32_swap_b32 %s, %s" % (v(M), v(M2)))
        L.append("v_max_f32 %s, %s, %s" % (v(M), v(M), v(M2)))
        L.append("v_mul_f32 %s, %s, %s" % (v(M), s(S_C0), v(M)))
        NS = 4 if QT else 8
        for k in range(0, NS, 2):
            L.append("v_pk_fma_f32 %s, %s, %s, %s op_sel_hi:[1,0,0] neg_lo:[0,0,1] neg_hi:[0,0,1]" % (
                v(S + k, 2), v(S + k, 2), s(S_C0, 2), v(M, 2)))
        for k in range(NS):
            L.append("v_exp_f32 %s, %s" % (v(S + k), v(S + k)))
        if QT:
            for k in range(2):
                L.append("v_cvt_pk_bf16_f32 %s, %s, %s" % (v(S + 4 + k), v(S + 2 * k), v(S + 2 * k + 1)))
            for k in range(4):
                L.append("v_and_b32 %s, %s, %s" % (v(S + k), v((MKP, MKC)[k >> 1] + (k & 1)), v(S + 4 + (k & 1))))
        else:
            for k in range(4):
                L.append("v_cvt_pk_bf16_f32 %s, %s, %s" % (v(S + k), v(S + 2 * k), v(S + 2 * k + 1)))
        P = v(S, 4)
        L.append(mfma(v(SUM, 4), v(ONES, 4), P, "0"))
        L.append(mfma(v(O, 4), v(VH + 2 * t, 4), P, "0"))
        L.append(mfma(v(OR, 4), v(VRr + 2 * t, 4), P, "0"))
        L.append("v_rcp_f32 %s, %s" % (v(M), v(SUM)))
        L.append("v_pk_mul_f32 %s, %s, %s op_sel_hi:[1,0]" % (v(O, 2), v(O, 2), v(M, 2)))
        L.append("v_pk_mul_f32 %s, %s, %s op_sel_hi:[1,0]" % (v(O + 2, 2), v(O + 2, 2), v(M, 2)))
        L.append("v_pk_mul_f32 %s, %s, %s op_sel_hi:[1,0]" % (v(OR, 2), v(OR, 2), v(M, 2)))
        L.append("v_pk_mul_f32 %s, %s, %s op_sel_hi:[1,0]" % (v(OR + 2, 2), v(OR + 2, 2), v(M, 2)))
        dst = accM(t, 0) + 2 * e
        L.append("v_cvt_pk_bf16_f32 %s, %s, %s" % (v(dst), v(O), v(O + 1)))
        L.append("v_cvt_pk_bf16_f32 %s, %s, %s" % (v(dst + 1), v(O + 2), v(O + 3)))
        L.append("v_cvt_pk_bf16_f32 %s, %s, %s" % (v(OR), v(OR), v(OR + 1)))
        L.append("v_cvt_pk_bf16_f32 %s, %s, %s" % (v(OR + 1), v(OR + 2), v(OR + 3)))
        return L

    for half in range(2):
        ul = []
        us = []
        for n, (t, e) in enumerate([(2 * half, 0), (2 * half, 1), (2 * half + 1, 0), (2 * half + 1, 1)]):
            regs = (pool[n], pool[4 + n], pool[8 + n])
            us.append((t, e, regs))
            ul.append(unit(t, e, regs))
        for x in interleave(ul):
            em.i(x)
        for n in (0, 2):
            t = us[n][0]
            ORa = us[n][2][2] + 4
            ORb = us[n + 1][2][2] + 4
            em.i("v_cndmask_b32 %s, %s, %s, %s" % (v(ORa), v(ORa), v(ORb), s(S_EX, 2)))
            em.i("v_cndmask_b32 %s, %s, %s, %s" % (v(ORa + 1), v(ORa + 1), v(ORb + 1), s(S_EX, 2)))
            em.i("s_add_u32 %s, %s, 0x%x" % (s(S_T3), s(S_T1), t * TILE_B))
            em.i("buffer_store_dwordx4 %s, %s, %s, %s offen%s" % (v(accM(t, 0), 4), v(VST), s(SRD_WS, 4), s(S_T3), WT + WTO))
            em.i("s_add_u32 %s, %s, 0x%x" % (s(S_T4), s(S_T2), t * TILE_B))
            em.i("s_mov_b32 %s, 0" % ("exec_hi" if hp == 0 else "exec_lo"))
            em.i("buffer_store_dwordx2 %s, %s, %s, %s offen%s" % (v(ORa, 2), v(VST), s(SRD_WS, 4), s(S_T4), WT))
            em.i("s_mov_b64 exec, -1")
    stamp_end(em, VS, SRD_WS, S_WV, 0)
    em.i("s_endpgm")
    em.label("L_%s_end" % tag)


def gen_h(em):
    VL, VT = 0, 1
    VWD, VXD = 8, 14
    VXA0, VXA1 = 18, 19
    VWA = 20
    ACC = 24
    acc = lambda t, u: ACC + (t * 6 + u) * 4
    RIN = 120
    ROUT = 152
    GX = 152
    VG, VRS, VGX, VGW, VRL = 192, 193, 194, 195, 196
    VS = 198
    BIAS = 200
    TMP = 200
    S_R0, S_R1 = 82, 83
    FR = lambda st, k: st * 40 + k * 4
    em.label("L_h")
    em.fence()
    em.i("s_lshr_b32 %s, %s, 1" % (s(S_T5), s(S_WV)))
    em.i("v_lshrrev_b32 %s, 3, %s" % (v(VT), v(VL)))
    em.i("v_mul_u32_u24 %s, 0xa00, %s" % (v(VT), v(VT)))
    em.i("v_lshrrev_b32 %s, 4, %s" % (v(VT + 1), v(VL)))
    em.i("v_xor_b32 %s, %s, %s" % (v(VT + 1), v(VT + 1), v(VL)))
    em.i("v_and_b32 %s, 7, %s" % (v(VT + 1), v(VT + 1)))
    em.i("v_lshl_add_u32 %s, %s, 4, %s" % (v(VT + 2), v(VT + 1), v(VT)))
    em.i("v_xor_b32 %s, 64, %s" % (v(VT + 3), v(VT + 2)))
    em.i("s_lshl_b32 %s, %s, 8" % (s(S_T0), s(S_B)))
    em.i("s_add_u32 %s, %s, %s" % (s(S_T0), s(S_T0), s(S_P)))
    em.i("s_lshl_b32 %s, %s, 6" % (s(S_T1), s(S_WV)))
    em.i("s_add_u32 %s, %s, %s" % (s(S_T1), s(S_T1), s(S_T0)))
    em.i("s_mul_i32 %s, %s, 0x500" % (s(S_T1), s(S_T1)))
    for n in range(4):
        em.i("s_add_u32 %s, %s, 0x%x" % (s(S_T3), s(S_T1), 20480 * n))
        em.i("v_add_u32 %s, %s, %s" % (v(VXD + n), s(S_T3), v(VT + 2 + (n & 1))))
    em.i("s_mul_i32 %s, %s, 384" % (s(S_T4), s(S_CG)))
    em.i("s_mul_i32 %s, %s, 0x%x" % (s(S_T3), s(S_WV), 16 * 3072))
    em.i("s_add_u32 %s, %s, %s" % (s(S_T4), s(S_T4), s(S_T3)))
    for n in range(6):
        d = VWD + n
        em.i("v_add_u32 %s, 0x%x, %s" % (v(VT), 64 * n, v(VL)))
        em.i("v_mul_u32_u24 %s, 0xaab, %s" % (v(VT + 1), v(VT)))
        em.i("v_lshrrev_b32 %s, 16, %s" % (v(VT + 1), v(VT + 1)))
        em.i("v_mul_u32_u24 %s, 24, %s" % (v(VT + 4), v(VT + 1)))
        em.i("v_sub_u32 %s, %s, %s" % (v(VT), v(VT), v(VT + 4)))
        em.i("v_and_b32 %s, 2, %s" % (v(VT + 4), v(VT + 1)))
        em.i("v_lshrrev_b32 %s, 1, %s" % (v(VT + 5), v(VT + 1)))
        em.i("v_and_or_b32 %s, %s, 4, %s" % (v(VT + 4), v(VT + 5), v(VT + 4)))
        em.i("v_xor_b32 %s, %s, %s" % (v(VT), v(VT), v(VT + 4)))
        em.i("v_mul_u32_u24 %s, 0xc00, %s" % (v(VT + 1), v(VT + 1)))
        em.i("v_lshl_add_u32 %s, %s, 4, %s" % (v(VT), v(VT), v(VT + 1)))
        em.i("v_add_u32 %s, %s, %s" % (v(d), s(S_T4), v(VT)))
    em.i("v_and_b32 %s, 15, %s" % (v(VT), v(VL)))
    em.i("v_lshrrev_b32 %s, 4, %s" % (v(VT + 1), v(VL)))
    if TCH:
        wst = 64 * 3072
        em.i("s_and_b32 %s, %s, 1" % (s(S_T2), s(S_CG)))
        em.i("s_lshl_b32 %s, %s, 1" % (s(S_T3), s(S_B)))
        em.i("s_add_u32 %s, %s, %s" % (s(S_T3), s(S_T3), s(S_T2)))
        em.i("s_mul_i32 %s, %s, %d" % (s(S_T3), s(S_T3), 4 * 3072))
        em.i("s_lshr_b32 %s, %s, 1" % (s(S_T4), s(S_CG)))
        em.i("s_mul_i32 %s, %s, 768" % (s(S_T4), s(S_T4)))
        em.i("s_add_u32 %s, %s, %s" % (s(S_T3), s(S_T3), s(S_T4)))
        em.i("v_mul_u32_u24 %s, 43, %s" % (v(VT + 2), v(VL)))
        em.i("v_lshrrev_b32 %s, 8, %s" % (v(VT + 2), v(VT + 2)))
        em.i("v_mul_u32_u24 %s, 0x900, %s" % (v(VT + 2), v(VT + 2)))
        em.i("v_lshl_add_u32 %s, %s, 7, %s" % (v(VT + 2), v(VL), v(VT + 2)))
        em.i("v_add_u32 %s, %s, %s" % (v(VT + 2), s(S_T3), v(VT + 2)))
        em.i("v_mov_b32 %s, 0x%x" % (v(VT + 4), BIGOFF))
        em.i("v_cmp_gt_u32 vcc, 24, %s" % v(VL))
        em.i("v_cndmask_b32 %s, %s, %s, vcc" % (v(VTW1), v(VT + 4), v(VT + 2)))
        em.i("s_lshl_b32 %s, %s, 7" % (s(S_T2), s(S_T2)))
        em.i("s_add_u32 %s, %s, %s" % (s(S_T2), s(S_T2), s(S_T0)))
        em.i("s_mul_i32 %s, %s, 0x500" % (s(S_T2), s(S_T2)))
        em.i("v_mul_u32_u24 %s, 0xa00, %s" % (v(VT + 2), v(VL)))
        em.i("v_add_u32 %s, %s, %s" % (v(VTX1), s(S_T2), v(VT + 2)))
        em.i("s_cmp_eq_u32 %s, %d" % (s(S_WV), TWV[0]))
        em.i("s_cselect_b32 %s, 0x%x, 0x%x" % (s(S_TW), wst, BIGOFF)) if 0 else None
        em.i("s_mov_b32 %s, 0x%x" % (s(S_TX), BIGOFF))
        em.i("s_cselect_b32 %s, 0x%x, %s" % (s(S_TW), wst, s(S_TX)))
        em.i("s_cselect_b32 %s, 0x80, %s" % (s(S_TX), s(S_TX)))
    em.i("s_and_b32 %s, %s, 1" % (s(S_T2), s(S_WV)))
    em.i("s_mul_i32 %s, %s, 192" % (s(S_T3), s(S_T2)))
    em.i("s_mul_i32 %s, %s, 384" % (s(S_T4), s(S_CG)))
    em.i("s_add_u32 %s, %s, %s" % (s(S_T3), s(S_T3), s(S_T4)))
    em.i("v_lshlrev_b32 %s, 3, %s" % (v(VT + 4), v(VT + 1)))

    dma = []
    for n in range(4):
        dma.append(("s_add_u32 m0, %s, 0x%x" % (s(S_C1), 1024 * n),
                    "buffer_load_dwordx4 %s, %s, %s offen lds" % (v(VXD + n), s(SRD_X, 4), s(S_XOFF))))
    for n in range(6):
        dma.append(("s_add_u32 m0, %s, 0x%x" % (s(S_C1 + 1), H_XSZ + 1024 * n),
                    "buffer_load_dwordx4 %s, %s, %s offen lds" % (v(VWD + n), s(SRD_W, 4), s(S_WOFF))))
    adv = advance_dma(H_SLOT, 64 * 3072) + [
        "s_add_u32 %s, %s, %s" % (s(S_C1), s(S_DM), s(S_WOFF2)),
        "s_add_u32 %s, %s, %s" % (s(S_C1 + 1), s(S_DM), s(S_EX))]
    em.i("s_lshl_b32 %s, %s, 12" % (s(S_WOFF2), s(S_WV)))
    em.i("s_mul_i32 %s, %s, 6144" % (s(S_EX), s(S_WV)))
    em.i("s_mov_b32 %s, %s" % (s(S_C1), s(S_WOFF2)))
    em.i("s_mov_b32 %s, %s" % (s(S_C1 + 1), s(S_EX)))
    rot_init(em, 1, 64 * 3072)
    em.i("s_mov_b32 %s, 0" % s(S_DM))
    em.i("s_mov_b32 %s, 0" % s(S_STG))
    em.i("s_mov_b32 %s, 0" % s(S_RD))
    em.i("s_waitcnt lgkmcnt(0)")
    stamp_put(em, VS, 0)
    stamp_put(em, VS, 1)
    stamp_get(em, 0)
    srd(em, SRD_X, 4, X_BYTES)
    srd(em, SRD_W, 12, W1_BYTES)
    if TCH:
        em.i("buffer_load_dword %s, %s, %s, %s offen" % (v(VTDST), v(VTX1), s(SRD_X, 4), s(S_TX)))
        em.i("buffer_load_dword %s, %s, %s, %s offen" % (v(VTDST), v(VTW1), s(SRD_W, 4), s(S_TW)))
        em.i("s_mov_b32 %s, 0x%x" % (s(S_TX), BIGOFF))
        em.i("s_cmp_eq_u32 %s, %d" % (s(S_WV), TWV[1]))
        em.i("s_cselect_b32 %s, 0x%x, %s" % (s(S_TW), 2 * 64 * 3072, s(S_TX)))
        em.i("s_cselect_b32 %s, 0x100, %s" % (s(S_TX), s(S_TX)))
        em.i("s_cmp_eq_u32 %s, %d" % (s(S_WV), TWV[2]))
        em.i("s_cselect_b32 %s, 0x%x, %s" % (s(S_TW), 3 * 64 * 3072, s(S_TW)))
        em.i("s_cselect_b32 %s, 0x180, %s" % (s(S_TX), s(S_TX)))
    srd(em, SRD_T2, 14, 3072)
    for u in range(6):
        em.i("buffer_load_dwordx2 %s, %s, %s, %s offen offset:%d" % (v(BIAS + 2 * u, 2), v(VT + 4), s(SRD_T2, 4), s(S_T3), 32 * u))
    if SIDE:
        srd(em, SRD_T, 18, 1280)
        em.i("v_lshlrev_b32 %s, 4, %s" % (v(VGW), v(VT)))
        for n in range(5):
            em.i("buffer_load_dwordx4 %s, %s, %s, 0 offen offset:%d" % (v(GX + 20 + 4 * n, 4), v(VGW), s(SRD_T, 4), 256 * n))
    for m, l in dma:
        em.i(m)
        em.i(l)
    for x in adv:
        em.i(x)
    for m, l in dma[:5]:
        em.i(m)
        em.i(l)
    if PF & 6:
        em.i("s_and_b32 s94, %s, 1" % s(S_CG))
        em.i("s_lshl1_add_u32 s94, %s, s94" % s(S_B))
        em.i("s_lshl2_add_u32 s94, s94, %s" % s(S_WV))
    if PF & 4 and SIDE:
        emit_pf(em, code_pf("L_h_tail", "L_k1_end", 94, 2))
    srd(em, SRD_WS, 20, WS_SIZE)
    srd(em, SRD_T2, 18, 1280)
    em.i("v_lshrrev_b32 %s, 1, %s" % (v(VT + 2), v(VT)))
    em.i("v_xor_b32 %s, %s, %s" % (v(VT + 2), v(VT + 2), v(VT + 1)))
    em.i("v_lshlrev_b32 %s, 4, %s" % (v(VT + 2), v(VT + 2)))
    em.i("v_lshl_add_u32 %s, %s, 7, %s" % (v(VT + 2), v(VT), v(VT + 2)))
    em.i("s_lshl_b32 %s, %s, 13" % (s(S_T1), s(S_T5)))
    em.i("v_add_u32 %s, %s, %s" % (v(VXA0), s(S_T1), v(VT + 2)))
    em.i("v_xor_b32 %s, 64, %s" % (v(VXA1), v(VXA0)))
    em.i("v_bfe_u32 %s, %s, 2, 2" % (v(VT + 2), v(VL)))
    em.i("v_lshl_add_u32 %s, %s, 3, %s" % (v(VT + 3), v(VT + 1), v(VT + 2)))
    em.i("v_mul_u32_u24 %s, 0x180, %s" % (v(VT + 3), v(VT + 3)))
    em.i("v_and_b32 %s, 3, %s" % (v(VT + 4), v(VL)))
    em.i("v_lshl_add_u32 %s, %s, 3, %s" % (v(VT + 3), v(VT + 4), v(VT + 3)))
    em.i("v_lshrrev_b32 %s, 1, %s" % (v(VT + 2), v(VT + 2)))
    em.i("v_and_b32 %s, 1, %s" % (v(VT + 4), v(VT + 1)))
    em.i("v_lshl_or_b32 %s, %s, 1, %s" % (v(VT + 2), v(VT + 4), v(VT + 2)))
    em.i("s_mul_i32 %s, %s, 6" % (s(S_T2), s(S_T2)))
    for u in range(4):
        em.i("s_add_u32 %s, %s, %d" % (s(S_T3), s(S_T2), u))
        em.i("v_xor_b32 %s, %s, %s" % (v(VT + 4), s(S_T3), v(VT + 2)))
        em.i("v_lshl_add_u32 %s, %s, 5, %s" % (v(VWA + u), v(VT + 4), v(VT + 3)))
    em.i("v_lshlrev_b32 %s, 4, %s" % (v(VGW), v(VT)))
    em.i("s_lshl_b32 %s, %s, 5" % (s(S_T1), s(S_CG)))
    em.i("s_lshl_b32 %s, %s, 3" % (s(S_T2), s(S_WV)))
    em.i("s_add_u32 %s, %s, %s" % (s(S_T1), s(S_T1), s(S_T2)))
    em.i("s_add_u32 %s, %s, %s" % (s(S_T1), s(S_T1), s(S_T0)))
    em.i("s_mul_i32 %s, %s, 0x500" % (s(S_T1), s(S_T1)))
    em.i("v_mul_u32_u24 %s, 0xa00, %s" % (v(VT + 3), v(VT + 1)))
    em.i("v_add3_u32 %s, %s, %s, %s" % (v(VGX), v(VT + 3), v(VGW), s(S_T1)))
    if AFF & 2:
        em.i("s_lshl_b32 %s, %s, 6" % (s(S_UNIT), s(S_WV)))
        em.i("s_lshl_b32 %s, %s, 3" % (s(S_T0), s(S_B)))
        em.i("s_add_u32 %s, %s, %s" % (s(S_UNIT), s(S_UNIT), s(S_T0)))
        em.i("s_lshl_b32 %s, %s, 2" % (s(S_T0), s(S_P)))
        em.i("s_add_u32 %s, %s, %s" % (s(S_UNIT), s(S_UNIT), s(S_T0)))
        em.i("s_and_b32 %s, %s, 3" % (s(S_T0), s(S_CG)))
        em.i("s_add_u32 %s, %s, %s" % (s(S_UNIT), s(S_UNIT), s(S_T0)))
        em.i("s_mul_i32 %s, %s, 0xcccd" % (s(S_T0), s(S_UNIT)))
        em.i("s_lshr_b32 %s, %s, 18" % (s(S_T0), s(S_T0)))
        em.i("s_mul_i32 %s, %s, 5" % (s(S_T1), s(S_T0)))
        em.i("s_sub_u32 %s, %s, %s" % (s(S_T2), s(S_UNIT), s(S_T1)))
        em.i("s_lshr_b32 %s, %s, 2" % (s(S_T3), s(S_CG)))
        em.i("s_mul_i32 %s, %s, 3" % (s(S_T1), s(S_T3)))
        em.i("s_and_b32 %s, %s, 1" % (s(S_T4), s(S_T2)))
        em.i("s_add_u32 %s, %s, %s" % (s(S_T1), s(S_T1), s(S_T4)))
        em.i("s_lshr_b32 %s, %s, 1" % (s(S_T4), s(S_T2)))
        em.i("s_cmp_eq_u32 %s, 4" % s(S_T2))
        em.i("s_cselect_b32 %s, 2, %s" % (s(S_T1), s(S_T1)))
        em.i("s_cselect_b32 %s, %s, %s" % (s(S_T4), s(S_T3), s(S_T4)))
        em.i("s_lshl_b32 %s, %s, 1" % (s(S_T0), s(S_T0)))
        em.i("s_add_u32 %s, %s, %s" % (s(S_T0), s(S_T0), s(S_T4)))
    else:
        em.i("s_lshl_b32 %s, %s, 3" % (s(S_UNIT), s(S_P)))
        em.i("s_add_u32 %s, %s, %s" % (s(S_UNIT), s(S_UNIT), s(S_B)))
        em.i("s_lshl_b32 %s, %s, 3" % (s(S_UNIT), s(S_UNIT)))
        em.i("s_add_u32 %s, %s, %s" % (s(S_UNIT), s(S_UNIT), s(S_CG)))
        em.i("s_lshl_b32 %s, %s, 2" % (s(S_UNIT), s(S_UNIT)))
        em.i("s_add_u32 %s, %s, %s" % (s(S_UNIT), s(S_UNIT), s(S_WV)))
        em.i("s_mul_i32 %s, %s, 0xcccd" % (s(S_T0), s(S_UNIT)))
        em.i("s_lshr_b32 %s, %s, 18" % (s(S_T0), s(S_T0)))
        em.i("s_mul_i32 %s, %s, 5" % (s(S_T1), s(S_T0)))
        em.i("s_sub_u32 %s, %s, %s" % (s(S_T1), s(S_UNIT), s(S_T1)))
    em.i("s_lshl_b32 %s, %s, 5" % (s(S_T2), s(S_T0)))
    em.i("s_sub_u32 %s, %s, 640" % (s(S_T2), s(S_T2)))
    em.i("s_mov_b32 %s, 16" % s(S_T3))
    em.i("s_mov_b32 %s, 4" % s(S_T4))
    em.i("s_mul_i32 %s, %s, 160" % (s(S_C0), s(S_T0)))
    em.i("s_sub_u32 %s, %s, %d" % (s(S_C0), s(S_C0), 2560 - 16))
    em.i("s_mov_b32 %s, 0x%x" % (s(SRD_T + 2), W2_BYTES))
    em.i("s_mov_b32 %s, 0x20000" % s(SRD_T + 3))
    em.i("s_cmp_lt_u32 %s, 20" % s(S_T0))
    em.i("s_cselect_b32 %s, %s, %s" % (s(S_T2), s(S_C0), s(S_T2)))
    em.i("s_cselect_b32 %s, 80, %s" % (s(S_T3), s(S_T3)))
    em.i("s_cselect_b32 %s, 20, %s" % (s(S_T4), s(S_T4)))
    em.i("s_cselect_b32 %s, %s, %s" % (s(SRD_T), s(8), s(16)))
    em.i("s_cselect_b32 %s, %s, %s" % (s(SRD_T + 1), s(9), s(17)))
    em.i("s_cselect_b32 %s, 0x%x, %s" % (s(SRD_T + 2), WO_BYTES, s(SRD_T + 2)))
    em.i("s_mul_i32 %s, %s, 40" % (s(S_C0), s(S_T0)))
    em.i("s_cmp_lt_u32 %s, 16" % s(S_T0))
    em.i("s_cselect_b32 %s, %s, %s" % (s(S_T2), s(S_C0), s(S_T2)))
    em.i("s_cselect_b32 %s, 20, %s" % (s(S_T3), s(S_T3)))
    em.i("s_cselect_b32 %s, 4, %s" % (s(S_T4), s(S_T4)))
    em.i("s_mul_i32 %s, %s, 0x500" % (s(S_T4), s(S_T4)))
    em.i("v_mad_u32_u24 %s, %s, %s, %s" % (v(VRL), v(VT + 1), s(S_T4), v(VGW)))
    em.i("s_mul_i32 %s, %s, 0x500" % (s(S_T2), s(S_T2)))
    em.i("s_lshl_b32 %s, %s, 8" % (s(S_C0), s(S_T1)))
    em.i("s_add_u32 %s, %s, %s" % (s(S_R0), s(S_T2), s(S_C0)))
    em.i("s_mul_i32 %s, %s, 0x500" % (s(S_T3), s(S_T3)))
    em.i("s_add_u32 %s, %s, %s" % (s(S_R1), s(S_T3), s(S_R0)))
    em.i("s_mul_i32 %s, %s, 40" % (s(S_T0), s(S_T0)))
    em.i("s_lshl_b32 %s, %s, 3" % (s(S_T1), s(S_T1)))
    em.i("s_add_u32 %s, %s, %s" % (s(S_T0), s(S_T0), s(S_T1)))
    em.i("s_lshl_b32 %s, %s, 10" % (s(S_T0), s(S_T0)))
    em.i("s_add_u32 %s, %s, 0x%x" % (s(S_T0), s(S_T0), WF_OFF))
    em.i("s_cmp_ge_u32 %s, %d" % (s(S_UNIT), 170 if AFF & 2 else 340))
    em.i("s_cselect_b32 %s, 0x%x, %s" % (s(S_T0), BIGOFF, s(S_T0)))
    em.i("s_cselect_b32 %s, 0x%x, %s" % (s(S_R0), BIGOFF, s(S_R0)))
    em.i("s_cselect_b32 %s, 0x%x, %s" % (s(S_R1), BIGOFF, s(S_R1)))
    em.i("v_lshrrev_b32 %s, 1, %s" % (v(VT + 5), v(VT)))
    em.i("v_lshlrev_b32 %s, 10, %s" % (v(VT + 5), v(VT + 5)))
    em.i("v_and_b32 %s, 1, %s" % (v(VT + 6), v(VT)))
    em.i("v_lshl_add_u32 %s, %s, 7, %s" % (v(VT + 5), v(VT + 6), v(VT + 5)))
    em.i("v_lshl_add_u32 %s, %s, 8, %s" % (v(VT + 5), v(VT + 1), v(VT + 5)))
    VWL, VRA, VWT = 232, 233, 237
    if SIDE:
        em.i("s_lshl_b32 %s, %s, 13" % (s(S_T1), s(S_WV)))
        em.i("s_add_u32 %s, %s, 0x%x" % (s(S_T1), s(S_T1), H_SLOT))
        em.i("v_and_b32 %s, 7, %s" % (v(VT + 6), v(VL)))
        em.i("v_lshl_add_u32 %s, %s, 4, %s" % (v(VT + 5), v(VT + 6), v(VT + 5)))
        em.i("v_add_u32 %s, %s, %s" % (v(VWL), s(S_T1), v(VT + 5)))
        em.i("v_lshrrev_b32 %s, 3, %s" % (v(VT + 5), v(VL)))
        em.i("v_and_b32 %s, 1, %s" % (v(VRA), v(VT + 5)))
        em.i("v_xor_b32 %s, %s, %s" % (v(VT + 6), v(VT + 6), v(VRA)))
        em.i("v_lshlrev_b32 %s, 4, %s" % (v(VT + 6), v(VT + 6)))
        em.i("v_lshl_add_u32 %s, %s, 7, %s" % (v(VT + 6), v(VT + 5), v(VT + 6)))
        em.i("v_add_u32 %s, %s, %s" % (v(VRA), s(S_T1), v(VT + 6)))
        for q in range(1, 4):
            em.i("v_xor_b32 %s, 0x%x, %s" % (v(VRA + q), q << 5, v(VRA)))
        em.i("v_lshlrev_b32 %s, 4, %s" % (v(VT + 5), v(VL)))
    em.i("v_add_u32 %s, %s, %s" % (v(VRS), s(S_T0), v(VT + 5)))
    em.i("s_waitcnt vmcnt(15)")
    F = []
    for t in range(4):
        for u in range(6):
            F.append("v_lshlrev_b32 %s, 16, %s" % (v(acc(t, u)), v(BIAS + 2 * u)))
            F.append("v_and_b32 %s, 0xffff0000, %s" % (v(acc(t, u) + 1), v(BIAS + 2 * u)))
            F.append("v_lshlrev_b32 %s, 16, %s" % (v(acc(t, u) + 2), v(BIAS + 2 * u + 1)))
            F.append("v_and_b32 %s, 0xffff0000, %s" % (v(acc(t, u) + 3), v(BIAS + 2 * u + 1)))
    for n, (m, l) in enumerate(dma[5:]):
        em.i(m)
        em.i(l)
        for x in F[20 * n:20 * (n + 1)]:
            em.i(x)
    for x in adv:
        em.i(x)
    if TCH:
        em.i("buffer_load_dword %s, %s, %s, %s offen" % (v(VTDST), v(VTX1), s(SRD_X, 4), s(S_TX)))
        em.i("buffer_load_dword %s, %s, %s, %s offen" % (v(VTDST), v(VTW1), s(SRD_W, 4), s(S_TW)))
        em.i("s_mov_b32 %s, 0x%x" % (s(S_TX), BIGOFF))
        em.i("s_cmp_eq_u32 %s, %d" % (s(S_WV), TWV[3]))
        em.i("s_cselect_b32 %s, 0x%x, %s" % (s(S_TW), 4 * 64 * 3072, s(S_TX)))
        em.i("s_cselect_b32 %s, 0x200, %s" % (s(S_TX), s(S_TX)))
    if not EARLY:
        for m, l in dma[:5]:
            em.i(m)
            em.i(l)

    def reads(st, ks):
        xa = VXA1 if ks else VXA0
        R = []
        for t in range(4):
            R.append("ds_read_b128 %s, %s offset:%d" % (a(FR(st, t), 4), v(xa), t * 2048))
        for u in range(6):
            for h in range(2):
                R.append("ds_read_b64_tr_b16 %s, %s offset:%d" % (
                    a(FR(st, 4 + u) + 2 * h, 2), v(VWA + (u & 3)), H_XSZ + (32 * ks + 4 * h) * 384 + 128 * (u >> 2)))
        return R

    def mfmas(st):
        L = []
        for t in range(4):
            for u in range(6):
                L.append(mfma(v(acc(t, u), 4), a(FR(st, 4 + u), 4), a(FR(st, t), 4)))
        return L

    stamp_get(em, 3)
    em.i("s_waitcnt vmcnt(%d)" % ((10 if EARLY else 15) + 2 * TCH))
    stamp_get(em, 1)
    em.i("s_barrier")
    stamp_get(em, 2)
    stamp_put(em, VS, 0, True)
    stamp_put(em, VS, 3)
    for r in reads(0, 0):
        em.i(r)
    if EARLY:
        for m, l in dma[:5]:
            em.i(m)
            em.i(l)
    SW0 = int(os.environ.get("SW0", "2"))
    SL = []
    for n in range(5):
        SL.append("buffer_load_dwordx4 %s, %s, %s, 0 offen offset:%d" % (v(GX + 4 * n, 4), v(VGX), s(SRD_X, 4), 256 * n))
        SL.append("buffer_load_dwordx4 %s, %s, %s, 0 offen offset:%d" % (v(GX + 20 + 4 * n, 4), v(VGW), s(SRD_T2, 4), 256 * n))
    for j in range(8):
        SL.append("buffer_load_dwordx4 %s, %s, %s, %s offen offset:%d" % (
            v(RIN + 4 * j, 4), v(VRL), s(SRD_T, 4), s(S_R0 if j < 4 else S_R1), 1280 * (j & 3)))
    P = []
    P.append("s_lshl_b32 %s, %s, 6" % (s(S_T0), s(S_P)))
    P.append("s_lshl_b32 %s, %s, 3" % (s(S_T1), s(S_B)))
    P.append("s_add_u32 %s, %s, %s" % (s(S_T0), s(S_T0), s(S_T1)))
    P.append("s_add_u32 %s, %s, %s" % (s(S_T3), s(S_T0), s(S_CG)))
    P.append("s_lshl_b32 %s, %s, 2" % (s(S_T3), s(S_T3)))
    P.append("s_add_u32 %s, %s, %s" % (s(S_T3), s(S_T3), s(S_WV)))
    P.append("s_lshl_b32 %s, %s, 4" % (s(S_T3), s(S_T3)))
    P.append("s_add_u32 %s, %s, 0x%x" % (s(S_T3), s(S_T3), G_OFF))
    P.append("s_lshl_b32 %s, %s, 2" % (s(S_T1), s(S_T5)))
    P.append("s_add_u32 %s, %s, %s" % (s(S_T0), s(S_T0), s(S_T1)))
    P.append("s_mul_i32 %s, %s, 68" % (s(S_T0), s(S_T0)))
    P.append("s_mul_i32 %s, %s, 6" % (s(S_T1), s(S_CG)))
    P.append("s_add_u32 %s, %s, %s" % (s(S_T0), s(S_T0), s(S_T1)))
    P.append("s_and_b32 %s, %s, 1" % (s(S_T1), s(S_WV)))
    P.append("s_mul_i32 %s, %s, 3" % (s(S_T1), s(S_T1)))
    P.append("s_add_u32 %s, %s, %s" % (s(S_T0), s(S_T0), s(S_T1)))
    P.append("s_add_u32 %s, %s, 20" % (s(S_T0), s(S_T0)))
    P.append("s_lshl_b32 %s, %s, 10" % (s(S_T0), s(S_T0)))
    P.append("v_lshlrev_b32 %s, 4, %s" % (v(VT), v(VL)))
    SC = []
    SC.append("v_dot2_f32_bf16 %s, %s, %s, 0" % (v(VG), v(GX), v(GX + 20)))
    for n in range(1, 20):
        SC.append("v_dot2_f32_bf16 %s, %s, %s, %s" % (v(VG), v(GX + n), v(GX + 20 + n), v(VG)))
    for rot in (8, 4, 2, 1):
        SC.append("v_add_f32_dpp %s, %s, %s row_ror:%d row_mask:0xf bank_mask:0xf" % (v(VT + 3), v(VG), v(VG), rot))
        SC.append("v_mov_b32 %s, %s" % (v(VG), v(VT + 3)))
    SC.append("v_cvt_pk_bf16_f32 %s, %s, %s" % (v(VG), v(VG), v(VG)))
    SC.append("v_lshlrev_b32 %s, 16, %s" % (v(VG), v(VG)))
    SC.append("v_mul_f32 %s, 0x%x, %s" % (v(VG), f2u(-math.log2(math.e)), v(VG)))
    SC.append("v_exp_f32 %s, %s" % (v(VG), v(VG)))
    SC.append("v_lshrrev_b32 %s, 4, %s" % (v(VT + 3), v(VL)))
    SC.append("v_add_f32 %s, 1.0, %s" % (v(VG), v(VG)))
    SC.append("v_rcp_f32 %s, %s" % (v(VG), v(VG)))
    SC.append("v_lshlrev_b32 %s, 2, %s" % (v(VT + 3), v(VT + 3)))
    SC.append("v_cvt_pk_bf16_f32 %s, %s, %s" % (v(VG), v(VG), v(VG)))
    SC.append("v_lshlrev_b32 %s, 16, %s" % (v(VG), v(VG)))
    SC.append("buffer_store_dword %s, %s, %s, %s offen%s" % (v(VG), v(VT + 3), s(SRD_WS, 4), s(S_T3), WT))
    SC.append("s_mov_b32 %s, 0x05040100" % s(S_R0))
    SC.append("s_mov_b32 %s, 0x07060302" % s(S_R1))
    for d in range(4):
        for e in range(2):
            for jj in range(4):
                SC.append("v_perm_b32 %s, %s, %s, %s" % (
                    v(ROUT + (2 * d + e) * 4 + jj), v(RIN + (2 * jj + 1) * 4 + d), v(RIN + (2 * jj) * 4 + d), s(S_R0 + e)))
            n = 2 * d + e
            SC.append("buffer_store_dwordx4 %s, %s, %s, 0 offen offset:%d%s" % (v(ROUT + 4 * n, 4), v(VRS), s(SRD_WS, 4), 16 * n, WT + WTS))

    rdadv = [(16, x) for x in advance_rd(H_SLOT)]
    rdadv.append((17, "v_add_u32 %s, %s, %s" % (v(VXA0), s(S_DELTA), v(VXA0))))
    rdadv.append((17, "v_add_u32 %s, %s, %s" % (v(VXA1), s(S_DELTA), v(VXA1))))
    for u in range(4):
        rdadv.append((22 + u // 2, "v_add_u32 %s, %s, %s" % (v(VWA + u), s(S_DELTA), v(VWA + u))))

    def body(dA, exA, vwait, rB, dB, exB, bar=True):
        em.i("s_waitcnt lgkmcnt(0)")
        stamp_get(em, 0)
        stamp_put(em, VS, 1)
        stamp_put(em, VS, 2)
        phase(em, mfmas(0), reads(1, 1), dA, extra=exA, dma_start=1, dma_step=4)
        stamp_get(em, 3)
        if vwait is None:
            em.i("s_waitcnt lgkmcnt(0)")
        else:
            em.i("s_waitcnt vmcnt(%d) lgkmcnt(0)" % vwait)
        stamp_get(em, 1)
        if bar:
            em.i("s_barrier")
        stamp_get(em, 2)
        stamp_put(em, VS, 0)
        stamp_put(em, VS, 3)
        phase(em, mfmas(1), rB, dB, extra=exB, dma_start=1, dma_step=4)

    em.i("s_mov_b32 %s, %d" % (s(S_CNT), 7 if SIDE else 10))
    em.label("L_h_loop")
    top = em.mark()
    ex = [(18 + k // 3, x) for k, x in enumerate(adv)] + rdadv
    tq = []
    if TCH:
        tq = [(0, "buffer_load_dword %s, %s, %s, %s offen" % (v(VTDST), v(VTX1), s(SRD_X, 4), s(S_TX))),
              (0, "buffer_load_dword %s, %s, %s, %s offen" % (v(VTDST), v(VTW1), s(SRD_W, 4), s(S_TW))),
              (2, "s_add_u32 %s, %s, 0x%x" % (s(S_TW), s(S_TW), 64 * 3072)),
              (2, "s_add_u32 %s, %s, 0x80" % (s(S_TX), s(S_TX))),
              (3, "s_cmp_ge_u32 %s, 0x500" % s(S_TX)),
              (3, "s_cselect_b32 %s, 0x%x, %s" % (s(S_TX), BIGOFF, s(S_TX)))]
    body(dma[5:], ex, 10 + 2 * TCH, reads(0, 0), dma[:5], tq + [(20, "s_sub_u32 %s, %s, 1" % (s(S_CNT), s(S_CNT))),
                                                           (21, "s_cmp_lg_u32 %s, 0" % s(S_CNT))])
    em.i("s_cbranch_scc1 L_h_loop")
    em.check_backedge(top)
    if SIDE:
        assert not TCH
        em.label("L_h_tail")
        GLd, RLd = SL[0:10:2], SL[10:]
        ig = SC.index("s_mov_b32 %s, 0x05040100" % s(S_R0))
        GC, PC = SC[:ig], SC[ig:]
        G2 = []
        for n in range(10):
            for h, acc_ in ((0, VG), (1, VWT)):
                G2.append("v_dot2_f32_bf16 %s, %s, %s, %s" % (v(acc_), v(GX + 2 * n + h), v(GX + 20 + 2 * n + h), v(acc_) if n else "0"))
        GC = ["v_add_f32 %s, %s, %s" % (v(VG), v(VG), v(VWT))] + GC[20:]
        gp = [2, 3, 4, 6, 7]
        body(dma[5:], rdadv + list(zip(gp, GLd)) + [(18 + k, x) for k, x in enumerate(RLd[:6])], 21,
             reads(0, 0), [], [(k, x) for k, x in enumerate(RLd[6:])] + [(12 + k // 2, x) for k, x in enumerate(P)])
        body([], rdadv + [(1, "s_waitcnt vmcnt(11)")] + [(2 + k, x) for k, x in enumerate(G2)], 8,
             reads(0, 0), [], [(1 + k, x) for k, x in enumerate(GC)])
        W1 = []
        n = 0
        for x in PC:
            if x.startswith("buffer_store"):
                if n:
                    W1.append("v_xor_b32 %s, 0x%x, %s" % (v(VWT + (n & 1)), n << 4, v(VWL)))
                W1.append("ds_write_b128 %s, %s" % (v(VWT + (n & 1)) if n else v(VWL), v(ROUT + 4 * n, 4)))
                n += 1
            else:
                W1.append(x)
        exA = [(SW0 - 1, "s_waitcnt vmcnt(1)")] + [(SW0 + k * (24 - SW0) // len(W1), x) for k, x in enumerate(W1)]
        exB = [(j, "ds_read_b128 %s, %s offset:%d" % (v(RIN + 4 * j, 4), v(VRA + (j & 3)), 1024 * j)) for j in range(8)]
        exB.append((8, "s_movk_i32 %s, 0x1000" % s(S_T4)))
        for j in range(8):
            exB.append((10 + j, "s_waitcnt lgkmcnt(%d)" % (7 - j)))
            exB.append((10 + j, "buffer_store_dwordx4 %s, %s, %s, %s offen offset:%d%s" % (
                v(RIN + 4 * j, 4), v(VRS), s(SRD_WS, 4), s(S_T4) if j >= 4 else "0", 1024 * (j & 3), WT + WTS)))
        body([], exA, None, [], [], exB, bar=False)
    stamp_get(em, 0)
    stamp_put(em, VS, 1, True)
    stamp_put(em, VS, 2)
    stamp_put(em, VS, 0)
    c0 = -2.0 * math.log2(math.e) * math.sqrt(2.0 / math.pi)
    c1 = c0 * 0.044715
    em.i("s_mov_b32 %s, 0x%x" % (s(S_C0), f2u(c0)))
    em.i("s_mov_b32 %s, 0x%x" % (s(S_C0 + 1), f2u(c0)))
    em.i("v_mov_b32 %s, 0x%x" % (v(VT + 1), f2u(c1)))
    em.i("v_mov_b32 %s, 0x%x" % (v(VT + 2), f2u(c1)))
    C1 = VT + 1
    assert C1 % 2 == 0
    def gelu_pair(x, tmp, dst):
        X = v(x, 2)
        T = v(tmp, 2)
        return [
            "v_pk_mul_f32 %s, %s, %s" % (T, X, X),
            "v_pk_fma_f32 %s, %s, %s, %s" % (T, T, v(C1, 2), s(S_C0, 2)),
            "v_pk_mul_f32 %s, %s, %s" % (T, T, X),
            "v_exp_f32 %s, %s" % (v(tmp), v(tmp)),
            "v_exp_f32 %s, %s" % (v(tmp + 1), v(tmp + 1)),
            "v_pk_add_f32 %s, %s, 1.0 op_sel_hi:[1,0]" % (T, T),
            "v_rcp_f32 %s, %s" % (v(tmp), v(tmp)),
            "v_rcp_f32 %s, %s" % (v(tmp + 1), v(tmp + 1)),
            "v_pk_mul_f32 %s, %s, %s" % (T, T, X),
            "v_cvt_pk_bf16_f32 %s, %s, %s" % (v(dst), v(tmp), v(tmp + 1)),
        ]

    if PF & 2:
        emit_pf(em, code_pf("k2_kernel", "L_k2_end", 94, 2))
    grp = 0
    SIDE0 = 5
    NSC = 4
    per = (len(SC) + NSC - 1) // NSC
    for t in range(4):
        for uu in range(3):
            base = acc(t, 2 * uu)
            outr = TMP + 8 + 4 * (grp % 4)
            ls = [gelu_pair(base + 2 * k, TMP + 2 * k + 24 * (grp & 1), outr + k) for k in range(4)]
            if grp == 0 and not SIDE:
                ls += [SL[:9], SL[9:], P[:10], P[10:]]
                ls = ls[:4] + [SL[:9], SL[9:]] + [P[0::2], P[1::2]]
            if grp == SIDE0 and not SIDE:
                em.i("s_waitcnt vmcnt(%d)" % SIDE0)
            if SIDE0 <= grp < SIDE0 + NSC and not SIDE:
                ch = SC[per * (grp - SIDE0):per * (grp - SIDE0 + 1)]
                ls += [ch[0::2], ch[1::2]]
            for x in interleave(ls):
                em.i(x)
            em.i("s_add_u32 %s, %s, 0x%x" % (s(S_T1 + (grp & 1)), s(S_T0), t * TILE_B + 1024 * uu))
            em.i("buffer_store_dwordx4 %s, %s, %s, %s offen%s" % (v(outr, 4), v(VT), s(SRD_WS, 4), s(S_T1 + (grp & 1)), WT + WTH))
            grp += 1
    stamp_end(em, VS, SRD_WS, S_WV, 0)
    em.i("s_endpgm")


def gen_k1(em):
    em.raw(".globl k1_kernel")
    em.raw(".p2align 8")
    em.raw(".type k1_kernel,@function")
    em.label("k1_kernel")
    em.fence()
    em.i("s_cmp_ge_u32 s2, 256")
    em.i("s_cbranch_scc1 L_k1_end")
    stamp_get(em, 0, True)
    stamp_get(em, 1)
    if PROF:
        em.i("s_mov_b32 %s, 0" % s(S_TI))
    em.i("s_load_dwordx4 s[4:7], s[0:1], 0")
    em.i("s_load_dwordx2 s[8:9], s[0:1], 16")
    em.i("s_load_dwordx4 s[12:15], s[0:1], 32")
    em.i("s_load_dwordx2 s[16:17], s[0:1], 48")
    em.i("s_load_dwordx2 s[18:19], s[0:1], 64")
    em.i("s_load_dwordx2 s[20:21], s[0:1], 88")
    em.i("v_lshrrev_b32 v1, 6, v0")
    em.i("v_and_b32 v0, 63, v0")
    em.i("v_readfirstlane_b32 %s, v1" % s(S_WV))
    if PF & 8:
        em.i("s_lshr_b32 s94, s2, 3")
        em.i("s_lshl2_add_u32 s94, s94, %s" % s(S_WV))
        emit_pf(em, code_pf("L_q0", "L_h_tail" if PF & 16 else "L_k1_end", 94, PFN))
    em.i("s_and_b32 %s, s2, 1" % s(S_P))
    em.i("s_lshr_b32 %s, s2, 5" % s(S_B))
    em.i("s_bfe_u32 %s, s2, 0x20001" % s(S_CG))
    em.i("s_lshl_b32 %s, %s, 1" % (s(S_CG), s(S_CG)))
    em.i("s_bfe_u32 %s, s2, 0x10003" % s(S_T0))
    em.i("s_add_u32 %s, %s, %s" % (s(S_CG), s(S_CG), s(S_T0)))
    em.i("s_bitcmp1_b32 s2, 4")
    em.i("s_cbranch_scc1 L_h")
    em.i("s_cmp_eq_u32 %s, 1" % s(S_WV))
    em.i("s_cbranch_scc1 L_q1")
    em.i("s_cmp_eq_u32 %s, 2" % s(S_WV))
    em.i("s_cbranch_scc1 L_q2")
    em.i("s_cmp_eq_u32 %s, 3" % s(S_WV))
    em.i("s_cbranch_scc1 L_q3")
    gen_q(em, 0, 0)
    gen_q(em, 0, 1)
    gen_q(em, 1, 0)
    gen_q(em, 1, 1)
    gen_h(em)
    em.label("L_k1_end")
    em.i("s_endpgm")


K2_LDS = 4 * 3 * 5 * 1024


def gen_k2(em, depth=3):
    NB = depth + 1
    SW, SO, SB2 = 8, 12, 16
    S_W_, S_RB, S_C = 20, 21, 22
    S_AO, S_AH, S_WO, S_WH = 24, 25, 26, 27
    S_A, S_Wf = 28, 30
    T0, T1, T2, T3 = 32, 33, 34, 35
    S_OUT = 38
    VL, VT = 0, 1
    VA = 8
    VW, VW4 = 12, 13
    VS = 14
    GP = 16
    OP = 24
    B2 = 32
    VTA, VTS = 42, 43
    accA = lambda t, j: 44 + (t * 5 + j) * 4
    accB = lambda t, j: 124 + (t * 5 + j) * 4
    RED = 204
    VTD = 208
    VLW = 208
    VLR = 212
    VG4 = 213
    VOUT = 214
    VB2 = 215
    FR = lambda b, k: b * 36 + k * 4
    em.raw(".globl k2_kernel")
    em.raw(".p2align 8")
    em.raw(".type k2_kernel,@function")
    em.label("k2_kernel")
    em.fence()
    em.i("s_cmp_ge_u32 s2, 256")
    em.i("s_cbranch_scc1 L_k2_end")
    stamp_get(em, 0, True)
    stamp_get(em, 1)
    if PROF:
        em.i("s_mov_b32 %s, 0" % s(S_TI))
    em.i("s_load_dwordx2 s[4:5], s[0:1], 88")
    em.i("s_load_dwordx2 s[6:7], s[0:1], 72")
    em.i("s_load_dwordx2 s[36:37], s[0:1], 56")
    em.i("v_lshrrev_b32 v1, 6, v0")
    em.i("v_and_b32 v0, 63, v0")
    em.i("v_readfirstlane_b32 %s, v1" % s(S_W_))
    if AFF & 1:
        em.i("s_and_b32 %s, s2, 1" % s(S_RB))
        em.i("s_lshl_b32 %s, %s, 4" % (s(S_RB), s(S_RB)))
        em.i("s_bfe_u32 %s, s2, 0x10001" % s(T0))
        em.i("s_lshl_b32 %s, %s, 3" % (s(T0), s(T0)))
        em.i("s_add_u32 %s, %s, %s" % (s(S_RB), s(S_RB), s(T0)))
        em.i("s_lshr_b32 %s, s2, 5" % s(T0))
        em.i("s_add_u32 %s, %s, %s" % (s(S_RB), s(S_RB), s(T0)))
        em.i("s_bfe_u32 %s, s2, 0x10002" % s(S_C))
        em.i("s_lshl_b32 %s, %s, 2" % (s(S_C), s(S_C)))
        em.i("s_bfe_u32 %s, s2, 0x20003" % s(T0))
        em.i("s_add_u32 %s, %s, %s" % (s(S_C), s(S_C), s(T0)))
    else:
        em.i("s_bfe_u32 %s, s2, 0x20001" % s(S_RB))
        em.i("s_lshl_b32 %s, %s, 3" % (s(S_RB), s(S_RB)))
        em.i("s_lshr_b32 %s, s2, 5" % s(T0))
        em.i("s_add_u32 %s, %s, %s" % (s(S_RB), s(S_RB), s(T0)))
        em.i("s_and_b32 %s, s2, 1" % s(S_C))
        em.i("s_lshl_b32 %s, %s, 2" % (s(S_C), s(S_C)))
        em.i("s_bfe_u32 %s, s2, 0x20003" % s(T0))
        em.i("s_add_u32 %s, %s, %s" % (s(S_C), s(S_C), s(T0)))
    em.i("v_lshlrev_b32 %s, 4, %s" % (v(VT), v(VL)))
    em.i("s_mul_i32 %s, %s, 0x%x" % (s(T0), s(S_RB), 4 * TILE_B))
    for n in range(4):
        em.i("s_add_u32 %s, %s, %d" % (s(T1), s(S_W_), n))
        em.i("s_and_b32 %s, %s, 3" % (s(T1), s(T1)))
        em.i("s_mul_i32 %s, %s, 0x%x" % (s(T2), s(T1), TILE_B))
        em.i("s_add_u32 %s, %s, %s" % (s(T2), s(T2), s(T0)))
        em.i("v_add_u32 %s, %s, %s" % (v(VA + n), s(T2), v(VT)))
    em.i("s_mul_i32 %s, %s, 5120" % (s(T0), s(S_C)))
    em.i("s_add_u32 %s, %s, 0x%x" % (s(T0), s(T0), WF_OFF))
    em.i("v_add_u32 %s, %s, %s" % (v(VW), s(T0), v(VT)))
    em.i("v_add_u32 %s, 0x1000, %s" % (v(VW4), v(VW)))
    em.i("s_mul_i32 %s, %s, 5120" % (s(S_AO), s(S_W_)))
    em.i("s_mul_i32 %s, %s, 12288" % (s(S_AH), s(S_W_)))
    em.i("s_add_u32 %s, %s, 20480" % (s(S_AH), s(S_AH)))
    em.i("s_mul_i32 %s, %s, 40" % (s(S_WO), s(S_AO)))
    em.i("s_mul_i32 %s, %s, 40" % (s(S_WH), s(S_AH)))
    S_CA, S_EA, S_CH, S_EH = 40, 41, 42, 43
    if ROT2:
        em.i("s_lshr_b32 %s, s2, 5" % s(T0))
        em.i("s_bfe_u32 %s, s2, 0x20003" % s(T1))
        em.i("s_add_u32 %s, %s, %s" % (s(S_CA), s(T0), s(T1)))
        for _ in range(2):
            em.i("s_sub_u32 %s, %s, 5" % (s(T2), s(S_CA)))
            em.i("s_cmp_ge_u32 %s, 5" % s(S_CA))
            em.i("s_cselect_b32 %s, %s, %s" % (s(S_CA), s(T2), s(S_CA)))
        if ROT2 & 2:
            em.i("s_mov_b32 %s, 0" % s(S_CA))
        em.i("s_lshl_b32 %s, %s, 10" % (s(S_CA), s(S_CA)))
        em.i("s_add_u32 %s, %s, %s" % (s(S_CA), s(S_CA), s(S_AO)))
        em.i("s_add_u32 %s, %s, 5120" % (s(S_EA), s(S_AO)))
        em.i("s_mul_i32 %s, %s, 3" % (s(T0), s(T0)))
        em.i("s_lshr_b32 %s, %s, 1" % (s(T0), s(T0)))
        em.i("s_mul_i32 %s, %s, 3" % (s(T1), s(T1)))
        em.i("s_add_u32 %s, %s, %s" % (s(S_CH), s(T0), s(T1)))
        em.i("s_sub_u32 %s, %s, 12" % (s(T2), s(S_CH)))
        em.i("s_cmp_ge_u32 %s, 12" % s(S_CH))
        em.i("s_cselect_b32 %s, %s, %s" % (s(S_CH), s(T2), s(S_CH)))
        em.i("s_lshl_b32 %s, %s, 10" % (s(S_CH), s(S_CH)))
        em.i("s_add_u32 %s, %s, %s" % (s(S_CH), s(S_CH), s(S_AH)))
        em.i("s_add_u32 %s, %s, 12288" % (s(S_EH), s(S_AH)))

    P = []
    f = 128 // TG
    NLs, NA = 13 * f, 8 * f
    if TOUCH2:
        P.append("v_mul_u32_u24 %s, 0x%x, %s" % (v(VT + 1), {1: 0x13B2, 2: 2521}[f], v(VL)))
        P.append("v_lshrrev_b32 %s, 16, %s" % (v(VT + 1), v(VT + 1)))
        P.append("v_mul_u32_u24 %s, %d, %s" % (v(VT + 2), NLs, v(VT + 1)))
        P.append("v_sub_u32 %s, %s, %s" % (v(VT + 2), v(VL), v(VT + 2)))
        P.append("s_bfe_u32 %s, s2, 0x20003" % s(T1))
        P.append("s_lshl_b32 %s, %s, 2" % (s(T2), s(S_RB)))
        P.append("s_add_u32 %s, %s, %s" % (s(T1), s(T1), s(T2)))
        P.append("s_mul_i32 %s, %s, 0x%x" % (s(T1), s(T1), TILE_B))
        P.append("s_lshr_b32 %s, s2, 5" % s(T2))
        P.append("s_mul_i32 %s, %s, 640" % (s(T2), s(T2)))
        P.append("s_add_u32 %s, %s, %s" % (s(T2), s(T2), s(T0)))
        P.append("s_sub_u32 %s, %s, %d" % (s(T2), s(T2), NA * TG))
        P.append("v_mov_b32 %s, %s" % (v(VT + 3), s(T2)))
        P.append("v_mov_b32 %s, %s" % (v(VT + 4), s(T1)))
        P.append("v_cmp_gt_u32 vcc, %d, %s" % (NA, v(VT + 2)))
        P.append("v_cndmask_b32 %s, %s, %s, vcc" % (v(VT + 3), v(VT + 3), v(VT + 4)))
        P.append("v_mov_b32 %s, 0xa000" % v(VTS))
        P.append("v_mov_b32 %s, 0x400" % v(VT + 4))
        P.append("v_cndmask_b32 %s, %s, %s, vcc" % (v(VTS), v(VTS), v(VT + 4)))
        P.append("v_lshl_add_u32 %s, %s, %d, %s" % (v(VT + 3), v(VT + 2), {128: 7, 64: 6}[TG], v(VT + 3)))
        P.append("v_mad_u32_u24 %s, %s, %s, %s" % (v(VT + 3), v(VT + 1), v(VTS), v(VT + 3)))
        P.append("v_mov_b32 %s, 0x%x" % (v(VT + 4), BIGOFF))
        P.append("v_cmp_gt_u32 vcc, 2, %s" % v(VT + 1))
        P.append("v_cndmask_b32 %s, %s, %s, vcc" % (v(VT + 3), v(VT + 4), v(VT + 3)))
        P.append("s_mul_i32 %s, %s, 5" % (s(T1), s(S_W_)))
        P.append("s_add_u32 %s, %s, 3" % (s(T1), s(T1)))
        P.append("s_mul_i32 %s, %s, 12" % (s(T2), s(S_W_)))
        P.append("s_add_u32 %s, %s, 20" % (s(T2), s(T2)))
        P.append("v_mad_u32_u24 %s, %s, %s, %s" % (v(VT + 4), v(VTS), s(T1), v(VT + 3)))
        P.append("v_mad_u32_u24 %s, %s, %s, %s" % (v(VTA), v(VTS), s(T2), v(VT + 3)))
        P.append("v_lshlrev_b32 %s, 1, %s" % (v(VTS), v(VTS)))
    P2 = []
    P2.append("v_and_b32 %s, 15, %s" % (v(VT + 1), v(VL)))
    P2.append("v_lshlrev_b32 %s, 2, %s" % (v(VG4), v(VT + 1)))
    P2.append("v_lshrrev_b32 %s, 4, %s" % (v(VT + 3), v(VL)))
    P2.append("v_lshlrev_b32 %s, 3, %s" % (v(VB2), v(VT + 3)))
    P2.append("v_mul_u32_u24 %s, 0xa00, %s" % (v(VOUT), v(VT + 1)))
    P2.append("v_add_u32 %s, %s, %s" % (v(VOUT), v(VOUT), v(VB2)))
    GL = []
    for n in range(4):
        GL.append("s_add_u32 %s, %s, %d" % (s(T1), s(S_W_), n))
        GL.append("s_and_b32 %s, %s, 3" % (s(T1), s(T1)))
        if n:
            GL.append("s_mul_i32 %s, %s, 15360" % (s(T2), s(T1)))
            GL.append("v_add_u32 %s, %s, %s" % (v(VLW + n), s(T2), v(VT)))
        else:
            GL.append("s_mul_i32 %s, %s, 15360" % (s(T2), s(T1)))
            GL.append("v_add_u32 %s, %s, %s" % (v(VLR), s(T2), v(VT)))
        GL.append("s_lshl_b32 %s, %s, 2" % (s(T2), s(S_RB)))
        GL.append("s_add_u32 %s, %s, %s" % (s(T1), s(T1), s(T2)))
        GL.append("s_lshl_b32 %s, %s, 6" % (s(T1), s(T1)))
        GL.append("s_add_u32 %s, %s, 0x%x" % (s(T1), s(T1), G_OFF))
        GL.append("buffer_load_dword %s, %s, %s, %s offen" % (v(GP + 2 * n), v(VG4), s(SW, 4), s(T1)))
    BL = ["s_mul_i32 %s, %s, 160" % (s(T3), s(S_C))]
    for j in range(5):
        BL.append("buffer_load_dwordx2 %s, %s, %s, %s offen offset:%d" % (v(B2 + 2 * j, 2), v(VB2), s(SB2, 4), s(T3), 32 * j))
    BL.append("s_lshl_b32 %s, %s, 2" % (s(S_OUT), s(S_RB)))
    BL.append("s_add_u32 %s, %s, %s" % (s(S_OUT), s(S_OUT), s(S_W_)))
    BL.append("s_lshr_b32 %s, %s, 6" % (s(T2), s(S_OUT)))
    BL.append("s_and_b32 %s, %s, 63" % (s(S_OUT), s(S_OUT)))
    BL.append("s_lshl_b32 %s, %s, 5" % (s(S_OUT), s(S_OUT)))
    BL.append("s_add_u32 %s, %s, %s" % (s(S_OUT), s(S_OUT), s(T2)))
    BL.append("s_mul_i32 %s, %s, 0x500" % (s(S_OUT), s(S_OUT)))
    BL.append("s_add_u32 %s, %s, %s" % (s(S_OUT), s(S_OUT), s(T3)))

    for y in P2 + P:
        em.i(y)
    P, P2 = [], []
    em.i("s_waitcnt lgkmcnt(0)")
    stamp_put(em, VS, 0)
    stamp_put(em, VS, 1)
    stamp_get(em, 0)
    srd(em, SW, 4, WS_SIZE)

    seq = []

    def emit(x, tag=None):
        em.i(x)
        if x.startswith("buffer_"):
            seq.append(tag)

    def younger(tag):
        last = max(k for k, t in enumerate(seq) if t == tag)
        return len(seq) - 1 - last

    def loads(ks):
        b = ks % NB
        L = []
        if ROT2:
            cur, end, base = (S_CA, S_EA, S_AO) if ks < 5 else (S_CH, S_EH, S_AH)
            L.append("s_mov_b32 %s, %s" % (s(S_A + (ks & 1)), s(cur)))
            L.append("s_mul_i32 %s, %s, 40" % (s(S_Wf + (ks & 1)), s(cur)))
        elif ks < 5:
            L.append("s_add_u32 %s, %s, 0x%x" % (s(S_A + (ks & 1)), s(S_AO), 1024 * ks))
            L.append("s_add_u32 %s, %s, 0x%x" % (s(S_Wf + (ks & 1)), s(S_WO), 40960 * ks))
        else:
            L.append("s_add_u32 %s, %s, 0x%x" % (s(S_A + (ks & 1)), s(S_AH), 1024 * (ks - 5)))
            L.append("s_add_u32 %s, %s, 0x%x" % (s(S_Wf + (ks & 1)), s(S_WH), 40960 * (ks - 5)))
        order = [("a", 0), ("w", 0), ("a", 1), ("a", 2), ("a", 3), ("w", 1), ("w", 2), ("w", 3), ("w", 4)]
        for kd, n in order:
            if kd == "a":
                L.append("buffer_load_dwordx4 %s, %s, %s, %s offen" % (a(FR(b, n), 4), v(VA + n), s(SW, 4), s(S_A + (ks & 1))))
            elif n < 4:
                L.append("buffer_load_dwordx4 %s, %s, %s, %s offen offset:%d" % (a(FR(b, 4 + n), 4), v(VW), s(SW, 4), s(S_Wf + (ks & 1)), 1024 * n))
            else:
                L.append("buffer_load_dwordx4 %s, %s, %s, %s offen" % (a(FR(b, 8), 4), v(VW4), s(SW, 4), s(S_Wf + (ks & 1))))
        if ROT2 and ks not in (4, 16):
            L.append("s_add_u32 %s, %s, 0x400" % (s(cur), s(cur)))
            L.append("s_cmp_eq_u32 %s, %s" % (s(cur), s(end)))
            L.append("s_cselect_b32 %s, %s, %s" % (s(cur), s(base), s(cur)))
        return [(x, ("L", ks)) for x in L]

    NK = 17
    tsched = {}
    if TOUCH2:
        for k0 in range(3, NK, 2):
            tsched.setdefault(max(-1, k0 - depth - TL2), []).append(k0)

    def touch(k0):
        if k0 == 3:
            return [("buffer_load_dword %s, %s, %s, 0 offen" % (v(VTD), v(VT + 4), s(SW, 4)), "T")]
        L = [("buffer_load_dword %s, %s, %s, 0 offen" % (v(VTD), v(VTA), s(SW, 4)), "T")]
        if k0 + 2 < NK:
            L.append(("v_add_u32 %s, %s, %s" % (v(VTA), v(VTA), v(VTS)), None))
        return L

    l0 = loads(0)
    for k, (x, t) in enumerate(l0):
        emit(x, t)
        for y in P[4 * k:4 * k + 4]:
            emit(y)
    for y in P[4 * len(l0):]:
        emit(y)
    first_touch = tsched.get(-1, [])
    if TOUCHPOS2 == 0:
        for k0 in first_touch:
            for x, t in touch(k0):
                emit(x, t)
    for ks in range(1, depth):
        for x, t in loads(ks):
            emit(x, t)
        if TOUCHPOS2 == ks:
            for k0 in first_touch:
                for x, t in touch(k0):
                    emit(x, t)
    srd(em, SO, 6, X_BYTES)
    srd(em, SB2, 36, 1280)
    for y in P2:
        emit(y)
    side = {}
    side[1] = [(x, "G") for x in GL]
    side[9] = [(x, "B") for x in BL]
    og = []
    for n in range(4):
        og.append("v_sub_f32 %s, 1.0, %s" % (v(OP + 2 * n), v(GP + 2 * n)))
        og.append("v_cvt_pk_bf16_f32 %s, %s, %s" % (v(OP + 2 * n), v(OP + 2 * n), v(OP + 2 * n)))
        og.append("v_lshlrev_b32 %s, 16, %s" % (v(OP + 2 * n), v(OP + 2 * n)))
    sc = []
    for n in range(4):
        for j in range(5):
            for h in range(2):
                A_ = v(accA(n, j) + 2 * h, 2)
                sc.append("v_pk_mul_f32 %s, %s, %s op_sel_hi:[1,0]" % (A_, A_, v(GP + 2 * n, 2)))
    side[1 + depth + 1] = [(x, None) for x in og]
    assert 1 + depth + 1 != 9
    for k in range(4):
        side[10 + k] = [(x, None) for x in sc[10 * k:10 * k + 10]]
    for ks in range(NK):
        b = ks % NB
        accf = accA if ks < 5 else accB
        first = ks in (0, 5)
        mf = []
        for j in range(5):
            for t in range(4):
                mf.append(mfma(v(accf(t, j), 4), a(FR(b, 4 + j), 4), a(FR(b, t), 4), "0" if first else None))
        nxt = loads(ks + depth) if ks + depth < NK else []
        for k0 in tsched.get(ks, []):
            nxt += touch(k0)
        stamp_get(em, 1)
        em.i("s_waitcnt vmcnt(%d)" % min(63, younger(("L", ks))))
        stamp_put(em, VS, 0, True)
        stamp_put(em, VS, 1)
        stamp_get(em, 0)
        ext = side.get(ks, [])
        k = 0
        e = 0
        per = (len(ext) + 8) // 9 if ext else 0
        for mi, m in enumerate(mf):
            em.i(m)
            if k < len(nxt):
                emit(*nxt[k])
                k += 1
            elif e < len(ext):
                for _ in range(max(1, per)):
                    if e < len(ext):
                        emit(*ext[e])
                        e += 1
        while k < len(nxt):
            emit(*nxt[k])
            k += 1
        while e < len(ext):
            emit(*ext[e])
            e += 1
    stamp_get(em, 1)
    stamp_put(em, VS, 0, True)
    stamp_put(em, VS, 1)
    for n in (1, 2, 3):
        for j in range(5):
            for h in range(2):
                A_ = v(accA(n, j) + 2 * h, 2)
                B_ = v(accB(n, j) + 2 * h, 2)
                em.i("v_pk_fma_f32 %s, %s, %s, %s op_sel_hi:[1,0,1]" % (A_, B_, v(OP + 2 * n, 2), A_))
            em.i("ds_write_b128 %s, %s offset:%d" % (v(VLW + n), v(accA(n, j), 4), (n - 1) * 5120 + j * 1024))
    for j in range(5):
        R = RED if j & 1 else accB(1, 0)
        em.i("v_lshlrev_b32 %s, 16, %s" % (v(R), v(B2 + 2 * j)))
        em.i("v_and_b32 %s, 0xffff0000, %s" % (v(R + 1), v(B2 + 2 * j)))
        em.i("v_lshlrev_b32 %s, 16, %s" % (v(R + 2), v(B2 + 2 * j + 1)))
        em.i("v_and_b32 %s, 0xffff0000, %s" % (v(R + 3), v(B2 + 2 * j + 1)))
        for h in range(2):
            B_ = v(accB(0, j) + 2 * h, 2)
            em.i("v_pk_add_f32 %s, %s, %s" % (B_, B_, v(R + 2 * h, 2)))
        for h in range(2):
            A_ = v(accA(0, j) + 2 * h, 2)
            B_ = v(accB(0, j) + 2 * h, 2)
            em.i("v_pk_fma_f32 %s, %s, %s, %s op_sel_hi:[1,0,1]" % (A_, B_, v(OP, 2), A_))
    stamp_get(em, 0)
    em.i("s_waitcnt lgkmcnt(0)")
    stamp_get(em, 1)
    em.i("s_barrier")
    stamp_get(em, 2)
    stamp_put(em, VS, 0, True)
    stamp_put(em, VS, 1)
    stamp_put(em, VS, 2)
    for j in range(5):
        for sl in range(3):
            em.i("ds_read_b128 %s, %s offset:%d" % (v(accB(1 + sl, j), 4), v(VLR), sl * 5120 + j * 1024))
    for j in range(5):
        em.i("s_waitcnt lgkmcnt(%d)" % (3 * (4 - j)))
        for h in range(2):
            A_ = v(accA(0, j) + 2 * h, 2)
            B1, B2_, B3 = [v(accB(1 + sl, j) + 2 * h, 2) for sl in range(3)]
            em.i("v_pk_add_f32 %s, %s, %s" % (A_, A_, B1))
            em.i("v_pk_add_f32 %s, %s, %s" % (B2_, B2_, B3))
        for h in range(2):
            A_ = v(accA(0, j) + 2 * h, 2)
            em.i("v_pk_add_f32 %s, %s, %s" % (A_, A_, v(accB(2, j) + 2 * h, 2)))
        r = accA(0, j)
        em.i("v_cvt_pk_bf16_f32 %s, %s, %s" % (v(r), v(r), v(r + 1)))
        em.i("v_cvt_pk_bf16_f32 %s, %s, %s" % (v(r + 1), v(r + 2), v(r + 3)))
        em.i("buffer_store_dwordx2 %s, %s, %s, %s offen offset:%d%s" % (v(r, 2), v(VOUT), s(SO, 4), s(S_OUT), 32 * j, WT2))
    stamp_end(em, VS, SW, S_W_, 0x40000)
    em.label("L_k2_end")
    em.i("s_endpgm")
    return NB * 36


def desc(name, nfv, acc_off):
    return """.amdhsa_kernel %s
  .amdhsa_next_free_vgpr %d
  .amdhsa_next_free_sgpr 96
  .amdhsa_accum_offset %d
  .amdhsa_group_segment_fixed_size 0
  .amdhsa_kernarg_size 96
  .amdhsa_user_sgpr_count 2
  .amdhsa_user_sgpr_kernarg_segment_ptr 1
  .amdhsa_system_sgpr_workgroup_id_x 1
.end_amdhsa_kernel
""" % (name, nfv, acc_off)


def main(out, which="12"):
    em = Em()
    if "1" in which:
        em.raw("; @launch kernel=k1_kernel grid=(256,1,1) block=(256,1,1) lds=%d" % K1_LDS)
    if "2" in which:
        em.raw("; @launch kernel=k2_kernel grid=(256,1,1) block=(256,1,1) lds=%d" % K2_LDS)
    em.raw('.amdgcn_target "amdgcn-amd-amdhsa--gfx950"')
    em.raw(".text")
    if "1" in which:
        gen_k1(em)
    if "2" in which:
        na = gen_k2(em, K2DEPTH)
    em.raw('.section .rodata,"a"')
    if "1" in which:
        em.raw(".p2align 6")
        em.raw(desc("k1_kernel", 256 + 104, 256))
    if "2" in which:
        em.raw(".p2align 6")
        em.raw(desc("k2_kernel", 216 + na, 216))
    open(out, "w").write(em.text())
    print("wrote", out, "lines", len(em.lines), "nop states", em.nops)


if __name__ == "__main__":
    main(sys.argv[1], sys.argv[2] if len(sys.argv) > 2 else "12")
```

```python
import math
import struct
import sys

from em import Em, interleave


def f2u(x):
    return struct.unpack("<I", struct.pack("<f", x))[0]


import os
PROF = int(os.environ.get("PROF", "0"))
K2DEPTH = int(os.environ.get("K2DEPTH", "3"))
ROT = int(os.environ.get("ROT", "5"))
WT = os.environ.get("WT", "")
WTH = os.environ.get("WTH", " sc1")
WTO = os.environ.get("WTO", " sc1")
WTS = os.environ.get("WTS", " sc1")
QT = int(os.environ.get("QT", "1"))
SIDE = int(os.environ.get("SIDE", "1"))
WT2 = os.environ.get("WT2", "")
EARLY = int(os.environ.get("EARLY", "1"))
TOUCH2 = int(os.environ.get("TOUCH2", "0"))
TG = int(os.environ.get("TG", "128"))
TL2 = int(os.environ.get("TL2", "3"))
TOUCHPOS2 = int(os.environ.get("TOUCHPOS2", "1"))
AFF = int(os.environ.get("AFF", "3"))
TCH = int(os.environ.get("TCH", "0"))
if TCH:
    ROT = 0
NODMA = int(os.environ.get("NODMA", "10"))
K2E = int(os.environ.get("K2E", "1"))
X64 = int(os.environ.get("X64", "0"))
B2PF = int(os.environ.get("B2PF", "1"))
ROT2 = int(os.environ.get("ROT2", "0"))
S_TW, S_TX = 88, 89
TWV = [int(c) for c in os.environ.get("TWV", "0123")]
VTW1, VTW2, VTX1, VTX2, VTDST = 250, 251, 252, 253, 254
NKS = 68
ACT_OFF = 0
WF_OFF = 0x900000
G_OFF = 0xC00000
WS_SIZE = 0xE00000 if PROF else 0xC02000
PROF_OFF = 0xD00000
S_TM = 72
S_TI = 80
TILE_B = NKS * 1024

X_BYTES = 2048 * 640 * 2
WQKV_BYTES = 640 * 1920 * 2
W1_BYTES = 640 * 1536 * 2
WO_BYTES = 640 * 640 * 2
W2_BYTES = 1536 * 640 * 2

Q_SLOT = 49152
Q_XSZ = 18432
H_SLOT = 40960
H_XSZ = 16384
XCH = 2 * Q_SLOT + Q_XSZ + 15 * 1024
K1_LDS = XCH + 43 * 512 if QT else 3 * Q_SLOT


def v(n, cnt=1):
    return "v%d" % n if cnt == 1 else "v[%d:%d]" % (n, n + cnt - 1)


def a(n, cnt=1):
    return "a%d" % n if cnt == 1 else "a[%d:%d]" % (n, n + cnt - 1)


def s(n, cnt=1):
    return "s%d" % n if cnt == 1 else "s[%d:%d]" % (n, n + cnt - 1)


def mfma(d, A, B, C=None):
    return "v_mfma_f32_16x16x32_bf16 %s, %s, %s, %s" % (d, A, B, d if C is None else C)


def stamp_get(em, r=0, real=False):
    if PROF == 2:
        if real:
            em.i("s_memrealtime s[84:85]")
        return
    if PROF:
        em.i("%s s[%d:%d]" % ("s_memrealtime" if real else "s_memtime", S_TM + 2 * r, S_TM + 2 * r + 1))


def stamp_put(em, vs, r=0, wait=False):
    if PROF != 1:
        return
    if wait:
        em.i("s_waitcnt lgkmcnt(0)")
    em.i("v_cmp_eq_u32 vcc, %s, v0" % s(S_TI))
    em.i("v_mov_b32 %s, %s" % (v(vs + 1), s(S_TM + 2 * r)))
    em.i("v_cndmask_b32 %s, %s, %s, vcc" % (v(vs), v(vs), v(vs + 1)))
    em.i("s_add_u32 %s, %s, 1" % (s(S_TI), s(S_TI)))


def stamp(em, vs, real=False):
    stamp_get(em, 0, real)
    stamp_put(em, vs, 0, True)


def stamp_end(em, vs, srdws, swave, koff):
    if not PROF:
        return
    if PROF == 2:
        em.i("s_waitcnt vmcnt(0)")
        em.i("s_memrealtime s[86:87]")
        em.i("s_waitcnt lgkmcnt(0)")
        em.i("v_mov_b32 %s, s84" % v(vs))
        em.i("v_writelane_b32 %s, s86, 1" % v(vs))
    else:
        stamp(em, vs)
        em.i("s_waitcnt vmcnt(0)")
        stamp(em, vs)
        stamp(em, vs, True)
    em.i("s_lshl_b32 %s, s2, 2" % s(S_TI))
    em.i("s_add_u32 %s, %s, %s" % (s(S_TI), s(S_TI), s(swave)))
    em.i("s_lshl_b32 %s, %s, 8" % (s(S_TI), s(S_TI)))
    em.i("s_add_u32 %s, %s, 0x%x" % (s(S_TI), s(S_TI), PROF_OFF + koff))
    em.i("v_lshlrev_b32 %s, 2, v0" % v(vs + 1))
    em.i("buffer_store_dword %s, %s, %s, %s offen" % (v(vs), v(vs + 1), s(srdws, 4), s(S_TI)))


def phase(em, mf, reads, dmas, extra=(), dma_start=1, dma_step=None):
    n = len(mf)
    if dmas:
        if dma_step is None:
            dma_step = max(1, (n - dma_start - 1) // len(dmas))
    dpos = {dma_start + k * dma_step: d for k, d in enumerate(dmas)} if dmas else {}
    assert all(p < n for p in dpos), (dpos.keys(), n)
    ri = 0
    ex = {}
    for p, ins in extra:
        ex.setdefault(p, []).append(ins)
    for k, m in enumerate(mf):
        if k in dpos:
            em.i(dpos[k][0])
        em.i(m)
        if k in dpos:
            em.i(dpos[k][1])
        if ri < len(reads):
            em.i(reads[ri])
            ri += 1
        for ins in ex.get(k, []):
            em.i(ins)
    while ri < len(reads):
        em.i(reads[ri])
        ri += 1


SRD_X, SRD_W, SRD_WS, SRD_T, SRD_T2 = 24, 28, 32, 36, 40
S_P, S_B, S_CG, S_WV = 44, 45, 46, 47
S_WOFF, S_WOFF2, S_XOFF, S_DM, S_RD, S_DELTA, S_CNT, S_STG = 48, 49, 50, 51, 52, 53, 54, 55
S_T0, S_T1, S_T2, S_T3, S_T4, S_T5 = 56, 57, 58, 59, 60, 61
S_C0 = 62
S_C1 = 64
S_UNIT = 66
S_EX = 68
S_RT = 70
BIGOFF = 0x7F000000


def srd(em, dst, base, nbytes, add=0):
    if add:
        em.i("s_add_u32 %s, %s, 0x%x" % (s(dst), s(base), add))
        em.i("s_addc_u32 %s, %s, 0" % (s(dst + 1), s(base + 1)))
    else:
        em.i("s_mov_b32 %s, %s" % (s(dst), s(base)))
        em.i("s_mov_b32 %s, %s" % (s(dst + 1), s(base + 1)))
    em.i("s_mov_b32 %s, 0x%x" % (s(dst + 2), nbytes))
    em.i("s_mov_b32 %s, 0x20000" % s(dst + 3))


PF = int(os.environ.get("PF", "15"))
PFN = int(os.environ.get("PFN", "5"))
_pfn = [0]


def code_pf(lo, hi, idx, nper):
    _pfn[0] += 1
    h = "L_pf%d" % _pfn[0]
    L = ["s_mul_i32 s92, %s, %d" % (s(idx), 64 * nper),
         "s_min_u32 s92, s92, %s-%s-%d" % (hi, lo, 64 * nper),
         "s_getpc_b64 s[90:91]",
         "@" + h,
         "s_add_u32 s92, s92, %s-%s" % (lo, h),
         "s_add_u32 s90, s90, s92",
         "s_addc_u32 s91, s91, 0"]
    for k in range(nper):
        L.append("s_load_dword s93, s[90:91], %d" % (64 * k))
    return L


def emit_pf(em, L):
    for x in L:
        if x.startswith("@"):
            em.label(x[1:])
        elif "L_" in x or "_kernel" in x or x.startswith("s_getpc") or x.startswith("s_load"):
            em.raw("    " + x)
        else:
            em.i(x)


def advance_dma(slot, wstep):
    L = []
    L.append("s_add_u32 %s, %s, 0x%x" % (s(S_WOFF), s(S_WOFF), wstep))
    L.append("s_add_u32 %s, %s, 1" % (s(S_STG), s(S_STG)))
    L.append("s_add_u32 %s, %s, 0x80" % (s(S_XOFF), s(S_XOFF)))
    if ROT:
        L.append("s_cmp_eq_u32 %s, 0x500" % s(S_XOFF))
        L.append("s_cselect_b32 %s, 0, %s" % (s(S_XOFF), s(S_XOFF)))
        L.append("s_cselect_b32 %s, 0, %s" % (s(S_WOFF), s(S_WOFF)))
    L.append("s_cmp_ge_u32 %s, %d" % (s(S_STG), NODMA))
    L.append("s_cselect_b32 %s, 0x%x, %s" % (s(S_XOFF), BIGOFF, s(S_XOFF)))
    if ROT:
        L.append("s_cselect_b32 %s, 0x%x, %s" % (s(S_WOFF), BIGOFF, s(S_WOFF)))
    L.append("s_add_u32 %s, %s, 0x%x" % (s(S_DM), s(S_DM), slot))
    L.append("s_cmp_eq_u32 %s, 0x%x" % (s(S_DM), 3 * slot))
    L.append("s_cselect_b32 %s, 0, %s" % (s(S_DM), s(S_DM)))
    return L


def rot_init(em, typ, wstep):
    if not ROT:
        em.i("s_mov_b32 %s, 0" % s(S_WOFF))
        em.i("s_mov_b32 %s, 0" % s(S_XOFF))
        return
    if ROT >= 2:
        G = ROT
        em.i("s_and_b32 %s, %s, 1" % (s(S_XOFF), s(S_CG)))
        em.i("s_lshl_b32 %s, %s, 1" % (s(S_XOFF), s(S_XOFF)))
        em.i("s_add_u32 %s, %s, %s" % (s(S_XOFF), s(S_XOFF), s(S_B)))
        if typ:
            em.i("s_add_u32 %s, %s, 1" % (s(S_XOFF), s(S_XOFF)))
        em.i("s_mul_i32 %s, %s, %d" % (s(S_WOFF), s(S_XOFF), (256 + G - 1) // G))
        em.i("s_lshr_b32 %s, %s, 8" % (s(S_WOFF), s(S_WOFF)))
        em.i("s_mul_i32 %s, %s, %d" % (s(S_WOFF), s(S_WOFF), G))
        em.i("s_sub_u32 %s, %s, %s" % (s(S_XOFF), s(S_XOFF), s(S_WOFF)))
        em.i("s_mul_i32 %s, %s, %d" % (s(S_XOFF), s(S_XOFF), round(160 / G)))
        em.i("s_lshr_b32 %s, %s, 4" % (s(S_XOFF), s(S_XOFF)))
        em.i("s_mul_i32 %s, %s, 0x%x" % (s(S_WOFF), s(S_XOFF), wstep))
        em.i("s_lshl_b32 %s, %s, 7" % (s(S_XOFF), s(S_XOFF)))
        for tt in range(11):
            assert (tt * ((256 + G - 1) // G)) >> 8 == tt // G
        return
    em.i("s_and_b32 %s, %s, 1" % (s(S_XOFF), s(S_CG)))
    em.i("s_mul_i32 %s, %s, 5" % (s(S_XOFF), s(S_XOFF)))
    em.i("s_add_u32 %s, %s, %s" % (s(S_XOFF), s(S_XOFF), s(S_B)))
    if typ:
        em.i("s_add_u32 %s, %s, 2" % (s(S_XOFF), s(S_XOFF)))
    em.i("s_sub_u32 %s, %s, 10" % (s(S_WOFF), s(S_XOFF)))
    em.i("s_cmp_ge_u32 %s, 10" % s(S_XOFF))
    em.i("s_cselect_b32 %s, %s, %s" % (s(S_XOFF), s(S_WOFF), s(S_XOFF)))
    em.i("s_mul_i32 %s, %s, 0x%x" % (s(S_WOFF), s(S_XOFF), wstep))
    em.i("s_lshl_b32 %s, %s, 7" % (s(S_XOFF), s(S_XOFF)))


def advance_rd(slot):
    L = []
    L.append("s_add_u32 %s, %s, 0x%x" % (s(S_RT), s(S_RD), slot))
    L.append("s_cmp_eq_u32 %s, 0x%x" % (s(S_RT), 3 * slot))
    L.append("s_cselect_b32 %s, 0, %s" % (s(S_RT), s(S_RT)))
    L.append("s_sub_u32 %s, %s, %s" % (s(S_DELTA), s(S_RT), s(S_RD)))
    L.append("s_mov_b32 %s, %s" % (s(S_RD), s(S_RT)))
    return L


def gen_q(em, rh, hp):
    w = 2 * rh + hp
    tag = "q%d" % w
    ha, hb = 2 * hp, 2 * hp + 1
    VL = 0
    VT = 1
    VWD = 8
    VXD = 12
    VXA0, VXA1, VWM, VWR = 18, 19, 20, 21
    ACC = 24
    accM = lambda t, c: ACC + (t * 6 + c) * 4
    accR = lambda n: ACC + 96 + n * 4
    accH = lambda n: ACC + 120 + n * 4
    NACC = 132
    EPI = 156
    FR = lambda st, k: st * 52 + k * 4
    wp = [range(0, 4), range(4, 8), range(8, 12), range(12, 15)][w]
    xi = [range(0, 4), range(4, 8), range(8, 12), range(12, 18)][w]
    em.label("L_%s" % tag)
    em.fence()
    em.i("v_lshrrev_b32 %s, 3, %s" % (v(VT), v(VL)))
    em.i("v_mul_u32_u24 %s, 0xa00, %s" % (v(VT), v(VT)))
    em.i("v_lshrrev_b32 %s, 4, %s" % (v(VT + 1), v(VL)))
    em.i("v_xor_b32 %s, %s, %s" % (v(VT + 1), v(VT + 1), v(VL)))
    em.i("v_and_b32 %s, 7, %s" % (v(VT + 1), v(VT + 1)))
    em.i("v_lshl_add_u32 %s, %s, 4, %s" % (v(VT + 2), v(VT + 1), v(VT)))
    em.i("v_xor_b32 %s, 64, %s" % (v(VT + 3), v(VT + 2)))
    em.i("s_lshl_b32 %s, %s, 8" % (s(S_T0), s(S_B)))
    em.i("s_add_u32 %s, %s, %s" % (s(S_T0), s(S_T0), s(S_P)))
    em.i("s_mul_i32 %s, %s, 0x500" % (s(S_T0), s(S_T0)))
    em.i("s_sub_u32 %s, %s, 0x%x" % (s(S_T1), s(S_T0), 32 * 1280))
    em.i("s_cmp_eq_u32 %s, 0" % s(S_B))
    em.i("s_cselect_b32 %s, %s, %s" % (s(S_T2), s(S_T0), s(S_T1)))
    for n, i in enumerate(xi):
        src = VT + 2 + (i & 1)
        if i < 2:
            em.i("s_add_u32 %s, %s, 0x%x" % (s(S_T3), s(S_T2), 20480))
        else:
            em.i("s_add_u32 %s, %s, 0x%x" % (s(S_T3), s(S_T1), 20480 * i))
        em.i("v_add_u32 %s, %s, %s" % (v(VXD + n), s(S_T3), v(src)))
    em.i("s_mul_i32 %s, %s, 160" % (s(S_T4), s(S_CG)))
    for n, i in enumerate(wp):
        d = VWD + n
        em.i("v_add_u32 %s, 0x%x, %s" % (v(VT), 64 * i, v(VL)))
        em.i("v_mul_u32_u24 %s, 0x889, %s" % (v(VT + 1), v(VT)))
        em.i("v_lshrrev_b32 %s, 16, %s" % (v(VT + 1), v(VT + 1)))
        em.i("v_mul_u32_u24 %s, 30, %s" % (v(VT + 4), v(VT + 1)))
        em.i("v_sub_u32 %s, %s, %s" % (v(VT), v(VT), v(VT + 4)))
        em.i("v_mul_u32_u24 %s, 0xcd, %s" % (v(VT + 4), v(VT)))
        em.i("v_lshrrev_b32 %s, 11, %s" % (v(VT + 4), v(VT + 4)))
        em.i("v_mul_u32_u24 %s, 0x460, %s" % (v(VT + 4), v(VT + 4)))
        em.i("v_lshl_add_u32 %s, %s, 4, %s" % (v(VT), v(VT), v(VT + 4)))
        em.i("v_and_b32 %s, 0x13, %s" % (v(VT + 4), v(VT + 1)))
        em.i("v_and_b32 %s, 4, %s" % (v(VT + 5), v(VT + 1)))
        em.i("v_lshl_or_b32 %s, %s, 1, %s" % (v(VT + 4), v(VT + 5), v(VT + 4)))
        em.i("v_and_b32 %s, 8, %s" % (v(VT + 5), v(VT + 1)))
        em.i("v_lshrrev_b32 %s, 1, %s" % (v(VT + 5), v(VT + 5)))
        em.i("v_or_b32 %s, %s, %s" % (v(VT + 4), v(VT + 4), v(VT + 5)))
        em.i("v_mul_u32_u24 %s, 0xf00, %s" % (v(VT + 4), v(VT + 4)))
        em.i("v_add3_u32 %s, %s, %s, %s" % (v(d), v(VT), v(VT + 4), s(S_T4)))

    if TCH:
        wst = 64 * 3840
        em.i("s_and_b32 %s, %s, 1" % (s(S_T0), s(S_CG)))
        em.i("s_lshl_b32 %s, %s, 1" % (s(S_T1), s(S_B)))
        em.i("s_add_u32 %s, %s, %s" % (s(S_T0), s(S_T0), s(S_T1)))
        em.i("s_mul_i32 %s, %s, %d" % (s(S_T0), s(S_T0), 4 * 3840))
        em.i("s_lshr_b32 %s, %s, 1" % (s(S_T1), s(S_CG)))
        em.i("s_mul_i32 %s, %s, 320" % (s(S_T1), s(S_T1)))
        em.i("s_add_u32 %s, %s, %s" % (s(S_T0), s(S_T0), s(S_T1)))
        em.i("v_mul_u32_u24 %s, 86, %s" % (v(VT), v(VL)))
        em.i("v_lshrrev_b32 %s, 8, %s" % (v(VT), v(VT)))
        em.i("v_mul_u32_u24 %s, 0x380, %s" % (v(VT), v(VT)))
        em.i("v_lshl_add_u32 %s, %s, 7, %s" % (v(VT), v(VL), v(VT)))
        em.i("v_add_u32 %s, %s, %s" % (v(VT), s(S_T0), v(VT)))
        em.i("v_mov_b32 %s, 0x%x" % (v(VT + 4), BIGOFF))
        em.i("v_cmp_gt_u32 vcc, 36, %s" % v(VL))
        em.i("v_cndmask_b32 %s, %s, %s, vcc" % (v(VTW1), v(VT + 4), v(VT)))
    dma = []
    xl = [("s_add_u32 m0, %s, 0x%x" % (s(S_DM), 1024 * i),
           "buffer_load_dwordx4 %s, %s, %s offen lds" % (v(VXD + n), s(SRD_X, 4), s(S_XOFF))) for n, i in enumerate(xi)]
    wl = []
    for n, i in enumerate(wp):
        wl.append(("s_add_u32 m0, %s, 0x%x" % (s(S_DM), Q_XSZ + 1024 * i),
                   "buffer_load_dwordx4 %s, %s, %s offen lds" % (v(VWD + n), s(SRD_W, 4), s(S_WOFF))))
    for n, i in enumerate(wp):
        wl.append(("s_add_u32 m0, %s, 0x%x" % (s(S_DM), Q_XSZ + 1024 * (i + 15)),
                   "buffer_load_dwordx4 %s, %s, %s offen lds" % (v(VWD + n), s(SRD_W, 4), s(S_WOFF2))))
    dma = xl + wl
    assert len(dma) == 12
    adv = advance_dma(Q_SLOT, 64 * 3840) + ["s_add_u32 %s, %s, 0x%x" % (s(S_WOFF2), s(S_WOFF), 32 * 3840)]

    rot_init(em, 0, 64 * 3840)
    em.i("s_add_u32 %s, %s, 0x%x" % (s(S_WOFF2), s(S_WOFF), 32 * 3840))
    em.i("s_mov_b32 %s, 0" % s(S_DM))
    em.i("s_mov_b32 %s, 0" % s(S_STG))
    em.i("s_mov_b32 %s, 0" % s(S_RD))
    em.i("s_waitcnt lgkmcnt(0)")
    VS = 22
    stamp_put(em, VS, 0)
    stamp_put(em, VS, 1)
    stamp_get(em, 0)
    srd(em, SRD_X, 4, X_BYTES)
    srd(em, SRD_W, 6, WQKV_BYTES)
    if TCH and w == TWV[0]:
        em.i("s_mov_b32 %s, 0x%x" % (s(S_TW), 64 * 3840))
        em.i("buffer_load_dword %s, %s, %s, %s offen" % (v(VTDST), v(VTW1), s(SRD_W, 4), s(S_TW)))
    srd(em, SRD_WS, 20, WS_SIZE)
    for m, l in dma:
        em.i(m)
        em.i(l)
    for x in adv:
        em.i(x)
    if PF & 1 and QT:
        em.i("s_and_b32 s94, %s, 1" % s(S_CG))
        em.i("s_lshl1_add_u32 s94, %s, s94" % s(S_B))
        emit_pf(em, code_pf("L_%s_tail" % tag, "L_%s_end" % tag, 94, 4))
    F = []
    F.append("v_and_b32 %s, 15, %s" % (v(VT), v(VL)))
    F.append("v_lshrrev_b32 %s, 1, %s" % (v(VT + 1), v(VT)))
    F.append("v_lshrrev_b32 %s, 4, %s" % (v(VT + 2), v(VL)))
    F.append("v_xor_b32 %s, %s, %s" % (v(VT + 1), v(VT + 1), v(VT + 2)))
    F.append("v_lshlrev_b32 %s, 4, %s" % (v(VT + 1), v(VT + 1)))
    F.append("v_lshl_add_u32 %s, %s, 7, %s" % (v(VXA0), v(VT), v(VT + 1)))
    F.append("v_xor_b32 %s, 64, %s" % (v(VXA1), v(VXA0)))
    F.append("v_lshrrev_b32 %s, 5, %s" % (v(VT), v(VL)))
    F.append("v_lshlrev_b32 %s, 4, %s" % (v(VT), v(VT)))
    F.append("v_bfe_u32 %s, %s, 4, 1" % (v(VT + 1), v(VL)))
    F.append("v_lshl_add_u32 %s, %s, 2, %s" % (v(VT), v(VT + 1), v(VT)))
    F.append("v_bfe_u32 %s, %s, 2, 2" % (v(VT + 1), v(VL)))
    F.append("v_add_u32 %s, %s, %s" % (v(VT), v(VT), v(VT + 1)))
    F.append("v_mul_u32_u24 %s, 0x1e0, %s" % (v(VT), v(VT)))
    F.append("v_and_b32 %s, 3, %s" % (v(VT + 1), v(VL)))
    F.append("v_lshl_add_u32 %s, %s, 3, %s" % (v(VWM), v(VT + 1), v(VT)))
    F.append("v_mul_u32_u24 %s, 40, %s" % (v(VT + 1), v(VT + 1)))
    F.append("v_add3_u32 %s, %s, %s, 32" % (v(VWR), v(VT), v(VT + 1)))
    for r in range(ACC, ACC + NACC, 2):
        F.append("v_mov_b64 %s, 0" % v(r, 2))
    VE = EPI
    VHa, VHb, VRr = EPI + 2, EPI + 12, EPI + 22
    KP = (EPI + 32, EPI + 36)
    MC, MP, MPF = EPI + 40, EPI + 44, EPI + 48
    ONES = EPI + 52
    VMA, VMB = EPI + 56, EPI + 57
    QR = EPI + 58
    MKP, MKC = 222, 6

    class _L:
        def __init__(self):
            self.l = []

        def i(self, x):
            self.l.append(x)
    em_real = em
    em = _L()
    NEG = f2u(-1.0e30)
    em.i("v_and_b32 %s, 15, %s" % (v(VT), v(VL)))
    em.i("v_lshrrev_b32 %s, 4, %s" % (v(VT + 1), v(VL)))
    em.i("v_lshlrev_b32 %s, 2, %s" % (v(VT + 2), v(VT + 1)))
    em.i("v_sub_u32 %s, %s, %s" % (v(VT + 2), v(VT), v(VT + 2)))
    em.i("v_mov_b32 %s, 0x%x" % (v(VT + 3), NEG))
    for r in range(4):
        em.i("v_subrev_u32 %s, %d, %s" % (v(VT + 4), r, v(VT + 2)))
        em.i("v_cmp_gt_u32 vcc, 8, %s" % v(VT + 4))
        em.i("v_cndmask_b32 %s, %s, 0, vcc" % (v(MC + r), v(VT + 3)))
        em.i("v_cmp_ge_i32 vcc, -9, %s" % v(VT + 4))
        em.i("v_cndmask_b32 %s, %s, 0, vcc" % (v(MP + r), v(VT + 3)))
    if rh == 0:
        em.i("s_cmp_eq_u32 %s, 0" % s(S_B))
        em.i("s_cselect_b64 %s, -1, 0" % s(S_EX, 2))
        for r in range(4):
            em.i("v_cndmask_b32 %s, %s, %s, %s" % (v(MPF + r), v(MP + r), v(VT + 3), s(S_EX, 2)))
    for r in range(4):
        em.i("v_mov_b32 %s, 0x3f803f80" % v(ONES + r))
    em.i("v_cmp_eq_u32 vcc, %d, %s" % (ha, v(VT + 1)))
    em.i("v_cndmask_b32 %s, 0, -1, vcc" % v(VMA))
    em.i("v_cmp_eq_u32 %s, %d, %s" % (s(S_EX, 2), hb, v(VT + 1)))
    em.i("v_cndmask_b32 %s, 0, -1, %s" % (v(VMB), s(S_EX, 2)))
    em.i("s_mov_b32 %s, 0x%x" % (s(S_C0), f2u(20.0 ** -0.5 * math.log2(math.e))))
    em.i("s_mov_b32 %s, 0x%x" % (s(S_C0 + 1), f2u(20.0 ** -0.5 * math.log2(math.e))))
    em.i("s_lshl_b32 %s, %s, 6" % (s(S_T0), s(S_P)))
    em.i("s_lshl_b32 %s, %s, 3" % (s(S_T1), s(S_B)))
    em.i("s_add_u32 %s, %s, %s" % (s(S_T0), s(S_T0), s(S_T1)))
    em.i("s_add_u32 %s, %s, %d" % (s(S_T0), s(S_T0), 4 * rh))
    em.i("s_mul_i32 %s, %s, 0x%x" % (s(S_T0), s(S_T0), TILE_B))
    em.i("s_lshl_b32 %s, %s, 11" % (s(S_T1), s(S_CG)))
    em.i("s_add_u32 %s, %s, %s" % (s(S_T1), s(S_T1), s(S_T0)))
    em.i("s_add_u32 %s, %s, %d" % (s(S_T1), s(S_T1), 1024 * hp))
    em.i("s_lshr_b32 %s, %s, 1" % (s(S_T2), s(S_CG)))
    em.i("s_lshl_b32 %s, %s, 10" % (s(S_T2), s(S_T2)))
    em.i("s_add_u32 %s, %s, %s" % (s(S_T2), s(S_T2), s(S_T0)))
    em.i("s_and_b32 %s, %s, 1" % (s(S_T3), s(S_CG)))
    em.i("s_lshl_b32 %s, %s, 3" % (s(S_T3), s(S_T3)))
    em.i("s_add_u32 %s, %s, %s" % (s(S_T2), s(S_T2), s(S_T3)))
    em.i("s_add_u32 %s, %s, %d" % (s(S_T2), s(S_T2), 16 * 1024))
    em.i("v_lshlrev_b32 %s, 4, %s" % (v(VE + 1), v(VL)))
    em.i("s_movk_i32 %s, 0x7fff" % s(S_T3))
    em.i("s_lshl1_add_u32 %s, %s, 1" % (s(S_T3), s(S_T3)))
    for dst, src in ((MKP, MP), (MKC, MC)):
        for h in range(2):
            em.i("v_ashrrev_i32 %s, 31, %s" % (v(VT), v(src + 2 * h)))
            em.i("v_ashrrev_i32 %s, 31, %s" % (v(VT + 1), v(src + 2 * h + 1)))
            em.i("v_bfi_b32 %s, %s, %s, %s" % (v(VT), s(S_T3), v(VT), v(VT + 1)))
            em.i("v_not_b32 %s, %s" % (v(dst + h), v(VT)))
    em.i("v_lshlrev_b32 %s, 3, %s" % (v(VE), v(VL)))
    em.i("v_add_u32 %s, 0x%x, %s" % (v(VE), XCH, v(VE)))
    PRE = em.l
    em = em_real
    if QT:
        F += PRE
    per = (len(F) + 11) // 12
    cut = [min(len(F), per * n) for n in range(13)]
    cut = [c - 1 if 0 < c < len(F) and F[c - 1].startswith("s_cmp") else c for c in cut]
    for n, (m, l) in enumerate(dma):
        em.i(m)
        em.i(l)
        for x in F[cut[n]:cut[n + 1]]:
            em.i(x)
    for x in adv:
        em.i(x)
    if TCH:
        em.i("s_mov_b32 %s, 0x%x" % (s(S_TW), 2 * 64 * 3840 if w == TWV[1] else 3 * 64 * 3840 if w == TWV[2] else BIGOFF))
        em.i("buffer_load_dword %s, %s, %s, %s offen" % (v(VTDST), v(VTW1), s(SRD_W, 4), s(S_TW)))
        em.i("s_mov_b32 %s, 0x%x" % (s(S_TW), 4 * 64 * 3840 if w == TWV[3] else BIGOFF))
    if not EARLY:
        for m, l in dma[:6]:
            em.i(m)
            em.i(l)

    def reads(st, ks):
        L = []
        xa = VXA1 if ks else VXA0
        R = []
        for t in range(4):
            R.append("ds_read_b128 %s, %s offset:%d" % (a(FR(st, t), 4), v(xa), (1 + 4 * rh + t) * 2048))
        R.append("ds_read_b128 %s, %s offset:0" % (a(FR(st, 4), 4), v(xa)))
        Wl = []
        cols = [(0, ha), (0, hb), (1, ha), (1, hb), (2, ha), (2, hb)]
        for c, (P, hd) in enumerate(cols):
            for h in range(2):
                Wl.append("ds_read_b64_tr_b16 %s, %s offset:%d" % (
                    a(FR(st, 5 + c) + 2 * h, 2), v(VWM), Q_XSZ + (32 * ks + 8 * h) * 480 + 160 * P + 40 * hd))
        for c, P in enumerate([0 if hp == 0 else 2, 1]):
            for h in range(2):
                Wl.append("ds_read_b64_tr_b16 %s, %s offset:%d" % (
                    a(FR(st, 11 + c) + 2 * h, 2), v(VWR), Q_XSZ + (32 * ks + 8 * h) * 480 + 160 * P))
        return R + Wl

    krt = (0, 1) if hp == 0 else (2, 3)

    def mfmas(st):
        X = lambda t: a(FR(st, t), 4)
        XH = a(FR(st, 4), 4)
        W = lambda c: a(FR(st, 5 + c), 4)
        R0, R1 = a(FR(st, 11), 4), a(FR(st, 12), 4)
        L = []
        for t in range(4):
            for c in range(4):
                L.append(mfma(v(accM(t, c), 4), W(c), X(t)))
            for c in (4, 5):
                L.append(mfma(v(accM(t, c), 4), X(t), W(c)))
            if hp == 0:
                L.append(mfma(v(accR(t), 4), R0, X(t)))
            else:
                L.append(mfma(v(accR(t), 4), X(t), R0))
        for n, t in enumerate(krt):
            L.append(mfma(v(accR(4 + n), 4), R1, X(t)))
        if rh == 0:
            L.append(mfma(v(accH(0), 4), W(2), XH))
            L.append(mfma(v(accH(1), 4), W(3), XH))
            if hp == 0:
                L.append(mfma(v(accH(2), 4), R1, XH))
            else:
                L.append(mfma(v(accH(2), 4), XH, R0))
        else:
            L.append(mfma(v(accH(0), 4), XH, W(4)))
            L.append(mfma(v(accH(1), 4), XH, W(5)))
        return L

    stamp_get(em, 3)
    em.i("s_waitcnt vmcnt(%d)" % ((12 if EARLY else 18) + TCH))
    stamp_get(em, 1)
    em.i("s_barrier")
    stamp_get(em, 2)
    stamp_put(em, VS, 0, True)
    stamp_put(em, VS, 3)
    for r in reads(0, 0):
        em.i(r)
    if EARLY:
        for m, l in dma[:6]:
            em.i(m)
            em.i(l)
    em.i("s_mov_b32 %s, %d" % (s(S_CNT), 9 if QT else 10))
    em.label("L_%s_loop" % tag)
    top = em.mark()
    em.i("s_waitcnt lgkmcnt(0)")
    stamp_get(em, 0)
    stamp_put(em, VS, 1)
    stamp_put(em, VS, 2)
    ex = [(24 + k // 3, x) for k, x in enumerate(adv)]
    ex += [(22, x) for x in advance_rd(Q_SLOT)]
    ex.append((23, "v_add_u32 %s, %s, %s" % (v(VXA0), s(S_DELTA), v(VXA0))))
    ex.append((29, "v_add_u32 %s, %s, %s" % (v(VXA1), s(S_DELTA), v(VXA1))))
    ex.append((30, "v_add_u32 %s, %s, %s" % (v(VWM), s(S_DELTA), v(VWM))))
    ex.append((30, "v_add_u32 %s, %s, %s" % (v(VWR), s(S_DELTA), v(VWR))))
    phase(em, mfmas(0), reads(1, 1), dma[6:], extra=ex, dma_start=1, dma_step=4)
    stamp_get(em, 3)
    em.i("s_waitcnt vmcnt(%d) lgkmcnt(0)" % (12 + TCH))
    stamp_get(em, 1)
    em.i("s_barrier")
    stamp_get(em, 2)
    stamp_put(em, VS, 0)
    stamp_put(em, VS, 3)
    tq = []
    if TCH:
        tq = [(0, "buffer_load_dword %s, %s, %s, %s offen" % (v(VTDST), v(VTW1), s(SRD_W, 4), s(S_TW))),
              (2, "s_add_u32 %s, %s, 0x%x" % (s(S_TW), s(S_TW), 64 * 3840))]
    phase(em, mfmas(1), reads(0, 0), dma[:6], extra=tq + [(26, "s_sub_u32 %s, %s, 1" % (s(S_CNT), s(S_CNT))),
                                                    (27, "s_cmp_lg_u32 %s, 0" % s(S_CNT))], dma_start=1, dma_step=4)
    em.i("s_cbranch_scc1 L_%s_loop" % tag)
    em.check_backedge(top)
    Rs = lambda ty, tl: (ty * 9 + tl) * 512
    PMs = lambda wh, kd, hd: (27 + wh * 8 + kd * 4 + hd) * 512

    def cvt2(dst, src):
        return ["v_cvt_pk_bf16_f32 %s, %s, %s" % (v(dst), v(src), v(src + 1)),
                "v_cvt_pk_bf16_f32 %s, %s, %s" % (v(dst + 1), v(src + 2), v(src + 3))]

    if QT:
        em.label("L_%s_tail" % tag)
        em.i("s_waitcnt lgkmcnt(0)")
        stamp_get(em, 0)
        stamp_put(em, VS, 1)
        stamp_put(em, VS, 2)
        phase(em, mfmas(0), reads(1, 1), [])
        stamp_get(em, 3)
        em.i("s_waitcnt lgkmcnt(0)")
        stamp_get(em, 1)
        stamp_get(em, 2)
        stamp_put(em, VS, 0, True)
        stamp_put(em, VS, 3)
        mf = {int(m.split()[1][2:].split(":")[0]): m for m in mfmas(1)}
        post = {}
        wr = []
        for tt in range(4):
            wr.append((accR(tt), Rs(0 if hp == 0 else 2, 1 + 4 * rh + tt)))
        for n, tt in enumerate(krt):
            wr.append((accR(4 + n), Rs(1, 1 + 4 * rh + tt)))
        if rh == 0:
            wr += [(accH(0), PMs(0, 0, ha)), (accH(1), PMs(0, 0, hb)), (accH(2), Rs(1 if hp == 0 else 2, 0))]
        else:
            wr += [(accH(0), PMs(0, 1, ha)), (accH(1), PMs(0, 1, hb))]
        order = []
        for r, off in wr:
            order.append(r)
            post[r] = cvt2(r, r) + ["ds_write_b64 %s, %s offset:%d" % (v(VE), v(r, 2), off)]
        late = {}
        for tt in (3, 0, 1, 2):
            for e, c in ((0, 2), (1, 3)):
                r = accM(tt, c)
                order.append(r)
                post[r] = cvt2(r, r)
                if tt == 3 and rh == 0:
                    post[r].append("ds_write_b64 %s, %s offset:%d" % (v(VE), v(r, 2), PMs(1, 0, (ha, hb)[e])))
                late[r] = "ds_read_b64 %s, %s offset:%d" % (v(r + 2, 2), v(VE), Rs(1, 1 + 4 * rh + tt))
            for e, c in ((0, 4), (1, 5)):
                r = accM(tt, c)
                dst = (VHa, VHb)[e] + 2 + 2 * tt
                order.append(r)
                post[r] = cvt2(dst, r)
                if tt == 3 and rh == 0:
                    post[r].append("ds_write_b64 %s, %s offset:%d" % (v(VE), v(dst, 2), PMs(1, 1, (ha, hb)[e])))
        for tt in range(4):
            for c in (0, 1):
                r = accM(tt, c)
                order.append(r)
                post[r] = cvt2(r, r)
        assert sorted(order) == sorted(mf), (order, mf.keys())
        nwr = sum(1 for r in order for x in post[r] if x.startswith("ds_write"))
        XR = []
        for tt in range(4):
            XR.append("ds_read_b64 %s, %s offset:%d" % (v(QR + 2 * tt, 2), v(VE), Rs(0, 1 + 4 * rh + tt)))
        for e in range(2):
            XR.append("ds_read_b64 %s, %s offset:%d" % (v(KP[e], 2), v(VE), PMs(rh, 0, (ha, hb)[e])))
            XR.append("ds_read_b64 %s, %s offset:%d" % (v(KP[e] + 2, 2), v(VE), Rs(1, 4 * rh)))
            XR.append("ds_read_b64 %s, %s offset:%d" % (v((VHa, VHb)[e], 2), v(VE), PMs(rh, 1, (ha, hb)[e])))
        for tt in range(5):
            XR.append("ds_read_b64 %s, %s offset:%d" % (v(VRr + 2 * tt, 2), v(VE), Rs(2, 4 * rh + tt)))
        q = []
        st = {"w": 0, "bar": None, "done": set(), "lg": 0}
        BARK = int(os.environ.get("BARK", "24"))

        def put(x, r=None):
            if x.startswith("ds_"):
                if st["lg"] >= 15:
                    em.i("s_waitcnt lgkmcnt(7)")
                    st["lg"] = 7
                st["lg"] += 1
            em.i(x)
            if x.startswith("ds_write"):
                st["w"] += 1

        def barrier():
            em.i("s_waitcnt lgkmcnt(0)")
            st["lg"] = 0
            stamp_get(em, 1)
            em.i("s_barrier")
            stamp_get(em, 2)
            st["bar"] = True
            q[:0] = [(0, x, None) for x in XR] + [(0, late[r], None) for r in late if r in st["done"]]

        def drain(k, n):
            while n and q and q[0][0] <= k:
                _, x, r = q.pop(0)
                put(x)
                n -= 1
                if r is not None and not any(z[2] == r for z in q):
                    st["done"].add(r)
                    if st["bar"] and r in late:
                        q.insert(0, (0, late[r], None))
        for k, r in enumerate(order):
            em.i(mf[r])
            q.extend((k + 3, x, r) for x in post[r])
            drain(k, 3)
            if not st["bar"] and st["w"] == nwr and k >= BARK:
                barrier()
        if not st["bar"]:
            while st["w"] < nwr:
                drain(99, 1)
            barrier()
        drain(99, 999)
        stamp_get(em, 0)
        stamp_put(em, VS, 1, True)
        stamp_put(em, VS, 2)
        stamp_put(em, VS, 0)
        em.i("s_waitcnt lgkmcnt(0)")
        stamp(em, VS)
        stamp(em, VS)
        stamp(em, VS)
        stamp(em, VS)
        stamp(em, VS)
        for tt in range(4):
            for e in range(2):
                for d in range(2):
                    em.i("v_and_b32 %s, %s, %s" % (v(accM(tt, e) + 2 + d), v((VMA, VMB)[e]), v(QR + 2 * tt + d)))
    else:
        stamp_get(em, 0)
        em.i("s_waitcnt vmcnt(0) lgkmcnt(0)")
        stamp_put(em, VS, 1)
        stamp_put(em, VS, 2)
        stamp_put(em, VS, 0)
        stamp_get(em, 1)
        em.i("s_barrier")
        stamp_get(em, 2)
        Rs = lambda ty, tl: (ty * 9 + tl) * 512
        PMs = lambda wh, kd, hd: (27 + wh * 8 + kd * 4 + hd) * 512
        VE = EPI
        VHa, VHb, VRr = EPI + 2, EPI + 12, EPI + 22
        KP = (EPI + 32, EPI + 36)
        MC, MP, MPF = EPI + 40, EPI + 44, EPI + 48
        ONES = EPI + 52
        VMA, VMB = EPI + 56, EPI + 57
        QR = EPI + 58
        em.i("v_lshlrev_b32 %s, 3, %s" % (v(VE), v(VL)))

        def cvt2(dst, src):
            return ["v_cvt_pk_bf16_f32 %s, %s, %s" % (v(dst), v(src), v(src + 1)),
                    "v_cvt_pk_bf16_f32 %s, %s, %s" % (v(dst + 1), v(src + 2), v(src + 3))]

        wr = []
        for t in range(4):
            wr.append((accR(t), Rs(0 if hp == 0 else 2, 1 + 4 * rh + t)))
        for n, t in enumerate(krt):
            wr.append((accR(4 + n), Rs(1, 1 + 4 * rh + t)))
        if rh == 0:
            wr.append((accH(0), PMs(0, 0, ha)))
            wr.append((accH(1), PMs(0, 0, hb)))
            wr.append((accH(2), Rs(1 if hp == 0 else 2, 0)))
        else:
            wr.append((accH(0), PMs(0, 1, ha)))
            wr.append((accH(1), PMs(0, 1, hb)))
        for r, off in wr:
            for x in cvt2(r, r):
                em.i(x)
            em.i("ds_write_b64 %s, %s offset:%d" % (v(VE), v(r, 2), off))
        for t in (3, 0, 1, 2):
            for e, c in ((0, 2), (1, 3)):
                for x in cvt2(accM(t, c), accM(t, c)):
                    em.i(x)
                if t == 3 and rh == 0:
                    em.i("ds_write_b64 %s, %s offset:%d" % (v(VE), v(accM(t, c), 2), PMs(1, 0, (ha, hb)[e])))
            for e, c in ((0, 4), (1, 5)):
                dst = (VHa, VHb)[e] + 2 + 2 * t
                for x in cvt2(dst, accM(t, c)):
                    em.i(x)
                if t == 3 and rh == 0:
                    em.i("ds_write_b64 %s, %s offset:%d" % (v(VE), v(dst, 2), PMs(1, 1, (ha, hb)[e])))
            if t == 3:
                em.i("s_waitcnt lgkmcnt(0)")
                stamp_put(em, VS, 1)
                stamp_put(em, VS, 2)
                stamp_get(em, 1)
                em.i("s_barrier")
                stamp_get(em, 2)
                for tt in range(4):
                    em.i("ds_read_b64 %s, %s offset:%d" % (v(QR + 2 * tt, 2), v(VE), Rs(0, 1 + 4 * rh + tt)))
                for e in range(2):
                    em.i("ds_read_b64 %s, %s offset:%d" % (v(KP[e], 2), v(VE), PMs(rh, 0, (ha, hb)[e])))
                    em.i("ds_read_b64 %s, %s offset:%d" % (v(KP[e] + 2, 2), v(VE), Rs(1, 4 * rh)))
                    em.i("ds_read_b64 %s, %s offset:%d" % (v((VHa, VHb)[e], 2), v(VE), PMs(rh, 1, (ha, hb)[e])))
                for tt in range(5):
                    em.i("ds_read_b64 %s, %s offset:%d" % (v(VRr + 2 * tt, 2), v(VE), Rs(2, 4 * rh + tt)))
                em.i("ds_read_b64 %s, %s offset:%d" % (v(accM(3, 2) + 2, 2), v(VE), Rs(1, 4 + 4 * rh)))
                em.i("s_waitcnt lgkmcnt(8)")
                em.i("ds_read_b64 %s, %s offset:%d" % (v(accM(3, 3) + 2, 2), v(VE), Rs(1, 4 + 4 * rh)))
            else:
                em.i("ds_read_b64 %s, %s offset:%d" % (v(accM(t, 2) + 2, 2), v(VE), Rs(1, 1 + 4 * rh + t)))
                em.i("ds_read_b64 %s, %s offset:%d" % (v(accM(t, 3) + 2, 2), v(VE), Rs(1, 1 + 4 * rh + t)))
        for t in range(4):
            for c in (0, 1):
                for x in cvt2(accM(t, c), accM(t, c)):
                    em.i(x)
        NEG = f2u(-1.0e30)
        em.i("v_and_b32 %s, 15, %s" % (v(VT), v(VL)))
        em.i("v_lshrrev_b32 %s, 4, %s" % (v(VT + 1), v(VL)))
        em.i("v_lshlrev_b32 %s, 2, %s" % (v(VT + 2), v(VT + 1)))
        em.i("v_sub_u32 %s, %s, %s" % (v(VT + 2), v(VT), v(VT + 2)))
        em.i("v_mov_b32 %s, 0x%x" % (v(VT + 3), NEG))
        for r in range(4):
            em.i("v_subrev_u32 %s, %d, %s" % (v(VT + 4), r, v(VT + 2)))
            em.i("v_cmp_gt_u32 vcc, 8, %s" % v(VT + 4))
            em.i("v_cndmask_b32 %s, %s, 0, vcc" % (v(MC + r), v(VT + 3)))
            em.i("v_cmp_ge_i32 vcc, -9, %s" % v(VT + 4))
            em.i("v_cndmask_b32 %s, %s, 0, vcc" % (v(MP + r), v(VT + 3)))
        if rh == 0:
            em.i("s_cmp_eq_u32 %s, 0" % s(S_B))
            em.i("s_cselect_b64 %s, -1, 0" % s(S_EX, 2))
            for r in range(4):
                em.i("v_cndmask_b32 %s, %s, %s, %s" % (v(MPF + r), v(MP + r), v(VT + 3), s(S_EX, 2)))
        for r in range(4):
            em.i("v_mov_b32 %s, 0x3f803f80" % v(ONES + r))
        em.i("v_cmp_eq_u32 vcc, %d, %s" % (ha, v(VT + 1)))
        em.i("v_cndmask_b32 %s, 0, -1, vcc" % v(VMA))
        em.i("v_cmp_eq_u32 %s, %d, %s" % (s(S_EX, 2), hb, v(VT + 1)))
        em.i("v_cndmask_b32 %s, 0, -1, %s" % (v(VMB), s(S_EX, 2)))
        em.i("s_mov_b32 %s, 0x%x" % (s(S_C0), f2u(20.0 ** -0.5 * math.log2(math.e))))
        em.i("s_mov_b32 %s, 0x%x" % (s(S_C0 + 1), f2u(20.0 ** -0.5 * math.log2(math.e))))
        em.i("s_waitcnt lgkmcnt(0)")
        stamp_put(em, VS, 1)
        stamp_put(em, VS, 2)
        stamp(em, VS)
        for t in range(4):
            for e in range(2):
                for d in range(2):
                    em.i("v_and_b32 %s, %s, %s" % (v(accM(t, e) + 2 + d), v((VMA, VMB)[e]), v(QR + 2 * t + d)))
        em.i("s_lshl_b32 %s, %s, 6" % (s(S_T0), s(S_P)))
        em.i("s_lshl_b32 %s, %s, 3" % (s(S_T1), s(S_B)))
        em.i("s_add_u32 %s, %s, %s" % (s(S_T0), s(S_T0), s(S_T1)))
        em.i("s_add_u32 %s, %s, %d" % (s(S_T0), s(S_T0), 4 * rh))
        em.i("s_mul_i32 %s, %s, 0x%x" % (s(S_T0), s(S_T0), TILE_B))
        em.i("s_lshl_b32 %s, %s, 11" % (s(S_T1), s(S_CG)))
        em.i("s_add_u32 %s, %s, %s" % (s(S_T1), s(S_T1), s(S_T0)))
        em.i("s_add_u32 %s, %s, %d" % (s(S_T1), s(S_T1), 1024 * hp))
        em.i("s_lshr_b32 %s, %s, 1" % (s(S_T2), s(S_CG)))
        em.i("s_lshl_b32 %s, %s, 10" % (s(S_T2), s(S_T2)))
        em.i("s_add_u32 %s, %s, %s" % (s(S_T2), s(S_T2), s(S_T0)))
        em.i("s_and_b32 %s, %s, 1" % (s(S_T3), s(S_CG)))
        em.i("s_lshl_b32 %s, %s, 3" % (s(S_T3), s(S_T3)))
        em.i("s_add_u32 %s, %s, %s" % (s(S_T2), s(S_T2), s(S_T3)))
        em.i("s_add_u32 %s, %s, %d" % (s(S_T2), s(S_T2), 16 * 1024))
        em.i("v_lshlrev_b32 %s, 4, %s" % (v(VE + 1), v(VL)))
    VST = VE + 1

    pool = [accM(0, 4), accM(1, 4), accM(2, 4), accM(3, 4), 120, 128, 136, 144, 224, 232, 240, 248]

    def unit(t, e, regs):
        S, A_, B_ = regs
        M, M2, SUM = A_, A_ + 2, A_ + 4
        O, OR = B_, B_ + 4
        Q = v(accM(t, e), 4)
        Kc = v(accM(t, 2 + e), 4)
        Kp = v(accM(t - 1, 2 + e), 4) if t > 0 else v(KP[e], 4)
        mp = MPF if (t == 0 and rh == 0) else MP
        VH = (VHa, VHb)[e]
        L = []
        L.append(mfma(v(S, 4), Kp, Q, v(mp, 4)))
        L.append(mfma(v(S + 4, 4), Kc, Q, v(MC, 4)))
        if QT:
            for k in range(4):
                L.append("v_max_f32 %s, %s, %s" % (v(S + k), v(S + k), v(S + 4 + k)))
            L.append("v_max3_f32 %s, %s, %s, %s" % (v(M), v(S), v(S + 1), v(S + 2)))
            L.append("v_max_f32 %s, %s, %s" % (v(M), v(M), v(S + 3)))
        else:
            L.append("v_max3_f32 %s, %s, %s, %s" % (v(M), v(S), v(S + 1), v(S + 2)))
            L.append("v_max3_f32 %s, %s, %s, %s" % (v(M2), v(S + 3), v(S + 4), v(S + 5)))
            L.append("v_max3_f32 %s, %s, %s, %s" % (v(M), v(M), v(S + 6), v(S + 7)))
            L.append("v_max_f32 %s, %s, %s" % (v(M), v(M), v(M2)))
        L.append("v_mov_b32 %s, %s" % (v(M2), v(M)))
        L.append("v_permlane16_swap_b32 %s, %s" % (v(M), v(M2)))
        L.append("v_max_f32 %s, %s, %s" % (v(M), v(M), v(M2)))
        L.append("v_mov_b32 %s, %s" % (v(M2), v(M)))
        L.append("v_permlane32_swap_b32 %s, %s" % (v(M), v(M2)))
        L.append("v_max_f32 %s, %s, %s" % (v(M), v(M), v(M2)))
        L.append("v_mul_f32 %s, %s, %s" % (v(M), s(S_C0), v(M)))
        NS = 4 if QT else 8
        for k in range(0, NS, 2):
            L.append("v_pk_fma_f32 %s, %s, %s, %s op_sel_hi:[1,0,0] neg_lo:[0,0,1] neg_hi:[0,0,1]" % (
                v(S + k, 2), v(S + k, 2), s(S_C0, 2), v(M, 2)))
        for k in range(NS):
            L.append("v_exp_f32 %s, %s" % (v(S + k), v(S + k)))
        if QT:
            for k in range(2):
                L.append("v_cvt_pk_bf16_f32 %s, %s, %s" % (v(S + 4 + k), v(S + 2 * k), v(S + 2 * k + 1)))
            for k in range(4):
                L.append("v_and_b32 %s, %s, %s" % (v(S + k), v((MKP, MKC)[k >> 1] + (k & 1)), v(S + 4 + (k & 1))))
        else:
            for k in range(4):
                L.append("v_cvt_pk_bf16_f32 %s, %s, %s" % (v(S + k), v(S + 2 * k), v(S + 2 * k + 1)))
        P = v(S, 4)
        L.append(mfma(v(SUM, 4), v(ONES, 4), P, "0"))
        L.append(mfma(v(O, 4), v(VH + 2 * t, 4), P, "0"))
        L.append(mfma(v(OR, 4), v(VRr + 2 * t, 4), P, "0"))
        L.append("v_rcp_f32 %s, %s" % (v(M), v(SUM)))
        L.append("v_pk_mul_f32 %s, %s, %s op_sel_hi:[1,0]" % (v(O, 2), v(O, 2), v(M, 2)))
        L.append("v_pk_mul_f32 %s, %s, %s op_sel_hi:[1,0]" % (v(O + 2, 2), v(O + 2, 2), v(M, 2)))
        L.append("v_pk_mul_f32 %s, %s, %s op_sel_hi:[1,0]" % (v(OR, 2), v(OR, 2), v(M, 2)))
        L.append("v_pk_mul_f32 %s, %s, %s op_sel_hi:[1,0]" % (v(OR + 2, 2), v(OR + 2, 2), v(M, 2)))
        dst = accM(t, 0) + 2 * e
        L.append("v_cvt_pk_bf16_f32 %s, %s, %s" % (v(dst), v(O), v(O + 1)))
        L.append("v_cvt_pk_bf16_f32 %s, %s, %s" % (v(dst + 1), v(O + 2), v(O + 3)))
        L.append("v_cvt_pk_bf16_f32 %s, %s, %s" % (v(OR), v(OR), v(OR + 1)))
        L.append("v_cvt_pk_bf16_f32 %s, %s, %s" % (v(OR + 1), v(OR + 2), v(OR + 3)))
        return L

    for half in range(2):
        ul = []
        us = []
        for n, (t, e) in enumerate([(2 * half, 0), (2 * half, 1), (2 * half + 1, 0), (2 * half + 1, 1)]):
            regs = (pool[n], pool[4 + n], pool[8 + n])
            us.append((t, e, regs))
            ul.append(unit(t, e, regs))
        for x in interleave(ul):
            em.i(x)
        for n in (0, 2):
            t = us[n][0]
            ORa = us[n][2][2] + 4
            ORb = us[n + 1][2][2] + 4
            em.i("v_cndmask_b32 %s, %s, %s, %s" % (v(ORa), v(ORa), v(ORb), s(S_EX, 2)))
            em.i("v_cndmask_b32 %s, %s, %s, %s" % (v(ORa + 1), v(ORa + 1), v(ORb + 1), s(S_EX, 2)))
            em.i("s_add_u32 %s, %s, 0x%x" % (s(S_T3), s(S_T1), t * TILE_B))
            em.i("buffer_store_dwordx4 %s, %s, %s, %s offen%s" % (v(accM(t, 0), 4), v(VST), s(SRD_WS, 4), s(S_T3), WT + WTO))
            em.i("s_add_u32 %s, %s, 0x%x" % (s(S_T4), s(S_T2), t * TILE_B))
            em.i("s_mov_b32 %s, 0" % ("exec_hi" if hp == 0 else "exec_lo"))
            em.i("buffer_store_dwordx2 %s, %s, %s, %s offen%s" % (v(ORa, 2), v(VST), s(SRD_WS, 4), s(S_T4), WT))
            em.i("s_mov_b64 exec, -1")
    stamp_end(em, VS, SRD_WS, S_WV, 0)
    em.i("s_endpgm")
    em.label("L_%s_end" % tag)


def gen_h(em):
    VL, VT = 0, 1
    VWD, VXD = 8, 14
    VXA0, VXA1 = 18, 19
    VWA = 20
    ACC = 24
    acc = lambda t, u: ACC + (t * 6 + u) * 4
    RIN = 120
    ROUT = 152
    GX = 152
    VG, VRS, VGX, VGW, VRL = 192, 193, 194, 195, 196
    VS = 198
    BIAS = 200
    TMP = 200
    S_R0, S_R1 = 82, 83
    FR = lambda st, k: st * 40 + k * 4
    em.label("L_h")
    em.fence()
    em.i("s_lshr_b32 %s, %s, 1" % (s(S_T5), s(S_WV)))
    em.i("v_lshrrev_b32 %s, 3, %s" % (v(VT), v(VL)))
    em.i("v_mul_u32_u24 %s, 0xa00, %s" % (v(VT), v(VT)))
    em.i("v_lshrrev_b32 %s, 4, %s" % (v(VT + 1), v(VL)))
    em.i("v_xor_b32 %s, %s, %s" % (v(VT + 1), v(VT + 1), v(VL)))
    em.i("v_and_b32 %s, 7, %s" % (v(VT + 1), v(VT + 1)))
    em.i("v_lshl_add_u32 %s, %s, 4, %s" % (v(VT + 2), v(VT + 1), v(VT)))
    em.i("v_xor_b32 %s, 64, %s" % (v(VT + 3), v(VT + 2)))
    em.i("s_lshl_b32 %s, %s, 8" % (s(S_T0), s(S_B)))
    em.i("s_add_u32 %s, %s, %s" % (s(S_T0), s(S_T0), s(S_P)))
    em.i("s_lshl_b32 %s, %s, 6" % (s(S_T1), s(S_WV)))
    em.i("s_add_u32 %s, %s, %s" % (s(S_T1), s(S_T1), s(S_T0)))
    em.i("s_mul_i32 %s, %s, 0x500" % (s(S_T1), s(S_T1)))
    for n in range(4):
        em.i("s_add_u32 %s, %s, 0x%x" % (s(S_T3), s(S_T1), 20480 * n))
        em.i("v_add_u32 %s, %s, %s" % (v(VXD + n), s(S_T3), v(VT + 2 + (n & 1))))
    em.i("s_mul_i32 %s, %s, 384" % (s(S_T4), s(S_CG)))
    em.i("s_mul_i32 %s, %s, 0x%x" % (s(S_T3), s(S_WV), 16 * 3072))
    em.i("s_add_u32 %s, %s, %s" % (s(S_T4), s(S_T4), s(S_T3)))
    for n in range(6):
        d = VWD + n
        em.i("v_add_u32 %s, 0x%x, %s" % (v(VT), 64 * n, v(VL)))
        em.i("v_mul_u32_u24 %s, 0xaab, %s" % (v(VT + 1), v(VT)))
        em.i("v_lshrrev_b32 %s, 16, %s" % (v(VT + 1), v(VT + 1)))
        em.i("v_mul_u32_u24 %s, 24, %s" % (v(VT + 4), v(VT + 1)))
        em.i("v_sub_u32 %s, %s, %s" % (v(VT), v(VT), v(VT + 4)))
        em.i("v_and_b32 %s, 2, %s" % (v(VT + 4), v(VT + 1)))
        em.i("v_lshrrev_b32 %s, 1, %s" % (v(VT + 5), v(VT + 1)))
        em.i("v_and_or_b32 %s, %s, 4, %s" % (v(VT + 4), v(VT + 5), v(VT + 4)))
        em.i("v_xor_b32 %s, %s, %s" % (v(VT), v(VT), v(VT + 4)))
        em.i("v_mul_u32_u24 %s, 0xc00, %s" % (v(VT + 1), v(VT + 1)))
        em.i("v_lshl_add_u32 %s, %s, 4, %s" % (v(VT), v(VT), v(VT + 1)))
        em.i("v_add_u32 %s, %s, %s" % (v(d), s(S_T4), v(VT)))
    em.i("v_and_b32 %s, 15, %s" % (v(VT), v(VL)))
    em.i("v_lshrrev_b32 %s, 4, %s" % (v(VT + 1), v(VL)))
    if TCH:
        wst = 64 * 3072
        em.i("s_and_b32 %s, %s, 1" % (s(S_T2), s(S_CG)))
        em.i("s_lshl_b32 %s, %s, 1" % (s(S_T3), s(S_B)))
        em.i("s_add_u32 %s, %s, %s" % (s(S_T3), s(S_T3), s(S_T2)))
        em.i("s_mul_i32 %s, %s, %d" % (s(S_T3), s(S_T3), 4 * 3072))
        em.i("s_lshr_b32 %s, %s, 1" % (s(S_T4), s(S_CG)))
        em.i("s_mul_i32 %s, %s, 768" % (s(S_T4), s(S_T4)))
        em.i("s_add_u32 %s, %s, %s" % (s(S_T3), s(S_T3), s(S_T4)))
        em.i("v_mul_u32_u24 %s, 43, %s" % (v(VT + 2), v(VL)))
        em.i("v_lshrrev_b32 %s, 8, %s" % (v(VT + 2), v(VT + 2)))
        em.i("v_mul_u32_u24 %s, 0x900, %s" % (v(VT + 2), v(VT + 2)))
        em.i("v_lshl_add_u32 %s, %s, 7, %s" % (v(VT + 2), v(VL), v(VT + 2)))
        em.i("v_add_u32 %s, %s, %s" % (v(VT + 2), s(S_T3), v(VT + 2)))
        em.i("v_mov_b32 %s, 0x%x" % (v(VT + 4), BIGOFF))
        em.i("v_cmp_gt_u32 vcc, 24, %s" % v(VL))
        em.i("v_cndmask_b32 %s, %s, %s, vcc" % (v(VTW1), v(VT + 4), v(VT + 2)))
        em.i("s_lshl_b32 %s, %s, 7" % (s(S_T2), s(S_T2)))
        em.i("s_add_u32 %s, %s, %s" % (s(S_T2), s(S_T2), s(S_T0)))
        em.i("s_mul_i32 %s, %s, 0x500" % (s(S_T2), s(S_T2)))
        em.i("v_mul_u32_u24 %s, 0xa00, %s" % (v(VT + 2), v(VL)))
        em.i("v_add_u32 %s, %s, %s" % (v(VTX1), s(S_T2), v(VT + 2)))
        em.i("s_cmp_eq_u32 %s, %d" % (s(S_WV), TWV[0]))
        em.i("s_cselect_b32 %s, 0x%x, 0x%x" % (s(S_TW), wst, BIGOFF)) if 0 else None
        em.i("s_mov_b32 %s, 0x%x" % (s(S_TX), BIGOFF))
        em.i("s_cselect_b32 %s, 0x%x, %s" % (s(S_TW), wst, s(S_TX)))
        em.i("s_cselect_b32 %s, 0x80, %s" % (s(S_TX), s(S_TX)))
    em.i("s_and_b32 %s, %s, 1" % (s(S_T2), s(S_WV)))
    em.i("s_mul_i32 %s, %s, 192" % (s(S_T3), s(S_T2)))
    em.i("s_mul_i32 %s, %s, 384" % (s(S_T4), s(S_CG)))
    em.i("s_add_u32 %s, %s, %s" % (s(S_T3), s(S_T3), s(S_T4)))
    em.i("v_lshlrev_b32 %s, 3, %s" % (v(VT + 4), v(VT + 1)))

    dma = []
    for n in range(4):
        dma.append(("s_add_u32 m0, %s, 0x%x" % (s(S_C1), 1024 * n),
                    "buffer_load_dwordx4 %s, %s, %s offen lds" % (v(VXD + n), s(SRD_X, 4), s(S_XOFF))))
    for n in range(6):
        dma.append(("s_add_u32 m0, %s, 0x%x" % (s(S_C1 + 1), H_XSZ + 1024 * n),
                    "buffer_load_dwordx4 %s, %s, %s offen lds" % (v(VWD + n), s(SRD_W, 4), s(S_WOFF))))
    adv = advance_dma(H_SLOT, 64 * 3072) + [
        "s_add_u32 %s, %s, %s" % (s(S_C1), s(S_DM), s(S_WOFF2)),
        "s_add_u32 %s, %s, %s" % (s(S_C1 + 1), s(S_DM), s(S_EX))]
    em.i("s_lshl_b32 %s, %s, 12" % (s(S_WOFF2), s(S_WV)))
    em.i("s_mul_i32 %s, %s, 6144" % (s(S_EX), s(S_WV)))
    em.i("s_mov_b32 %s, %s" % (s(S_C1), s(S_WOFF2)))
    em.i("s_mov_b32 %s, %s" % (s(S_C1 + 1), s(S_EX)))
    rot_init(em, 1, 64 * 3072)
    em.i("s_mov_b32 %s, 0" % s(S_DM))
    em.i("s_mov_b32 %s, 0" % s(S_STG))
    em.i("s_mov_b32 %s, 0" % s(S_RD))
    em.i("s_waitcnt lgkmcnt(0)")
    stamp_put(em, VS, 0)
    stamp_put(em, VS, 1)
    stamp_get(em, 0)
    srd(em, SRD_X, 4, X_BYTES)
    srd(em, SRD_W, 12, W1_BYTES)
    if TCH:
        em.i("buffer_load_dword %s, %s, %s, %s offen" % (v(VTDST), v(VTX1), s(SRD_X, 4), s(S_TX)))
        em.i("buffer_load_dword %s, %s, %s, %s offen" % (v(VTDST), v(VTW1), s(SRD_W, 4), s(S_TW)))
        em.i("s_mov_b32 %s, 0x%x" % (s(S_TX), BIGOFF))
        em.i("s_cmp_eq_u32 %s, %d" % (s(S_WV), TWV[1]))
        em.i("s_cselect_b32 %s, 0x%x, %s" % (s(S_TW), 2 * 64 * 3072, s(S_TX)))
        em.i("s_cselect_b32 %s, 0x100, %s" % (s(S_TX), s(S_TX)))
        em.i("s_cmp_eq_u32 %s, %d" % (s(S_WV), TWV[2]))
        em.i("s_cselect_b32 %s, 0x%x, %s" % (s(S_TW), 3 * 64 * 3072, s(S_TW)))
        em.i("s_cselect_b32 %s, 0x180, %s" % (s(S_TX), s(S_TX)))
    srd(em, SRD_T2, 14, 3072)
    for u in range(6):
        em.i("buffer_load_dwordx2 %s, %s, %s, %s offen offset:%d" % (v(BIAS + 2 * u, 2), v(VT + 4), s(SRD_T2, 4), s(S_T3), 32 * u))
    if SIDE:
        srd(em, SRD_T, 18, 1280)
        em.i("v_lshlrev_b32 %s, 4, %s" % (v(VGW), v(VT)))
        for n in range(5):
            em.i("buffer_load_dwordx4 %s, %s, %s, 0 offen offset:%d" % (v(GX + 20 + 4 * n, 4), v(VGW), s(SRD_T, 4), 256 * n))
    for m, l in dma:
        em.i(m)
        em.i(l)
    for x in adv:
        em.i(x)
    for m, l in dma[:5]:
        em.i(m)
        em.i(l)
    if PF & 6:
        em.i("s_and_b32 s94, %s, 1" % s(S_CG))
        em.i("s_lshl1_add_u32 s94, %s, s94" % s(S_B))
        em.i("s_lshl2_add_u32 s94, s94, %s" % s(S_WV))
    if PF & 4 and SIDE:
        emit_pf(em, code_pf("L_h_tail", "L_k1_end", 94, 2))
    srd(em, SRD_WS, 20, WS_SIZE)
    srd(em, SRD_T2, 18, 1280)
    em.i("v_lshrrev_b32 %s, 1, %s" % (v(VT + 2), v(VT)))
    em.i("v_xor_b32 %s, %s, %s" % (v(VT + 2), v(VT + 2), v(VT + 1)))
    em.i("v_lshlrev_b32 %s, 4, %s" % (v(VT + 2), v(VT + 2)))
    em.i("v_lshl_add_u32 %s, %s, 7, %s" % (v(VT + 2), v(VT), v(VT + 2)))
    em.i("s_lshl_b32 %s, %s, 13" % (s(S_T1), s(S_T5)))
    em.i("v_add_u32 %s, %s, %s" % (v(VXA0), s(S_T1), v(VT + 2)))
    em.i("v_xor_b32 %s, 64, %s" % (v(VXA1), v(VXA0)))
    em.i("v_bfe_u32 %s, %s, 2, 2" % (v(VT + 2), v(VL)))
    em.i("v_lshl_add_u32 %s, %s, 3, %s" % (v(VT + 3), v(VT + 1), v(VT + 2)))
    em.i("v_mul_u32_u24 %s, 0x180, %s" % (v(VT + 3), v(VT + 3)))
    em.i("v_and_b32 %s, 3, %s" % (v(VT + 4), v(VL)))
    em.i("v_lshl_add_u32 %s, %s, 3, %s" % (v(VT + 3), v(VT + 4), v(VT + 3)))
    em.i("v_lshrrev_b32 %s, 1, %s" % (v(VT + 2), v(VT + 2)))
    em.i("v_and_b32 %s, 1, %s" % (v(VT + 4), v(VT + 1)))
    em.i("v_lshl_or_b32 %s, %s, 1, %s" % (v(VT + 2), v(VT + 4), v(VT + 2)))
    em.i("s_mul_i32 %s, %s, 6" % (s(S_T2), s(S_T2)))
    for u in range(4):
        em.i("s_add_u32 %s, %s, %d" % (s(S_T3), s(S_T2), u))
        em.i("v_xor_b32 %s, %s, %s" % (v(VT + 4), s(S_T3), v(VT + 2)))
        em.i("v_lshl_add_u32 %s, %s, 5, %s" % (v(VWA + u), v(VT + 4), v(VT + 3)))
    em.i("v_lshlrev_b32 %s, 4, %s" % (v(VGW), v(VT)))
    em.i("s_lshl_b32 %s, %s, 5" % (s(S_T1), s(S_CG)))
    em.i("s_lshl_b32 %s, %s, 3" % (s(S_T2), s(S_WV)))
    em.i("s_add_u32 %s, %s, %s" % (s(S_T1), s(S_T1), s(S_T2)))
    em.i("s_add_u32 %s, %s, %s" % (s(S_T1), s(S_T1), s(S_T0)))
    em.i("s_mul_i32 %s, %s, 0x500" % (s(S_T1), s(S_T1)))
    em.i("v_mul_u32_u24 %s, 0xa00, %s" % (v(VT + 3), v(VT + 1)))
    em.i("v_add3_u32 %s, %s, %s, %s" % (v(VGX), v(VT + 3), v(VGW), s(S_T1)))
    if AFF & 2:
        em.i("s_lshl_b32 %s, %s, 6" % (s(S_UNIT), s(S_WV)))
        em.i("s_lshl_b32 %s, %s, 3" % (s(S_T0), s(S_B)))
        em.i("s_add_u32 %s, %s, %s" % (s(S_UNIT), s(S_UNIT), s(S_T0)))
        em.i("s_lshl_b32 %s, %s, 2" % (s(S_T0), s(S_P)))
        em.i("s_add_u32 %s, %s, %s" % (s(S_UNIT), s(S_UNIT), s(S_T0)))
        em.i("s_and_b32 %s, %s, 3" % (s(S_T0), s(S_CG)))
        em.i("s_add_u32 %s, %s, %s" % (s(S_UNIT), s(S_UNIT), s(S_T0)))
        em.i("s_mul_i32 %s, %s, 0xcccd" % (s(S_T0), s(S_UNIT)))
        em.i("s_lshr_b32 %s, %s, 18" % (s(S_T0), s(S_T0)))
        em.i("s_mul_i32 %s, %s, 5" % (s(S_T1), s(S_T0)))
        em.i("s_sub_u32 %s, %s, %s" % (s(S_T2), s(S_UNIT), s(S_T1)))
        em.i("s_lshr_b32 %s, %s, 2" % (s(S_T3), s(S_CG)))
        em.i("s_mul_i32 %s, %s, 3" % (s(S_T1), s(S_T3)))
        em.i("s_and_b32 %s, %s, 1" % (s(S_T4), s(S_T2)))
        em.i("s_add_u32 %s, %s, %s" % (s(S_T1), s(S_T1), s(S_T4)))
        em.i("s_lshr_b32 %s, %s, 1" % (s(S_T4), s(S_T2)))
        em.i("s_cmp_eq_u32 %s, 4" % s(S_T2))
        em.i("s_cselect_b32 %s, 2, %s" % (s(S_T1), s(S_T1)))
        em.i("s_cselect_b32 %s, %s, %s" % (s(S_T4), s(S_T3), s(S_T4)))
        em.i("s_lshl_b32 %s, %s, 1" % (s(S_T0), s(S_T0)))
        em.i("s_add_u32 %s, %s, %s" % (s(S_T0), s(S_T0), s(S_T4)))
    else:
        em.i("s_lshl_b32 %s, %s, 3" % (s(S_UNIT), s(S_P)))
        em.i("s_add_u32 %s, %s, %s" % (s(S_UNIT), s(S_UNIT), s(S_B)))
        em.i("s_lshl_b32 %s, %s, 3" % (s(S_UNIT), s(S_UNIT)))
        em.i("s_add_u32 %s, %s, %s" % (s(S_UNIT), s(S_UNIT), s(S_CG)))
        em.i("s_lshl_b32 %s, %s, 2" % (s(S_UNIT), s(S_UNIT)))
        em.i("s_add_u32 %s, %s, %s" % (s(S_UNIT), s(S_UNIT), s(S_WV)))
        em.i("s_mul_i32 %s, %s, 0xcccd" % (s(S_T0), s(S_UNIT)))
        em.i("s_lshr_b32 %s, %s, 18" % (s(S_T0), s(S_T0)))
        em.i("s_mul_i32 %s, %s, 5" % (s(S_T1), s(S_T0)))
        em.i("s_sub_u32 %s, %s, %s" % (s(S_T1), s(S_UNIT), s(S_T1)))
    em.i("s_lshl_b32 %s, %s, 5" % (s(S_T2), s(S_T0)))
    em.i("s_sub_u32 %s, %s, 640" % (s(S_T2), s(S_T2)))
    em.i("s_mov_b32 %s, 16" % s(S_T3))
    em.i("s_mov_b32 %s, 4" % s(S_T4))
    em.i("s_mul_i32 %s, %s, 160" % (s(S_C0), s(S_T0)))
    em.i("s_sub_u32 %s, %s, %d" % (s(S_C0), s(S_C0), 2560 - 16))
    em.i("s_mov_b32 %s, 0x%x" % (s(SRD_T + 2), W2_BYTES))
    em.i("s_mov_b32 %s, 0x20000" % s(SRD_T + 3))
    em.i("s_cmp_lt_u32 %s, 20" % s(S_T0))
    em.i("s_cselect_b32 %s, %s, %s" % (s(S_T2), s(S_C0), s(S_T2)))
    em.i("s_cselect_b32 %s, 80, %s" % (s(S_T3), s(S_T3)))
    em.i("s_cselect_b32 %s, 20, %s" % (s(S_T4), s(S_T4)))
    em.i("s_cselect_b32 %s, %s, %s" % (s(SRD_T), s(8), s(16)))
    em.i("s_cselect_b32 %s, %s, %s" % (s(SRD_T + 1), s(9), s(17)))
    em.i("s_cselect_b32 %s, 0x%x, %s" % (s(SRD_T + 2), WO_BYTES, s(SRD_T + 2)))
    em.i("s_mul_i32 %s, %s, 40" % (s(S_C0), s(S_T0)))
    em.i("s_cmp_lt_u32 %s, 16" % s(S_T0))
    em.i("s_cselect_b32 %s, %s, %s" % (s(S_T2), s(S_C0), s(S_T2)))
    em.i("s_cselect_b32 %s, 20, %s" % (s(S_T3), s(S_T3)))
    em.i("s_cselect_b32 %s, 4, %s" % (s(S_T4), s(S_T4)))
    em.i("s_mul_i32 %s, %s, 0x500" % (s(S_T4), s(S_T4)))
    em.i("v_mad_u32_u24 %s, %s, %s, %s" % (v(VRL), v(VT + 1), s(S_T4), v(VGW)))
    em.i("s_mul_i32 %s, %s, 0x500" % (s(S_T2), s(S_T2)))
    em.i("s_lshl_b32 %s, %s, 8" % (s(S_C0), s(S_T1)))
    em.i("s_add_u32 %s, %s, %s" % (s(S_R0), s(S_T2), s(S_C0)))
    em.i("s_mul_i32 %s, %s, 0x500" % (s(S_T3), s(S_T3)))
    em.i("s_add_u32 %s, %s, %s" % (s(S_R1), s(S_T3), s(S_R0)))
    em.i("s_mul_i32 %s, %s, 40" % (s(S_T0), s(S_T0)))
    em.i("s_lshl_b32 %s, %s, 3" % (s(S_T1), s(S_T1)))
    em.i("s_add_u32 %s, %s, %s" % (s(S_T0), s(S_T0), s(S_T1)))
    em.i("s_lshl_b32 %s, %s, 10" % (s(S_T0), s(S_T0)))
    em.i("s_add_u32 %s, %s, 0x%x" % (s(S_T0), s(S_T0), WF_OFF))
    em.i("s_cmp_ge_u32 %s, %d" % (s(S_UNIT), 170 if AFF & 2 else 340))
    em.i("s_cselect_b32 %s, 0x%x, %s" % (s(S_T0), BIGOFF, s(S_T0)))
    em.i("s_cselect_b32 %s, 0x%x, %s" % (s(S_R0), BIGOFF, s(S_R0)))
    em.i("s_cselect_b32 %s, 0x%x, %s" % (s(S_R1), BIGOFF, s(S_R1)))
    em.i("v_lshrrev_b32 %s, 1, %s" % (v(VT + 5), v(VT)))
    em.i("v_lshlrev_b32 %s, 10, %s" % (v(VT + 5), v(VT + 5)))
    em.i("v_and_b32 %s, 1, %s" % (v(VT + 6), v(VT)))
    em.i("v_lshl_add_u32 %s, %s, 7, %s" % (v(VT + 5), v(VT + 6), v(VT + 5)))
    em.i("v_lshl_add_u32 %s, %s, 8, %s" % (v(VT + 5), v(VT + 1), v(VT + 5)))
    VWL, VRA, VWT = 232, 233, 237
    if SIDE:
        em.i("s_lshl_b32 %s, %s, 13" % (s(S_T1), s(S_WV)))
        em.i("s_add_u32 %s, %s, 0x%x" % (s(S_T1), s(S_T1), H_SLOT))
        em.i("v_and_b32 %s, 7, %s" % (v(VT + 6), v(VL)))
        em.i("v_lshl_add_u32 %s, %s, 4, %s" % (v(VT + 5), v(VT + 6), v(VT + 5)))
        em.i("v_add_u32 %s, %s, %s" % (v(VWL), s(S_T1), v(VT + 5)))
        em.i("v_lshrrev_b32 %s, 3, %s" % (v(VT + 5), v(VL)))
        em.i("v_and_b32 %s, 1, %s" % (v(VRA), v(VT + 5)))
        em.i("v_xor_b32 %s, %s, %s" % (v(VT + 6), v(VT + 6), v(VRA)))
        em.i("v_lshlrev_b32 %s, 4, %s" % (v(VT + 6), v(VT + 6)))
        em.i("v_lshl_add_u32 %s, %s, 7, %s" % (v(VT + 6), v(VT + 5), v(VT + 6)))
        em.i("v_add_u32 %s, %s, %s" % (v(VRA), s(S_T1), v(VT + 6)))
        for q in range(1, 4):
            em.i("v_xor_b32 %s, 0x%x, %s" % (v(VRA + q), q << 5, v(VRA)))
        em.i("v_lshlrev_b32 %s, 4, %s" % (v(VT + 5), v(VL)))
    em.i("v_add_u32 %s, %s, %s" % (v(VRS), s(S_T0), v(VT + 5)))
    em.i("s_waitcnt vmcnt(15)")
    F = []
    for t in range(4):
        for u in range(6):
            F.append("v_lshlrev_b32 %s, 16, %s" % (v(acc(t, u)), v(BIAS + 2 * u)))
            F.append("v_and_b32 %s, 0xffff0000, %s" % (v(acc(t, u) + 1), v(BIAS + 2 * u)))
            F.append("v_lshlrev_b32 %s, 16, %s" % (v(acc(t, u) + 2), v(BIAS + 2 * u + 1)))
            F.append("v_and_b32 %s, 0xffff0000, %s" % (v(acc(t, u) + 3), v(BIAS + 2 * u + 1)))
    for n, (m, l) in enumerate(dma[5:]):
        em.i(m)
        em.i(l)
        for x in F[20 * n:20 * (n + 1)]:
            em.i(x)
    for x in adv:
        em.i(x)
    if TCH:
        em.i("buffer_load_dword %s, %s, %s, %s offen" % (v(VTDST), v(VTX1), s(SRD_X, 4), s(S_TX)))
        em.i("buffer_load_dword %s, %s, %s, %s offen" % (v(VTDST), v(VTW1), s(SRD_W, 4), s(S_TW)))
        em.i("s_mov_b32 %s, 0x%x" % (s(S_TX), BIGOFF))
        em.i("s_cmp_eq_u32 %s, %d" % (s(S_WV), TWV[3]))
        em.i("s_cselect_b32 %s, 0x%x, %s" % (s(S_TW), 4 * 64 * 3072, s(S_TX)))
        em.i("s_cselect_b32 %s, 0x200, %s" % (s(S_TX), s(S_TX)))
    if not EARLY:
        for m, l in dma[:5]:
            em.i(m)
            em.i(l)

    def reads(st, ks):
        xa = VXA1 if ks else VXA0
        R = []
        for t in range(4):
            R.append("ds_read_b128 %s, %s offset:%d" % (a(FR(st, t), 4), v(xa), t * 2048))
        for u in range(6):
            for h in range(2):
                R.append("ds_read_b64_tr_b16 %s, %s offset:%d" % (
                    a(FR(st, 4 + u) + 2 * h, 2), v(VWA + (u & 3)), H_XSZ + (32 * ks + 4 * h) * 384 + 128 * (u >> 2)))
        return R

    def mfmas(st):
        L = []
        for t in range(4):
            for u in range(6):
                L.append(mfma(v(acc(t, u), 4), a(FR(st, 4 + u), 4), a(FR(st, t), 4)))
        return L

    stamp_get(em, 3)
    em.i("s_waitcnt vmcnt(%d)" % ((10 if EARLY else 15) + 2 * TCH))
    stamp_get(em, 1)
    em.i("s_barrier")
    stamp_get(em, 2)
    stamp_put(em, VS, 0, True)
    stamp_put(em, VS, 3)
    for r in reads(0, 0):
        em.i(r)
    if EARLY:
        for m, l in dma[:5]:
            em.i(m)
            em.i(l)
    SW0 = int(os.environ.get("SW0", "2"))
    SL = []
    for n in range(5):
        SL.append("buffer_load_dwordx4 %s, %s, %s, 0 offen offset:%d" % (v(GX + 4 * n, 4), v(VGX), s(SRD_X, 4), 256 * n))
        SL.append("buffer_load_dwordx4 %s, %s, %s, 0 offen offset:%d" % (v(GX + 20 + 4 * n, 4), v(VGW), s(SRD_T2, 4), 256 * n))
    for j in range(8):
        SL.append("buffer_load_dwordx4 %s, %s, %s, %s offen offset:%d" % (
            v(RIN + 4 * j, 4), v(VRL), s(SRD_T, 4), s(S_R0 if j < 4 else S_R1), 1280 * (j & 3)))
    P = []
    P.append("s_lshl_b32 %s, %s, 6" % (s(S_T0), s(S_P)))
    P.append("s_lshl_b32 %s, %s, 3" % (s(S_T1), s(S_B)))
    P.append("s_add_u32 %s, %s, %s" % (s(S_T0), s(S_T0), s(S_T1)))
    P.append("s_add_u32 %s, %s, %s" % (s(S_T3), s(S_T0), s(S_CG)))
    P.append("s_lshl_b32 %s, %s, 2" % (s(S_T3), s(S_T3)))
    P.append("s_add_u32 %s, %s, %s" % (s(S_T3), s(S_T3), s(S_WV)))
    P.append("s_lshl_b32 %s, %s, 4" % (s(S_T3), s(S_T3)))
    P.append("s_add_u32 %s, %s, 0x%x" % (s(S_T3), s(S_T3), G_OFF))
    P.append("s_lshl_b32 %s, %s, 2" % (s(S_T1), s(S_T5)))
    P.append("s_add_u32 %s, %s, %s" % (s(S_T0), s(S_T0), s(S_T1)))
    P.append("s_mul_i32 %s, %s, 68" % (s(S_T0), s(S_T0)))
    P.append("s_mul_i32 %s, %s, 6" % (s(S_T1), s(S_CG)))
    P.append("s_add_u32 %s, %s, %s" % (s(S_T0), s(S_T0), s(S_T1)))
    P.append("s_and_b32 %s, %s, 1" % (s(S_T1), s(S_WV)))
    P.append("s_mul_i32 %s, %s, 3" % (s(S_T1), s(S_T1)))
    P.append("s_add_u32 %s, %s, %s" % (s(S_T0), s(S_T0), s(S_T1)))
    P.append("s_add_u32 %s, %s, 20" % (s(S_T0), s(S_T0)))
    P.append("s_lshl_b32 %s, %s, 10" % (s(S_T0), s(S_T0)))
    P.append("v_lshlrev_b32 %s, 4, %s" % (v(VT), v(VL)))
    SC = []
    SC.append("v_dot2_f32_bf16 %s, %s, %s, 0" % (v(VG), v(GX), v(GX + 20)))
    for n in range(1, 20):
        SC.append("v_dot2_f32_bf16 %s, %s, %s, %s" % (v(VG), v(GX + n), v(GX + 20 + n), v(VG)))
    for rot in (8, 4, 2, 1):
        SC.append("v_add_f32_dpp %s, %s, %s row_ror:%d row_mask:0xf bank_mask:0xf" % (v(VT + 3), v(VG), v(VG), rot))
        SC.append("v_mov_b32 %s, %s" % (v(VG), v(VT + 3)))
    SC.append("v_cvt_pk_bf16_f32 %s, %s, %s" % (v(VG), v(VG), v(VG)))
    SC.append("v_lshlrev_b32 %s, 16, %s" % (v(VG), v(VG)))
    SC.append("v_mul_f32 %s, 0x%x, %s" % (v(VG), f2u(-math.log2(math.e)), v(VG)))
    SC.append("v_exp_f32 %s, %s" % (v(VG), v(VG)))
    SC.append("v_lshrrev_b32 %s, 4, %s" % (v(VT + 3), v(VL)))
    SC.append("v_add_f32 %s, 1.0, %s" % (v(VG), v(VG)))
    SC.append("v_rcp_f32 %s, %s" % (v(VG), v(VG)))
    SC.append("v_lshlrev_b32 %s, 2, %s" % (v(VT + 3), v(VT + 3)))
    SC.append("v_cvt_pk_bf16_f32 %s, %s, %s" % (v(VG), v(VG), v(VG)))
    SC.append("v_lshlrev_b32 %s, 16, %s" % (v(VG), v(VG)))
    SC.append("buffer_store_dword %s, %s, %s, %s offen%s" % (v(VG), v(VT + 3), s(SRD_WS, 4), s(S_T3), WT))
    SC.append("s_mov_b32 %s, 0x05040100" % s(S_R0))
    SC.append("s_mov_b32 %s, 0x07060302" % s(S_R1))
    for d in range(4):
        for e in range(2):
            for jj in range(4):
                SC.append("v_perm_b32 %s, %s, %s, %s" % (
                    v(ROUT + (2 * d + e) * 4 + jj), v(RIN + (2 * jj + 1) * 4 + d), v(RIN + (2 * jj) * 4 + d), s(S_R0 + e)))
            n = 2 * d + e
            SC.append("buffer_store_dwordx4 %s, %s, %s, 0 offen offset:%d%s" % (v(ROUT + 4 * n, 4), v(VRS), s(SRD_WS, 4), 16 * n, WT + WTS))

    rdadv = [(16, x) for x in advance_rd(H_SLOT)]
    rdadv.append((17, "v_add_u32 %s, %s, %s" % (v(VXA0), s(S_DELTA), v(VXA0))))
    rdadv.append((17, "v_add_u32 %s, %s, %s" % (v(VXA1), s(S_DELTA), v(VXA1))))
    for u in range(4):
        rdadv.append((22 + u // 2, "v_add_u32 %s, %s, %s" % (v(VWA + u), s(S_DELTA), v(VWA + u))))

    def body(dA, exA, vwait, rB, dB, exB, bar=True):
        em.i("s_waitcnt lgkmcnt(0)")
        stamp_get(em, 0)
        stamp_put(em, VS, 1)
        stamp_put(em, VS, 2)
        phase(em, mfmas(0), reads(1, 1), dA, extra=exA, dma_start=1, dma_step=4)
        stamp_get(em, 3)
        if vwait is None:
            em.i("s_waitcnt lgkmcnt(0)")
        else:
            em.i("s_waitcnt vmcnt(%d) lgkmcnt(0)" % vwait)
        stamp_get(em, 1)
        if bar:
            em.i("s_barrier")
        stamp_get(em, 2)
        stamp_put(em, VS, 0)
        stamp_put(em, VS, 3)
        phase(em, mfmas(1), rB, dB, extra=exB, dma_start=1, dma_step=4)

    em.i("s_mov_b32 %s, %d" % (s(S_CNT), 7 if SIDE else 10))
    em.label("L_h_loop")
    top = em.mark()
    ex = [(18 + k // 3, x) for k, x in enumerate(adv)] + rdadv
    tq = []
    if TCH:
        tq = [(0, "buffer_load_dword %s, %s, %s, %s offen" % (v(VTDST), v(VTX1), s(SRD_X, 4), s(S_TX))),
              (0, "buffer_load_dword %s, %s, %s, %s offen" % (v(VTDST), v(VTW1), s(SRD_W, 4), s(S_TW))),
              (2, "s_add_u32 %s, %s, 0x%x" % (s(S_TW), s(S_TW), 64 * 3072)),
              (2, "s_add_u32 %s, %s, 0x80" % (s(S_TX), s(S_TX))),
              (3, "s_cmp_ge_u32 %s, 0x500" % s(S_TX)),
              (3, "s_cselect_b32 %s, 0x%x, %s" % (s(S_TX), BIGOFF, s(S_TX)))]
    body(dma[5:], ex, 10 + 2 * TCH, reads(0, 0), dma[:5], tq + [(20, "s_sub_u32 %s, %s, 1" % (s(S_CNT), s(S_CNT))),
                                                           (21, "s_cmp_lg_u32 %s, 0" % s(S_CNT))])
    em.i("s_cbranch_scc1 L_h_loop")
    em.check_backedge(top)
    if SIDE:
        assert not TCH
        em.label("L_h_tail")
        GLd, RLd = SL[0:10:2], SL[10:]
        ig = SC.index("s_mov_b32 %s, 0x05040100" % s(S_R0))
        GC, PC = SC[:ig], SC[ig:]
        G2 = []
        for n in range(10):
            for h, acc_ in ((0, VG), (1, VWT)):
                G2.append("v_dot2_f32_bf16 %s, %s, %s, %s" % (v(acc_), v(GX + 2 * n + h), v(GX + 20 + 2 * n + h), v(acc_) if n else "0"))
        GC = ["v_add_f32 %s, %s, %s" % (v(VG), v(VG), v(VWT))] + GC[20:]
        gp = [2, 3, 4, 6, 7]
        body(dma[5:], rdadv + list(zip(gp, GLd)) + [(18 + k, x) for k, x in enumerate(RLd[:6])], 21,
             reads(0, 0), [], [(k, x) for k, x in enumerate(RLd[6:])] + [(12 + k // 2, x) for k, x in enumerate(P)])
        body([], rdadv + [(1, "s_waitcnt vmcnt(11)")] + [(2 + k, x) for k, x in enumerate(G2)], 8,
             reads(0, 0), [], [(1 + k, x) for k, x in enumerate(GC)])
        W1 = []
        n = 0
        for x in PC:
            if x.startswith("buffer_store"):
                if n:
                    W1.append("v_xor_b32 %s, 0x%x, %s" % (v(VWT + (n & 1)), n << 4, v(VWL)))
                W1.append("ds_write_b128 %s, %s" % (v(VWT + (n & 1)) if n else v(VWL), v(ROUT + 4 * n, 4)))
                n += 1
            else:
                W1.append(x)
        exA = [(SW0 - 1, "s_waitcnt vmcnt(1)")] + [(SW0 + k * (24 - SW0) // len(W1), x) for k, x in enumerate(W1)]
        exB = [(j, "ds_read_b128 %s, %s offset:%d" % (v(RIN + 4 * j, 4), v(VRA + (j & 3)), 1024 * j)) for j in range(8)]
        exB.append((8, "s_movk_i32 %s, 0x1000" % s(S_T4)))
        for j in range(8):
            exB.append((10 + j, "s_waitcnt lgkmcnt(%d)" % (7 - j)))
            exB.append((10 + j, "buffer_store_dwordx4 %s, %s, %s, %s offen offset:%d%s" % (
                v(RIN + 4 * j, 4), v(VRS), s(SRD_WS, 4), s(S_T4) if j >= 4 else "0", 1024 * (j & 3), WT + WTS)))
        body([], exA, None, [], [], exB, bar=False)
    stamp_get(em, 0)
    stamp_put(em, VS, 1, True)
    stamp_put(em, VS, 2)
    stamp_put(em, VS, 0)
    c0 = -2.0 * math.log2(math.e) * math.sqrt(2.0 / math.pi)
    c1 = c0 * 0.044715
    em.i("s_mov_b32 %s, 0x%x" % (s(S_C0), f2u(c0)))
    em.i("s_mov_b32 %s, 0x%x" % (s(S_C0 + 1), f2u(c0)))
    em.i("v_mov_b32 %s, 0x%x" % (v(VT + 1), f2u(c1)))
    em.i("v_mov_b32 %s, 0x%x" % (v(VT + 2), f2u(c1)))
    C1 = VT + 1
    assert C1 % 2 == 0
    def gelu_pair(x, tmp, dst):
        X = v(x, 2)
        T = v(tmp, 2)
        return [
            "v_pk_mul_f32 %s, %s, %s" % (T, X, X),
            "v_pk_fma_f32 %s, %s, %s, %s" % (T, T, v(C1, 2), s(S_C0, 2)),
            "v_pk_mul_f32 %s, %s, %s" % (T, T, X),
            "v_exp_f32 %s, %s" % (v(tmp), v(tmp)),
            "v_exp_f32 %s, %s" % (v(tmp + 1), v(tmp + 1)),
            "v_pk_add_f32 %s, %s, 1.0 op_sel_hi:[1,0]" % (T, T),
            "v_rcp_f32 %s, %s" % (v(tmp), v(tmp)),
            "v_rcp_f32 %s, %s" % (v(tmp + 1), v(tmp + 1)),
            "v_pk_mul_f32 %s, %s, %s" % (T, T, X),
            "v_cvt_pk_bf16_f32 %s, %s, %s" % (v(dst), v(tmp), v(tmp + 1)),
        ]

    if PF & 2:
        emit_pf(em, code_pf("k2_kernel", "L_k2_end", 94, 2))
    grp = 0
    SIDE0 = 5
    NSC = 4
    per = (len(SC) + NSC - 1) // NSC
    for t in range(4):
        for uu in range(3):
            base = acc(t, 2 * uu)
            outr = TMP + 8 + 4 * (grp % 4)
            ls = [gelu_pair(base + 2 * k, TMP + 2 * k + 24 * (grp & 1), outr + k) for k in range(4)]
            if grp == 0 and not SIDE:
                ls += [SL[:9], SL[9:], P[:10], P[10:]]
                ls = ls[:4] + [SL[:9], SL[9:]] + [P[0::2], P[1::2]]
            if grp == SIDE0 and not SIDE:
                em.i("s_waitcnt vmcnt(%d)" % SIDE0)
            if SIDE0 <= grp < SIDE0 + NSC and not SIDE:
                ch = SC[per * (grp - SIDE0):per * (grp - SIDE0 + 1)]
                ls += [ch[0::2], ch[1::2]]
            for x in interleave(ls):
                em.i(x)
            em.i("s_add_u32 %s, %s, 0x%x" % (s(S_T1 + (grp & 1)), s(S_T0), t * TILE_B + 1024 * uu))
            em.i("buffer_store_dwordx4 %s, %s, %s, %s offen%s" % (v(outr, 4), v(VT), s(SRD_WS, 4), s(S_T1 + (grp & 1)), WT + WTH))
            grp += 1
    stamp_end(em, VS, SRD_WS, S_WV, 0)
    em.i("s_endpgm")


def gen_k1(em):
    em.raw(".globl k1_kernel")
    em.raw(".p2align 8")
    em.raw(".type k1_kernel,@function")
    em.label("k1_kernel")
    em.fence()
    em.i("s_cmp_ge_u32 s2, 256")
    em.i("s_cbranch_scc1 L_k1_end")
    stamp_get(em, 0, True)
    stamp_get(em, 1)
    if PROF:
        em.i("s_mov_b32 %s, 0" % s(S_TI))
    em.i("s_load_dwordx4 s[4:7], s[0:1], 0")
    em.i("s_load_dwordx2 s[8:9], s[0:1], 16")
    em.i("s_load_dwordx4 s[12:15], s[0:1], 32")
    em.i("s_load_dwordx2 s[16:17], s[0:1], 48")
    em.i("s_load_dwordx2 s[18:19], s[0:1], 64")
    em.i("s_load_dwordx2 s[20:21], s[0:1], 88")
    em.i("v_lshrrev_b32 v1, 6, v0")
    em.i("v_and_b32 v0, 63, v0")
    em.i("v_readfirstlane_b32 %s, v1" % s(S_WV))
    if PF & 8:
        em.i("s_lshr_b32 s94, s2, 3")
        em.i("s_lshl2_add_u32 s94, s94, %s" % s(S_WV))
        emit_pf(em, code_pf("L_q0", "L_h_tail" if PF & 16 else "L_k1_end", 94, PFN))
    em.i("s_and_b32 %s, s2, 1" % s(S_P))
    em.i("s_lshr_b32 %s, s2, 5" % s(S_B))
    em.i("s_bfe_u32 %s, s2, 0x20001" % s(S_CG))
    em.i("s_lshl_b32 %s, %s, 1" % (s(S_CG), s(S_CG)))
    em.i("s_bfe_u32 %s, s2, 0x10003" % s(S_T0))
    em.i("s_add_u32 %s, %s, %s" % (s(S_CG), s(S_CG), s(S_T0)))
    em.i("s_bitcmp1_b32 s2, 4")
    em.i("s_cbranch_scc1 L_h")
    em.i("s_cmp_eq_u32 %s, 1" % s(S_WV))
    em.i("s_cbranch_scc1 L_q1")
    em.i("s_cmp_eq_u32 %s, 2" % s(S_WV))
    em.i("s_cbranch_scc1 L_q2")
    em.i("s_cmp_eq_u32 %s, 3" % s(S_WV))
    em.i("s_cbranch_scc1 L_q3")
    gen_q(em, 0, 0)
    gen_q(em, 0, 1)
    gen_q(em, 1, 0)
    gen_q(em, 1, 1)
    gen_h(em)
    em.label("L_k1_end")
    em.i("s_endpgm")


K2_LDS = 4 * 3 * 5 * 1024


def gen_k2(em, depth=3):
    NB = depth + 1
    SW, SO, SB2 = 8, 12, 16
    S_W_, S_RB, S_C = 20, 21, 22
    S_AO, S_AH, S_WO, S_WH = 24, 25, 26, 27
    S_A, S_Wf = 28, 30
    T0, T1, T2, T3 = 32, 33, 34, 35
    S_OUT = 38
    VL, VT = 0, 1
    VA = 8
    VW, VW4 = 12, 13
    VS = 14
    GP = 16
    OP = 24
    B2 = 32
    VTA, VTS = 42, 43
    accA = lambda t, j: 44 + (t * 5 + j) * 4
    accB = lambda t, j: 124 + (t * 5 + j) * 4
    RED = 204
    VTD = 208
    VLW = 208
    VLR = 212
    VG4 = 213
    VOUT = 214
    VB2 = 215
    FR = lambda b, k: b * 36 + k * 4
    em.raw(".globl k2_kernel")
    em.raw(".p2align 8")
    em.raw(".type k2_kernel,@function")
    em.label("k2_kernel")
    em.fence()
    em.i("s_cmp_ge_u32 s2, 256")
    em.i("s_cbranch_scc1 L_k2_end")
    stamp_get(em, 0, True)
    stamp_get(em, 1)
    if PROF:
        em.i("s_mov_b32 %s, 0" % s(S_TI))
    em.i("s_load_dwordx2 s[4:5], s[0:1], 88")
    em.i("s_load_dwordx2 s[6:7], s[0:1], 72")
    em.i("s_load_dwordx2 s[36:37], s[0:1], 56")
    em.i("v_lshrrev_b32 v1, 6, v0")
    em.i("v_and_b32 v0, 63, v0")
    em.i("v_readfirstlane_b32 %s, v1" % s(S_W_))
    if AFF & 1:
        em.i("s_and_b32 %s, s2, 1" % s(S_RB))
        em.i("s_lshl_b32 %s, %s, 4" % (s(S_RB), s(S_RB)))
        em.i("s_bfe_u32 %s, s2, 0x10001" % s(T0))
        em.i("s_lshl_b32 %s, %s, 3" % (s(T0), s(T0)))
        em.i("s_add_u32 %s, %s, %s" % (s(S_RB), s(S_RB), s(T0)))
        em.i("s_lshr_b32 %s, s2, 5" % s(T0))
        em.i("s_add_u32 %s, %s, %s" % (s(S_RB), s(S_RB), s(T0)))
        em.i("s_bfe_u32 %s, s2, 0x10002" % s(S_C))
        em.i("s_lshl_b32 %s, %s, 2" % (s(S_C), s(S_C)))
        em.i("s_bfe_u32 %s, s2, 0x20003" % s(T0))
        em.i("s_add_u32 %s, %s, %s" % (s(S_C), s(S_C), s(T0)))
    else:
        em.i("s_bfe_u32 %s, s2, 0x20001" % s(S_RB))
        em.i("s_lshl_b32 %s, %s, 3" % (s(S_RB), s(S_RB)))
        em.i("s_lshr_b32 %s, s2, 5" % s(T0))
        em.i("s_add_u32 %s, %s, %s" % (s(S_RB), s(S_RB), s(T0)))
        em.i("s_and_b32 %s, s2, 1" % s(S_C))
        em.i("s_lshl_b32 %s, %s, 2" % (s(S_C), s(S_C)))
        em.i("s_bfe_u32 %s, s2, 0x20003" % s(T0))
        em.i("s_add_u32 %s, %s, %s" % (s(S_C), s(S_C), s(T0)))
    em.i("v_lshlrev_b32 %s, 4, %s" % (v(VT), v(VL)))
    em.i("s_mul_i32 %s, %s, 0x%x" % (s(T0), s(S_RB), 4 * TILE_B))
    for n in range(4):
        em.i("s_add_u32 %s, %s, %d" % (s(T1), s(S_W_), n))
        em.i("s_and_b32 %s, %s, 3" % (s(T1), s(T1)))
        em.i("s_mul_i32 %s, %s, 0x%x" % (s(T2), s(T1), TILE_B))
        em.i("s_add_u32 %s, %s, %s" % (s(T2), s(T2), s(T0)))
        em.i("v_add_u32 %s, %s, %s" % (v(VA + n), s(T2), v(VT)))
    em.i("s_mul_i32 %s, %s, 5120" % (s(T0), s(S_C)))
    em.i("s_add_u32 %s, %s, 0x%x" % (s(T0), s(T0), WF_OFF))
    em.i("v_add_u32 %s, %s, %s" % (v(VW), s(T0), v(VT)))
    em.i("v_add_u32 %s, 0x1000, %s" % (v(VW4), v(VW)))
    em.i("s_mul_i32 %s, %s, 5120" % (s(S_AO), s(S_W_)))
    em.i("s_mul_i32 %s, %s, 12288" % (s(S_AH), s(S_W_)))
    em.i("s_add_u32 %s, %s, 20480" % (s(S_AH), s(S_AH)))
    em.i("s_mul_i32 %s, %s, 40" % (s(S_WO), s(S_AO)))
    em.i("s_mul_i32 %s, %s, 40" % (s(S_WH), s(S_AH)))
    S_CA, S_EA, S_CH, S_EH = 40, 41, 42, 43
    if ROT2:
        em.i("s_lshr_b32 %s, s2, 5" % s(T0))
        em.i("s_bfe_u32 %s, s2, 0x20003" % s(T1))
        em.i("s_add_u32 %s, %s, %s" % (s(S_CA), s(T0), s(T1)))
        for _ in range(2):
            em.i("s_sub_u32 %s, %s, 5" % (s(T2), s(S_CA)))
            em.i("s_cmp_ge_u32 %s, 5" % s(S_CA))
            em.i("s_cselect_b32 %s, %s, %s" % (s(S_CA), s(T2), s(S_CA)))
        if ROT2 & 2:
            em.i("s_mov_b32 %s, 0" % s(S_CA))
        em.i("s_lshl_b32 %s, %s, 10" % (s(S_CA), s(S_CA)))
        em.i("s_add_u32 %s, %s, %s" % (s(S_CA), s(S_CA), s(S_AO)))
        em.i("s_add_u32 %s, %s, 5120" % (s(S_EA), s(S_AO)))
        em.i("s_mul_i32 %s, %s, 3" % (s(T0), s(T0)))
        em.i("s_lshr_b32 %s, %s, 1" % (s(T0), s(T0)))
        em.i("s_mul_i32 %s, %s, 3" % (s(T1), s(T1)))
        em.i("s_add_u32 %s, %s, %s" % (s(S_CH), s(T0), s(T1)))
        em.i("s_sub_u32 %s, %s, 12" % (s(T2), s(S_CH)))
        em.i("s_cmp_ge_u32 %s, 12" % s(S_CH))
        em.i("s_cselect_b32 %s, %s, %s" % (s(S_CH), s(T2), s(S_CH)))
        em.i("s_lshl_b32 %s, %s, 10" % (s(S_CH), s(S_CH)))
        em.i("s_add_u32 %s, %s, %s" % (s(S_CH), s(S_CH), s(S_AH)))
        em.i("s_add_u32 %s, %s, 12288" % (s(S_EH), s(S_AH)))

    P = []
    f = 128 // TG
    NLs, NA = 13 * f, 8 * f
    if TOUCH2:
        P.append("v_mul_u32_u24 %s, 0x%x, %s" % (v(VT + 1), {1: 0x13B2, 2: 2521}[f], v(VL)))
        P.append("v_lshrrev_b32 %s, 16, %s" % (v(VT + 1), v(VT + 1)))
        P.append("v_mul_u32_u24 %s, %d, %s" % (v(VT + 2), NLs, v(VT + 1)))
        P.append("v_sub_u32 %s, %s, %s" % (v(VT + 2), v(VL), v(VT + 2)))
        P.append("s_bfe_u32 %s, s2, 0x20003" % s(T1))
        P.append("s_lshl_b32 %s, %s, 2" % (s(T2), s(S_RB)))
        P.append("s_add_u32 %s, %s, %s" % (s(T1), s(T1), s(T2)))
        P.append("s_mul_i32 %s, %s, 0x%x" % (s(T1), s(T1), TILE_B))
        P.append("s_lshr_b32 %s, s2, 5" % s(T2))
        P.append("s_mul_i32 %s, %s, 640" % (s(T2), s(T2)))
        P.append("s_add_u32 %s, %s, %s" % (s(T2), s(T2), s(T0)))
        P.append("s_sub_u32 %s, %s, %d" % (s(T2), s(T2), NA * TG))
        P.append("v_mov_b32 %s, %s" % (v(VT + 3), s(T2)))
        P.append("v_mov_b32 %s, %s" % (v(VT + 4), s(T1)))
        P.append("v_cmp_gt_u32 vcc, %d, %s" % (NA, v(VT + 2)))
        P.append("v_cndmask_b32 %s, %s, %s, vcc" % (v(VT + 3), v(VT + 3), v(VT + 4)))
        P.append("v_mov_b32 %s, 0xa000" % v(VTS))
        P.append("v_mov_b32 %s, 0x400" % v(VT + 4))
        P.append("v_cndmask_b32 %s, %s, %s, vcc" % (v(VTS), v(VTS), v(VT + 4)))
        P.append("v_lshl_add_u32 %s, %s, %d, %s" % (v(VT + 3), v(VT + 2), {128: 7, 64: 6}[TG], v(VT + 3)))
        P.append("v_mad_u32_u24 %s, %s, %s, %s" % (v(VT + 3), v(VT + 1), v(VTS), v(VT + 3)))
        P.append("v_mov_b32 %s, 0x%x" % (v(VT + 4), BIGOFF))
        P.append("v_cmp_gt_u32 vcc, 2, %s" % v(VT + 1))
        P.append("v_cndmask_b32 %s, %s, %s, vcc" % (v(VT + 3), v(VT + 4), v(VT + 3)))
        P.append("s_mul_i32 %s, %s, 5" % (s(T1), s(S_W_)))
        P.append("s_add_u32 %s, %s, 3" % (s(T1), s(T1)))
        P.append("s_mul_i32 %s, %s, 12" % (s(T2), s(S_W_)))
        P.append("s_add_u32 %s, %s, 20" % (s(T2), s(T2)))
        P.append("v_mad_u32_u24 %s, %s, %s, %s" % (v(VT + 4), v(VTS), s(T1), v(VT + 3)))
        P.append("v_mad_u32_u24 %s, %s, %s, %s" % (v(VTA), v(VTS), s(T2), v(VT + 3)))
        P.append("v_lshlrev_b32 %s, 1, %s" % (v(VTS), v(VTS)))
    P2 = []
    P2.append("v_and_b32 %s, 15, %s" % (v(VT + 1), v(VL)))
    P2.append("v_lshlrev_b32 %s, 2, %s" % (v(VG4), v(VT + 1)))
    P2.append("v_lshrrev_b32 %s, 4, %s" % (v(VT + 3), v(VL)))
    P2.append("v_lshlrev_b32 %s, 3, %s" % (v(VB2), v(VT + 3)))
    P2.append("v_mul_u32_u24 %s, 0xa00, %s" % (v(VOUT), v(VT + 1)))
    P2.append("v_add_u32 %s, %s, %s" % (v(VOUT), v(VOUT), v(VB2)))
    GL = []
    for n in range(4):
        GL.append("s_add_u32 %s, %s, %d" % (s(T1), s(S_W_), n))
        GL.append("s_and_b32 %s, %s, 3" % (s(T1), s(T1)))
        if n:
            GL.append("s_mul_i32 %s, %s, 15360" % (s(T2), s(T1)))
            if X64:
                GL.append("v_lshl_add_u32 %s, %s, 3, %s" % (v(VLW + n), v(VL), s(T2)))
            else:
                GL.append("v_add_u32 %s, %s, %s" % (v(VLW + n), s(T2), v(VT)))
        else:
            GL.append("s_mul_i32 %s, %s, 15360" % (s(T2), s(T1)))
            if X64:
                GL.append("v_lshl_add_u32 %s, %s, 3, %s" % (v(VLR), v(VL), s(T2)))
            else:
                GL.append("v_add_u32 %s, %s, %s" % (v(VLR), s(T2), v(VT)))
        GL.append("s_lshl_b32 %s, %s, 2" % (s(T2), s(S_RB)))
        GL.append("s_add_u32 %s, %s, %s" % (s(T1), s(T1), s(T2)))
        GL.append("s_lshl_b32 %s, %s, 6" % (s(T1), s(T1)))
        GL.append("s_add_u32 %s, %s, 0x%x" % (s(T1), s(T1), G_OFF))
        GL.append("buffer_load_dword %s, %s, %s, %s offen" % (v(GP + 2 * n), v(VG4), s(SW, 4), s(T1)))
    BL = ["s_mul_i32 %s, %s, 160" % (s(T3), s(S_C))]
    for j in range(5):
        BL.append("buffer_load_dwordx2 %s, %s, %s, %s offen offset:%d" % (v(B2 + 2 * j, 2), v(VB2), s(SB2, 4), s(T3), 32 * j))
    BL.append("s_lshl_b32 %s, %s, 2" % (s(S_OUT), s(S_RB)))
    BL.append("s_add_u32 %s, %s, %s" % (s(S_OUT), s(S_OUT), s(S_W_)))
    BL.append("s_lshr_b32 %s, %s, 6" % (s(T2), s(S_OUT)))
    BL.append("s_and_b32 %s, %s, 63" % (s(S_OUT), s(S_OUT)))
    BL.append("s_lshl_b32 %s, %s, 5" % (s(S_OUT), s(S_OUT)))
    BL.append("s_add_u32 %s, %s, %s" % (s(S_OUT), s(S_OUT), s(T2)))
    BL.append("s_mul_i32 %s, %s, 0x500" % (s(S_OUT), s(S_OUT)))
    BL.append("s_add_u32 %s, %s, %s" % (s(S_OUT), s(S_OUT), s(T3)))

    for y in P2 + P:
        em.i(y)
    P, P2 = [], []
    em.i("s_waitcnt lgkmcnt(0)")
    stamp_put(em, VS, 0)
    stamp_put(em, VS, 1)
    stamp_get(em, 0)
    srd(em, SW, 4, WS_SIZE)

    seq = []

    def emit(x, tag=None):
        em.i(x)
        if x.startswith("buffer_"):
            seq.append(tag)

    def younger(tag):
        last = max(k for k, t in enumerate(seq) if t == tag)
        return len(seq) - 1 - last

    def loads(ks):
        b = ks % NB
        L = []
        if ROT2:
            cur, end, base = (S_CA, S_EA, S_AO) if ks < 5 else (S_CH, S_EH, S_AH)
            L.append("s_mov_b32 %s, %s" % (s(S_A + (ks & 1)), s(cur)))
            L.append("s_mul_i32 %s, %s, 40" % (s(S_Wf + (ks & 1)), s(cur)))
        elif ks < 5:
            L.append("s_add_u32 %s, %s, 0x%x" % (s(S_A + (ks & 1)), s(S_AO), 1024 * ks))
            L.append("s_add_u32 %s, %s, 0x%x" % (s(S_Wf + (ks & 1)), s(S_WO), 40960 * ks))
        else:
            L.append("s_add_u32 %s, %s, 0x%x" % (s(S_A + (ks & 1)), s(S_AH), 1024 * (ks - 5)))
            L.append("s_add_u32 %s, %s, 0x%x" % (s(S_Wf + (ks & 1)), s(S_WH), 40960 * (ks - 5)))
        order = [("a", 0), ("w", 0), ("a", 1), ("a", 2), ("a", 3), ("w", 1), ("w", 2), ("w", 3), ("w", 4)]
        if K2E and ks == 16:
            order = [("w", 0), ("w", 1), ("w", 2), ("w", 3), ("w", 4), ("a", 1), ("a", 2), ("a", 3), ("a", 0)]
        for kd, n in order:
            if kd == "a":
                L.append("buffer_load_dwordx4 %s, %s, %s, %s offen" % (a(FR(b, n), 4), v(VA + n), s(SW, 4), s(S_A + (ks & 1))))
            elif n < 4:
                L.append("buffer_load_dwordx4 %s, %s, %s, %s offen offset:%d" % (a(FR(b, 4 + n), 4), v(VW), s(SW, 4), s(S_Wf + (ks & 1)), 1024 * n))
            else:
                L.append("buffer_load_dwordx4 %s, %s, %s, %s offen" % (a(FR(b, 8), 4), v(VW4), s(SW, 4), s(S_Wf + (ks & 1))))
        if ROT2 and ks not in (4, 16):
            L.append("s_add_u32 %s, %s, 0x400" % (s(cur), s(cur)))
            L.append("s_cmp_eq_u32 %s, %s" % (s(cur), s(end)))
            L.append("s_cselect_b32 %s, %s, %s" % (s(cur), s(base), s(cur)))
        if K2E and ks == 16:
            assert not ROT2
            return [(x, ("L", ks)) for x in L[:-4]] + [(x, ("LA", n)) for x, n in zip(L[-4:], (1, 2, 3, 0))]
        return [(x, ("L", ks)) for x in L]

    def xw(n, j):
        if X64:
            o = (n - 1) * 10 + 2 * j
            return "ds_write2st64_b64 %s, %s, %s offset0:%d offset1:%d" % (v(VLW + n), v(accA(n, j), 2), v(accA(n, j) + 2, 2), o, o + 1)
        return "ds_write_b128 %s, %s offset:%d" % (v(VLW + n), v(accA(n, j), 4), (n - 1) * 5120 + j * 1024)

    def xr(sl, j):
        if X64:
            o = sl * 10 + 2 * j
            return "ds_read2st64_b64 %s, %s offset0:%d offset1:%d" % (v(accB(1 + sl, j), 4), v(VLR), o, o + 1)
        return "ds_read_b128 %s, %s offset:%d" % (v(accB(1 + sl, j), 4), v(VLR), sl * 5120 + j * 1024)

    NK = 17
    tsched = {}
    if TOUCH2:
        for k0 in range(3, NK, 2):
            tsched.setdefault(max(-1, k0 - depth - TL2), []).append(k0)

    def touch(k0):
        if k0 == 3:
            return [("buffer_load_dword %s, %s, %s, 0 offen" % (v(VTD), v(VT + 4), s(SW, 4)), "T")]
        L = [("buffer_load_dword %s, %s, %s, 0 offen" % (v(VTD), v(VTA), s(SW, 4)), "T")]
        if k0 + 2 < NK:
            L.append(("v_add_u32 %s, %s, %s" % (v(VTA), v(VTA), v(VTS)), None))
        return L

    l0 = loads(0)
    for k, (x, t) in enumerate(l0):
        emit(x, t)
        for y in P[4 * k:4 * k + 4]:
            emit(y)
    for y in P[4 * len(l0):]:
        emit(y)
    first_touch = tsched.get(-1, [])
    if TOUCHPOS2 == 0:
        for k0 in first_touch:
            for x, t in touch(k0):
                emit(x, t)
    for ks in range(1, depth):
        for x, t in loads(ks):
            emit(x, t)
        if TOUCHPOS2 == ks:
            for k0 in first_touch:
                for x, t in touch(k0):
                    emit(x, t)
    srd(em, SO, 6, X_BYTES)
    srd(em, SB2, 36, 1280)
    if B2PF:
        em.i("s_mul_i32 s44, %s, 160" % s(S_C))
        em.i("s_add_u32 s44, s36, s44")
        em.i("s_addc_u32 s45, s37, 0")
        for o in (0, 64, 128, 156):
            em.raw("    s_load_dword s46, s[44:45], %d" % o)
    for y in P2:
        emit(y)
    side = {}
    side[1] = [(x, "G") for x in GL]
    side[9] = [(x, "B") for x in BL]
    og = []
    for n in range(4):
        og.append("v_sub_f32 %s, 1.0, %s" % (v(OP + 2 * n), v(GP + 2 * n)))
        og.append("v_cvt_pk_bf16_f32 %s, %s, %s" % (v(OP + 2 * n), v(OP + 2 * n), v(OP + 2 * n)))
        og.append("v_lshlrev_b32 %s, 16, %s" % (v(OP + 2 * n), v(OP + 2 * n)))
    sc = []
    for n in range(4):
        for j in range(5):
            for h in range(2):
                A_ = v(accA(n, j) + 2 * h, 2)
                sc.append("v_pk_mul_f32 %s, %s, %s op_sel_hi:[1,0]" % (A_, A_, v(GP + 2 * n, 2)))
    side[1 + depth + 1] = [(x, None) for x in og]
    assert 1 + depth + 1 != 9
    for k in range(4):
        side[10 + k] = [(x, None) for x in sc[10 * k:10 * k + 10]]
    if K2E:
        bj = []
        for j in range(5):
            bj.append("v_lshlrev_b32 %s, 16, %s" % (v(RED), v(B2 + 2 * j)))
            bj.append("v_and_b32 %s, 0xffff0000, %s" % (v(RED + 1), v(B2 + 2 * j)))
            bj.append("v_lshlrev_b32 %s, 16, %s" % (v(RED + 2), v(B2 + 2 * j + 1)))
            bj.append("v_and_b32 %s, 0xffff0000, %s" % (v(RED + 3), v(B2 + 2 * j + 1)))
            for h in range(2):
                A_ = v(accA(0, j) + 2 * h, 2)
                bj.append("v_pk_fma_f32 %s, %s, %s, %s op_sel_hi:[1,0,1]" % (A_, v(RED + 2 * h, 2), v(OP, 2), A_))
        assert depth <= 4
        side[14] = [(x, None) for x in bj]
    for ks in range(NK - 1 if K2E else NK):
        b = ks % NB
        accf = accA if ks < 5 else accB
        first = ks in (0, 5)
        mf = []
        for j in range(5):
            for t in range(4):
                mf.append(mfma(v(accf(t, j), 4), a(FR(b, 4 + j), 4), a(FR(b, t), 4), "0" if first else None))
        nxt = loads(ks + depth) if ks + depth < NK else []
        for k0 in tsched.get(ks, []):
            nxt += touch(k0)
        stamp_get(em, 1)
        em.i("s_waitcnt vmcnt(%d)" % min(63, younger(("L", ks))))
        stamp_put(em, VS, 0, True)
        stamp_put(em, VS, 1)
        stamp_get(em, 0)
        ext = side.get(ks, [])
        k = 0
        e = 0
        per = (len(ext) + 8) // 9 if ext else 0
        for mi, m in enumerate(mf):
            em.i(m)
            if k < len(nxt):
                emit(*nxt[k])
                k += 1
            elif e < len(ext):
                for _ in range(max(1, per)):
                    if e < len(ext):
                        emit(*ext[e])
                        e += 1
        while k < len(nxt):
            emit(*nxt[k])
            k += 1
        while e < len(ext):
            emit(*ext[e])
            e += 1
    if K2E:
        b = (NK - 1) % NB
        stamp_get(em, 1)
        for n in (1, 2, 3, 0):
            em.i("s_waitcnt vmcnt(%d)" % younger(("LA", n)))
            if n == 1:
                stamp_put(em, VS, 0, True)
                stamp_put(em, VS, 1)
                stamp_get(em, 0)
            for j in range(5):
                em.i(mfma(v(accB(n, j), 4), a(FR(b, 4 + j), 4), a(FR(b, n), 4)))
            if n:
                for j in range(5):
                    for h in range(2):
                        A_ = v(accA(n, j) + 2 * h, 2)
                        B_ = v(accB(n, j) + 2 * h, 2)
                        em.i("v_pk_fma_f32 %s, %s, %s, %s op_sel_hi:[1,0,1]" % (A_, B_, v(OP + 2 * n, 2), A_))
                    em.i(xw(n, j))
        stamp_get(em, 1)
        stamp_put(em, VS, 0, True)
        stamp_put(em, VS, 1)
    else:
        stamp_get(em, 1)
        stamp_put(em, VS, 0, True)
        stamp_put(em, VS, 1)
        for n in (1, 2, 3):
            for j in range(5):
                for h in range(2):
                    A_ = v(accA(n, j) + 2 * h, 2)
                    B_ = v(accB(n, j) + 2 * h, 2)
                    em.i("v_pk_fma_f32 %s, %s, %s, %s op_sel_hi:[1,0,1]" % (A_, B_, v(OP + 2 * n, 2), A_))
                em.i(xw(n, j))
        for j in range(5):
            R = RED if j & 1 else accB(1, 0)
            em.i("v_lshlrev_b32 %s, 16, %s" % (v(R), v(B2 + 2 * j)))
            em.i("v_and_b32 %s, 0xffff0000, %s" % (v(R + 1), v(B2 + 2 * j)))
            em.i("v_lshlrev_b32 %s, 16, %s" % (v(R + 2), v(B2 + 2 * j + 1)))
            em.i("v_and_b32 %s, 0xffff0000, %s" % (v(R + 3), v(B2 + 2 * j + 1)))
            for h in range(2):
                B_ = v(accB(0, j) + 2 * h, 2)
                em.i("v_pk_add_f32 %s, %s, %s" % (B_, B_, v(R + 2 * h, 2)))
            for h in range(2):
                A_ = v(accA(0, j) + 2 * h, 2)
                B_ = v(accB(0, j) + 2 * h, 2)
                em.i("v_pk_fma_f32 %s, %s, %s, %s op_sel_hi:[1,0,1]" % (A_, B_, v(OP, 2), A_))
    stamp_get(em, 0)
    em.i("s_waitcnt lgkmcnt(0)")
    stamp_get(em, 1)
    em.i("s_barrier")
    stamp_get(em, 2)
    stamp_put(em, VS, 0, True)
    stamp_put(em, VS, 1)
    stamp_put(em, VS, 2)
    for j in range(5):
        for sl in range(3):
            em.i(xr(sl, j))
    if K2E:
        for j in range(5):
            for h in range(2):
                A_ = v(accA(0, j) + 2 * h, 2)
                B_ = v(accB(0, j) + 2 * h, 2)
                em.i("v_pk_fma_f32 %s, %s, %s, %s op_sel_hi:[1,0,1]" % (A_, B_, v(OP, 2), A_))
    for j in range(5):
        em.i("s_waitcnt lgkmcnt(%d)" % (3 * (4 - j)))
        for h in range(2):
            A_ = v(accA(0, j) + 2 * h, 2)
            B1, B2_, B3 = [v(accB(1 + sl, j) + 2 * h, 2) for sl in range(3)]
            em.i("v_pk_add_f32 %s, %s, %s" % (A_, A_, B1))
            em.i("v_pk_add_f32 %s, %s, %s" % (B2_, B2_, B3))
        for h in range(2):
            A_ = v(accA(0, j) + 2 * h, 2)
            em.i("v_pk_add_f32 %s, %s, %s" % (A_, A_, v(accB(2, j) + 2 * h, 2)))
        r = accA(0, j)
        em.i("v_cvt_pk_bf16_f32 %s, %s, %s" % (v(r), v(r), v(r + 1)))
        em.i("v_cvt_pk_bf16_f32 %s, %s, %s" % (v(r + 1), v(r + 2), v(r + 3)))
        em.i("buffer_store_dwordx2 %s, %s, %s, %s offen offset:%d%s" % (v(r, 2), v(VOUT), s(SO, 4), s(S_OUT), 32 * j, WT2))
    stamp_end(em, VS, SW, S_W_, 0x40000)
    em.label("L_k2_end")
    em.i("s_endpgm")
    return NB * 36


def desc(name, nfv, acc_off):
    return """.amdhsa_kernel %s
  .amdhsa_next_free_vgpr %d
  .amdhsa_next_free_sgpr 96
  .amdhsa_accum_offset %d
  .amdhsa_group_segment_fixed_size 0
  .amdhsa_kernarg_size 96
  .amdhsa_user_sgpr_count 2
  .amdhsa_user_sgpr_kernarg_segment_ptr 1
  .amdhsa_system_sgpr_workgroup_id_x 1
.end_amdhsa_kernel
""" % (name, nfv, acc_off)


def main(out, which="12"):
    em = Em()
    if "1" in which:
        em.raw("; @launch kernel=k1_kernel grid=(256,1,1) block=(256,1,1) lds=%d" % K1_LDS)
    if "2" in which:
        em.raw("; @launch kernel=k2_kernel grid=(256,1,1) block=(256,1,1) lds=%d" % K2_LDS)
    em.raw('.amdgcn_target "amdgcn-amd-amdhsa--gfx950"')
    em.raw(".text")
    if "1" in which:
        gen_k1(em)
    if "2" in which:
        na = gen_k2(em, K2DEPTH)
    em.raw('.section .rodata,"a"')
    if "1" in which:
        em.raw(".p2align 6")
        em.raw(desc("k1_kernel", 256 + 104, 256))
    if "2" in which:
        em.raw(".p2align 6")
        em.raw(desc("k2_kernel", 216 + na, 216))
    open(out, "w").write(em.text())
    print("wrote", out, "lines", len(em.lines), "nop states", em.nops)


if __name__ == "__main__":
    main(sys.argv[1], sys.argv[2] if len(sys.argv) > 2 else "12")
```

```python
import math
import struct
import sys

from em import Em, interleave


def f2u(x):
    return struct.unpack("<I", struct.pack("<f", x))[0]


import os
PROF = int(os.environ.get("PROF", "0"))
K2DEPTH = int(os.environ.get("K2DEPTH", "2"))
ROT = int(os.environ.get("ROT", "5"))
WT = os.environ.get("WT", "")
WTH = os.environ.get("WTH", " sc1")
WTO = os.environ.get("WTO", " sc1")
WTS = os.environ.get("WTS", " sc1")
QT = int(os.environ.get("QT", "1"))
SIDE = int(os.environ.get("SIDE", "1"))
WT2 = os.environ.get("WT2", "")
EARLY = int(os.environ.get("EARLY", "1"))
TOUCH2 = int(os.environ.get("TOUCH2", "0"))
TG = int(os.environ.get("TG", "128"))
TL2 = int(os.environ.get("TL2", "3"))
TOUCHPOS2 = int(os.environ.get("TOUCHPOS2", "1"))
AFF = int(os.environ.get("AFF", "3"))
TCH = int(os.environ.get("TCH", "0"))
if TCH:
    ROT = 0
NODMA = int(os.environ.get("NODMA", "10"))
K2E = int(os.environ.get("K2E", "1"))
X64 = int(os.environ.get("X64", "0"))
B2PF = int(os.environ.get("B2PF", "1"))
K2D0 = int(os.environ.get("K2D0", "9"))
K2SP = int(os.environ.get("K2SP", "1"))
ROT2 = int(os.environ.get("ROT2", "0"))
S_TW, S_TX = 88, 89
TWV = [int(c) for c in os.environ.get("TWV", "0123")]
VTW1, VTW2, VTX1, VTX2, VTDST = 250, 251, 252, 253, 254
NKS = 68
ACT_OFF = 0
WF_OFF = 0x900000
G_OFF = 0xC00000
WS_SIZE = 0xE00000 if PROF else 0xC02000
PROF_OFF = 0xD00000
S_TM = 72
S_TI = 80
TILE_B = NKS * 1024

X_BYTES = 2048 * 640 * 2
WQKV_BYTES = 640 * 1920 * 2
W1_BYTES = 640 * 1536 * 2
WO_BYTES = 640 * 640 * 2
W2_BYTES = 1536 * 640 * 2

Q_SLOT = 49152
Q_XSZ = 18432
H_SLOT = 40960
H_XSZ = 16384
XCH = 2 * Q_SLOT + Q_XSZ + 15 * 1024
K1_LDS = XCH + 43 * 512 if QT else 3 * Q_SLOT


def v(n, cnt=1):
    return "v%d" % n if cnt == 1 else "v[%d:%d]" % (n, n + cnt - 1)


def a(n, cnt=1):
    return "a%d" % n if cnt == 1 else "a[%d:%d]" % (n, n + cnt - 1)


def s(n, cnt=1):
    return "s%d" % n if cnt == 1 else "s[%d:%d]" % (n, n + cnt - 1)


def mfma(d, A, B, C=None):
    return "v_mfma_f32_16x16x32_bf16 %s, %s, %s, %s" % (d, A, B, d if C is None else C)


def stamp_get(em, r=0, real=False):
    if PROF == 2:
        if real:
            em.i("s_memrealtime s[84:85]")
        return
    if PROF:
        em.i("%s s[%d:%d]" % ("s_memrealtime" if real else "s_memtime", S_TM + 2 * r, S_TM + 2 * r + 1))


def stamp_put(em, vs, r=0, wait=False):
    if PROF != 1:
        return
    if wait:
        em.i("s_waitcnt lgkmcnt(0)")
    em.i("v_cmp_eq_u32 vcc, %s, v0" % s(S_TI))
    em.i("v_mov_b32 %s, %s" % (v(vs + 1), s(S_TM + 2 * r)))
    em.i("v_cndmask_b32 %s, %s, %s, vcc" % (v(vs), v(vs), v(vs + 1)))
    em.i("s_add_u32 %s, %s, 1" % (s(S_TI), s(S_TI)))


def stamp(em, vs, real=False):
    stamp_get(em, 0, real)
    stamp_put(em, vs, 0, True)


def stamp_end(em, vs, srdws, swave, koff):
    if not PROF:
        return
    if PROF == 2:
        em.i("s_waitcnt vmcnt(0)")
        em.i("s_memrealtime s[86:87]")
        em.i("s_waitcnt lgkmcnt(0)")
        em.i("v_mov_b32 %s, s84" % v(vs))
        em.i("v_writelane_b32 %s, s86, 1" % v(vs))
    else:
        stamp(em, vs)
        em.i("s_waitcnt vmcnt(0)")
        stamp(em, vs)
        stamp(em, vs, True)
    em.i("s_lshl_b32 %s, s2, 2" % s(S_TI))
    em.i("s_add_u32 %s, %s, %s" % (s(S_TI), s(S_TI), s(swave)))
    em.i("s_lshl_b32 %s, %s, 8" % (s(S_TI), s(S_TI)))
    em.i("s_add_u32 %s, %s, 0x%x" % (s(S_TI), s(S_TI), PROF_OFF + koff))
    em.i("v_lshlrev_b32 %s, 2, v0" % v(vs + 1))
    em.i("buffer_store_dword %s, %s, %s, %s offen" % (v(vs), v(vs + 1), s(srdws, 4), s(S_TI)))


def phase(em, mf, reads, dmas, extra=(), dma_start=1, dma_step=None):
    n = len(mf)
    if dmas:
        if dma_step is None:
            dma_step = max(1, (n - dma_start - 1) // len(dmas))
    dpos = {dma_start + k * dma_step: d for k, d in enumerate(dmas)} if dmas else {}
    assert all(p < n for p in dpos), (dpos.keys(), n)
    ri = 0
    ex = {}
    for p, ins in extra:
        ex.setdefault(p, []).append(ins)
    for k, m in enumerate(mf):
        if k in dpos:
            em.i(dpos[k][0])
        em.i(m)
        if k in dpos:
            em.i(dpos[k][1])
        if ri < len(reads):
            em.i(reads[ri])
            ri += 1
        for ins in ex.get(k, []):
            em.i(ins)
    while ri < len(reads):
        em.i(reads[ri])
        ri += 1


SRD_X, SRD_W, SRD_WS, SRD_T, SRD_T2 = 24, 28, 32, 36, 40
S_P, S_B, S_CG, S_WV = 44, 45, 46, 47
S_WOFF, S_WOFF2, S_XOFF, S_DM, S_RD, S_DELTA, S_CNT, S_STG = 48, 49, 50, 51, 52, 53, 54, 55
S_T0, S_T1, S_T2, S_T3, S_T4, S_T5 = 56, 57, 58, 59, 60, 61
S_C0 = 62
S_C1 = 64
S_UNIT = 66
S_EX = 68
S_RT = 70
BIGOFF = 0x7F000000


def srd(em, dst, base, nbytes, add=0):
    if add:
        em.i("s_add_u32 %s, %s, 0x%x" % (s(dst), s(base), add))
        em.i("s_addc_u32 %s, %s, 0" % (s(dst + 1), s(base + 1)))
    else:
        em.i("s_mov_b32 %s, %s" % (s(dst), s(base)))
        em.i("s_mov_b32 %s, %s" % (s(dst + 1), s(base + 1)))
    em.i("s_mov_b32 %s, 0x%x" % (s(dst + 2), nbytes))
    em.i("s_mov_b32 %s, 0x20000" % s(dst + 3))


PF = int(os.environ.get("PF", "15"))
PFN = int(os.environ.get("PFN", "5"))
_pfn = [0]


def code_pf(lo, hi, idx, nper):
    _pfn[0] += 1
    h = "L_pf%d" % _pfn[0]
    L = ["s_mul_i32 s92, %s, %d" % (s(idx), 64 * nper),
         "s_min_u32 s92, s92, %s-%s-%d" % (hi, lo, 64 * nper),
         "s_getpc_b64 s[90:91]",
         "@" + h,
         "s_add_u32 s92, s92, %s-%s" % (lo, h),
         "s_add_u32 s90, s90, s92",
         "s_addc_u32 s91, s91, 0"]
    for k in range(nper):
        L.append("s_load_dword s93, s[90:91], %d" % (64 * k))
    return L


def emit_pf(em, L):
    for x in L:
        if x.startswith("@"):
            em.label(x[1:])
        elif "L_" in x or "_kernel" in x or x.startswith("s_getpc") or x.startswith("s_load"):
            em.raw("    " + x)
        else:
            em.i(x)


def advance_dma(slot, wstep):
    L = []
    L.append("s_add_u32 %s, %s, 0x%x" % (s(S_WOFF), s(S_WOFF), wstep))
    L.append("s_add_u32 %s, %s, 1" % (s(S_STG), s(S_STG)))
    L.append("s_add_u32 %s, %s, 0x80" % (s(S_XOFF), s(S_XOFF)))
    if ROT:
        L.append("s_cmp_eq_u32 %s, 0x500" % s(S_XOFF))
        L.append("s_cselect_b32 %s, 0, %s" % (s(S_XOFF), s(S_XOFF)))
        L.append("s_cselect_b32 %s, 0, %s" % (s(S_WOFF), s(S_WOFF)))
    L.append("s_cmp_ge_u32 %s, %d" % (s(S_STG), NODMA))
    L.append("s_cselect_b32 %s, 0x%x, %s" % (s(S_XOFF), BIGOFF, s(S_XOFF)))
    if ROT:
        L.append("s_cselect_b32 %s, 0x%x, %s" % (s(S_WOFF), BIGOFF, s(S_WOFF)))
    L.append("s_add_u32 %s, %s, 0x%x" % (s(S_DM), s(S_DM), slot))
    L.append("s_cmp_eq_u32 %s, 0x%x" % (s(S_DM), 3 * slot))
    L.append("s_cselect_b32 %s, 0, %s" % (s(S_DM), s(S_DM)))
    return L


def rot_init(em, typ, wstep):
    if not ROT:
        em.i("s_mov_b32 %s, 0" % s(S_WOFF))
        em.i("s_mov_b32 %s, 0" % s(S_XOFF))
        return
    if ROT >= 2:
        G = ROT
        em.i("s_and_b32 %s, %s, 1" % (s(S_XOFF), s(S_CG)))
        em.i("s_lshl_b32 %s, %s, 1" % (s(S_XOFF), s(S_XOFF)))
        em.i("s_add_u32 %s, %s, %s" % (s(S_XOFF), s(S_XOFF), s(S_B)))
        if typ:
            em.i("s_add_u32 %s, %s, 1" % (s(S_XOFF), s(S_XOFF)))
        em.i("s_mul_i32 %s, %s, %d" % (s(S_WOFF), s(S_XOFF), (256 + G - 1) // G))
        em.i("s_lshr_b32 %s, %s, 8" % (s(S_WOFF), s(S_WOFF)))
        em.i("s_mul_i32 %s, %s, %d" % (s(S_WOFF), s(S_WOFF), G))
        em.i("s_sub_u32 %s, %s, %s" % (s(S_XOFF), s(S_XOFF), s(S_WOFF)))
        em.i("s_mul_i32 %s, %s, %d" % (s(S_XOFF), s(S_XOFF), round(160 / G)))
        em.i("s_lshr_b32 %s, %s, 4" % (s(S_XOFF), s(S_XOFF)))
        em.i("s_mul_i32 %s, %s, 0x%x" % (s(S_WOFF), s(S_XOFF), wstep))
        em.i("s_lshl_b32 %s, %s, 7" % (s(S_XOFF), s(S_XOFF)))
        for tt in range(11):
            assert (tt * ((256 + G - 1) // G)) >> 8 == tt // G
        return
    em.i("s_and_b32 %s, %s, 1" % (s(S_XOFF), s(S_CG)))
    em.i("s_mul_i32 %s, %s, 5" % (s(S_XOFF), s(S_XOFF)))
    em.i("s_add_u32 %s, %s, %s" % (s(S_XOFF), s(S_XOFF), s(S_B)))
    if typ:
        em.i("s_add_u32 %s, %s, 2" % (s(S_XOFF), s(S_XOFF)))
    em.i("s_sub_u32 %s, %s, 10" % (s(S_WOFF), s(S_XOFF)))
    em.i("s_cmp_ge_u32 %s, 10" % s(S_XOFF))
    em.i("s_cselect_b32 %s, %s, %s" % (s(S_XOFF), s(S_WOFF), s(S_XOFF)))
    em.i("s_mul_i32 %s, %s, 0x%x" % (s(S_WOFF), s(S_XOFF), wstep))
    em.i("s_lshl_b32 %s, %s, 7" % (s(S_XOFF), s(S_XOFF)))


def advance_rd(slot):
    L = []
    L.append("s_add_u32 %s, %s, 0x%x" % (s(S_RT), s(S_RD), slot))
    L.append("s_cmp_eq_u32 %s, 0x%x" % (s(S_RT), 3 * slot))
    L.append("s_cselect_b32 %s, 0, %s" % (s(S_RT), s(S_RT)))
    L.append("s_sub_u32 %s, %s, %s" % (s(S_DELTA), s(S_RT), s(S_RD)))
    L.append("s_mov_b32 %s, %s" % (s(S_RD), s(S_RT)))
    return L


def gen_q(em, rh, hp):
    w = 2 * rh + hp
    tag = "q%d" % w
    ha, hb = 2 * hp, 2 * hp + 1
    VL = 0
    VT = 1
    VWD = 8
    VXD = 12
    VXA0, VXA1, VWM, VWR = 18, 19, 20, 21
    ACC = 24
    accM = lambda t, c: ACC + (t * 6 + c) * 4
    accR = lambda n: ACC + 96 + n * 4
    accH = lambda n: ACC + 120 + n * 4
    NACC = 132
    EPI = 156
    FR = lambda st, k: st * 52 + k * 4
    wp = [range(0, 4), range(4, 8), range(8, 12), range(12, 15)][w]
    xi = [range(0, 4), range(4, 8), range(8, 12), range(12, 18)][w]
    em.label("L_%s" % tag)
    em.fence()
    em.i("v_lshrrev_b32 %s, 3, %s" % (v(VT), v(VL)))
    em.i("v_mul_u32_u24 %s, 0xa00, %s" % (v(VT), v(VT)))
    em.i("v_lshrrev_b32 %s, 4, %s" % (v(VT + 1), v(VL)))
    em.i("v_xor_b32 %s, %s, %s" % (v(VT + 1), v(VT + 1), v(VL)))
    em.i("v_and_b32 %s, 7, %s" % (v(VT + 1), v(VT + 1)))
    em.i("v_lshl_add_u32 %s, %s, 4, %s" % (v(VT + 2), v(VT + 1), v(VT)))
    em.i("v_xor_b32 %s, 64, %s" % (v(VT + 3), v(VT + 2)))
    em.i("s_lshl_b32 %s, %s, 8" % (s(S_T0), s(S_B)))
    em.i("s_add_u32 %s, %s, %s" % (s(S_T0), s(S_T0), s(S_P)))
    em.i("s_mul_i32 %s, %s, 0x500" % (s(S_T0), s(S_T0)))
    em.i("s_sub_u32 %s, %s, 0x%x" % (s(S_T1), s(S_T0), 32 * 1280))
    em.i("s_cmp_eq_u32 %s, 0" % s(S_B))
    em.i("s_cselect_b32 %s, %s, %s" % (s(S_T2), s(S_T0), s(S_T1)))
    for n, i in enumerate(xi):
        src = VT + 2 + (i & 1)
        if i < 2:
            em.i("s_add_u32 %s, %s, 0x%x" % (s(S_T3), s(S_T2), 20480))
        else:
            em.i("s_add_u32 %s, %s, 0x%x" % (s(S_T3), s(S_T1), 20480 * i))
        em.i("v_add_u32 %s, %s, %s" % (v(VXD + n), s(S_T3), v(src)))
    em.i("s_mul_i32 %s, %s, 160" % (s(S_T4), s(S_CG)))
    for n, i in enumerate(wp):
        d = VWD + n
        em.i("v_add_u32 %s, 0x%x, %s" % (v(VT), 64 * i, v(VL)))
        em.i("v_mul_u32_u24 %s, 0x889, %s" % (v(VT + 1), v(VT)))
        em.i("v_lshrrev_b32 %s, 16, %s" % (v(VT + 1), v(VT + 1)))
        em.i("v_mul_u32_u24 %s, 30, %s" % (v(VT + 4), v(VT + 1)))
        em.i("v_sub_u32 %s, %s, %s" % (v(VT), v(VT), v(VT + 4)))
        em.i("v_mul_u32_u24 %s, 0xcd, %s" % (v(VT + 4), v(VT)))
        em.i("v_lshrrev_b32 %s, 11, %s" % (v(VT + 4), v(VT + 4)))
        em.i("v_mul_u32_u24 %s, 0x460, %s" % (v(VT + 4), v(VT + 4)))
        em.i("v_lshl_add_u32 %s, %s, 4, %s" % (v(VT), v(VT), v(VT + 4)))
        em.i("v_and_b32 %s, 0x13, %s" % (v(VT + 4), v(VT + 1)))
        em.i("v_and_b32 %s, 4, %s" % (v(VT + 5), v(VT + 1)))
        em.i("v_lshl_or_b32 %s, %s, 1, %s" % (v(VT + 4), v(VT + 5), v(VT + 4)))
        em.i("v_and_b32 %s, 8, %s" % (v(VT + 5), v(VT + 1)))
        em.i("v_lshrrev_b32 %s, 1, %s" % (v(VT + 5), v(VT + 5)))
        em.i("v_or_b32 %s, %s, %s" % (v(VT + 4), v(VT + 4), v(VT + 5)))
        em.i("v_mul_u32_u24 %s, 0xf00, %s" % (v(VT + 4), v(VT + 4)))
        em.i("v_add3_u32 %s, %s, %s, %s" % (v(d), v(VT), v(VT + 4), s(S_T4)))

    if TCH:
        wst = 64 * 3840
        em.i("s_and_b32 %s, %s, 1" % (s(S_T0), s(S_CG)))
        em.i("s_lshl_b32 %s, %s, 1" % (s(S_T1), s(S_B)))
        em.i("s_add_u32 %s, %s, %s" % (s(S_T0), s(S_T0), s(S_T1)))
        em.i("s_mul_i32 %s, %s, %d" % (s(S_T0), s(S_T0), 4 * 3840))
        em.i("s_lshr_b32 %s, %s, 1" % (s(S_T1), s(S_CG)))
        em.i("s_mul_i32 %s, %s, 320" % (s(S_T1), s(S_T1)))
        em.i("s_add_u32 %s, %s, %s" % (s(S_T0), s(S_T0), s(S_T1)))
        em.i("v_mul_u32_u24 %s, 86, %s" % (v(VT), v(VL)))
        em.i("v_lshrrev_b32 %s, 8, %s" % (v(VT), v(VT)))
        em.i("v_mul_u32_u24 %s, 0x380, %s" % (v(VT), v(VT)))
        em.i("v_lshl_add_u32 %s, %s, 7, %s" % (v(VT), v(VL), v(VT)))
        em.i("v_add_u32 %s, %s, %s" % (v(VT), s(S_T0), v(VT)))
        em.i("v_mov_b32 %s, 0x%x" % (v(VT + 4), BIGOFF))
        em.i("v_cmp_gt_u32 vcc, 36, %s" % v(VL))
        em.i("v_cndmask_b32 %s, %s, %s, vcc" % (v(VTW1), v(VT + 4), v(VT)))
    dma = []
    xl = [("s_add_u32 m0, %s, 0x%x" % (s(S_DM), 1024 * i),
           "buffer_load_dwordx4 %s, %s, %s offen lds" % (v(VXD + n), s(SRD_X, 4), s(S_XOFF))) for n, i in enumerate(xi)]
    wl = []
    for n, i in enumerate(wp):
        wl.append(("s_add_u32 m0, %s, 0x%x" % (s(S_DM), Q_XSZ + 1024 * i),
                   "buffer_load_dwordx4 %s, %s, %s offen lds" % (v(VWD + n), s(SRD_W, 4), s(S_WOFF))))
    for n, i in enumerate(wp):
        wl.append(("s_add_u32 m0, %s, 0x%x" % (s(S_DM), Q_XSZ + 1024 * (i + 15)),
                   "buffer_load_dwordx4 %s, %s, %s offen lds" % (v(VWD + n), s(SRD_W, 4), s(S_WOFF2))))
    dma = xl + wl
    assert len(dma) == 12
    adv = advance_dma(Q_SLOT, 64 * 3840) + ["s_add_u32 %s, %s, 0x%x" % (s(S_WOFF2), s(S_WOFF), 32 * 3840)]

    rot_init(em, 0, 64 * 3840)
    em.i("s_add_u32 %s, %s, 0x%x" % (s(S_WOFF2), s(S_WOFF), 32 * 3840))
    em.i("s_mov_b32 %s, 0" % s(S_DM))
    em.i("s_mov_b32 %s, 0" % s(S_STG))
    em.i("s_mov_b32 %s, 0" % s(S_RD))
    em.i("s_waitcnt lgkmcnt(0)")
    VS = 22
    stamp_put(em, VS, 0)
    stamp_put(em, VS, 1)
    stamp_get(em, 0)
    srd(em, SRD_X, 4, X_BYTES)
    srd(em, SRD_W, 6, WQKV_BYTES)
    if TCH and w == TWV[0]:
        em.i("s_mov_b32 %s, 0x%x" % (s(S_TW), 64 * 3840))
        em.i("buffer_load_dword %s, %s, %s, %s offen" % (v(VTDST), v(VTW1), s(SRD_W, 4), s(S_TW)))
    srd(em, SRD_WS, 20, WS_SIZE)
    for m, l in dma:
        em.i(m)
        em.i(l)
    for x in adv:
        em.i(x)
    if PF & 1 and QT:
        em.i("s_and_b32 s94, %s, 1" % s(S_CG))
        em.i("s_lshl1_add_u32 s94, %s, s94" % s(S_B))
        emit_pf(em, code_pf("L_%s_tail" % tag, "L_%s_end" % tag, 94, 4))
    F = []
    F.append("v_and_b32 %s, 15, %s" % (v(VT), v(VL)))
    F.append("v_lshrrev_b32 %s, 1, %s" % (v(VT + 1), v(VT)))
    F.append("v_lshrrev_b32 %s, 4, %s" % (v(VT + 2), v(VL)))
    F.append("v_xor_b32 %s, %s, %s" % (v(VT + 1), v(VT + 1), v(VT + 2)))
    F.append("v_lshlrev_b32 %s, 4, %s" % (v(VT + 1), v(VT + 1)))
    F.append("v_lshl_add_u32 %s, %s, 7, %s" % (v(VXA0), v(VT), v(VT + 1)))
    F.append("v_xor_b32 %s, 64, %s" % (v(VXA1), v(VXA0)))
    F.append("v_lshrrev_b32 %s, 5, %s" % (v(VT), v(VL)))
    F.append("v_lshlrev_b32 %s, 4, %s" % (v(VT), v(VT)))
    F.append("v_bfe_u32 %s, %s, 4, 1" % (v(VT + 1), v(VL)))
    F.append("v_lshl_add_u32 %s, %s, 2, %s" % (v(VT), v(VT + 1), v(VT)))
    F.append("v_bfe_u32 %s, %s, 2, 2" % (v(VT + 1), v(VL)))
    F.append("v_add_u32 %s, %s, %s" % (v(VT), v(VT), v(VT + 1)))
    F.append("v_mul_u32_u24 %s, 0x1e0, %s" % (v(VT), v(VT)))
    F.append("v_and_b32 %s, 3, %s" % (v(VT + 1), v(VL)))
    F.append("v_lshl_add_u32 %s, %s, 3, %s" % (v(VWM), v(VT + 1), v(VT)))
    F.append("v_mul_u32_u24 %s, 40, %s" % (v(VT + 1), v(VT + 1)))
    F.append("v_add3_u32 %s, %s, %s, 32" % (v(VWR), v(VT), v(VT + 1)))
    for r in range(ACC, ACC + NACC, 2):
        F.append("v_mov_b64 %s, 0" % v(r, 2))
    VE = EPI
    VHa, VHb, VRr = EPI + 2, EPI + 12, EPI + 22
    KP = (EPI + 32, EPI + 36)
    MC, MP, MPF = EPI + 40, EPI + 44, EPI + 48
    ONES = EPI + 52
    VMA, VMB = EPI + 56, EPI + 57
    QR = EPI + 58
    MKP, MKC = 222, 6

    class _L:
        def __init__(self):
            self.l = []

        def i(self, x):
            self.l.append(x)
    em_real = em
    em = _L()
    NEG = f2u(-1.0e30)
    em.i("v_and_b32 %s, 15, %s" % (v(VT), v(VL)))
    em.i("v_lshrrev_b32 %s, 4, %s" % (v(VT + 1), v(VL)))
    em.i("v_lshlrev_b32 %s, 2, %s" % (v(VT + 2), v(VT + 1)))
    em.i("v_sub_u32 %s, %s, %s" % (v(VT + 2), v(VT), v(VT + 2)))
    em.i("v_mov_b32 %s, 0x%x" % (v(VT + 3), NEG))
    for r in range(4):
        em.i("v_subrev_u32 %s, %d, %s" % (v(VT + 4), r, v(VT + 2)))
        em.i("v_cmp_gt_u32 vcc, 8, %s" % v(VT + 4))
        em.i("v_cndmask_b32 %s, %s, 0, vcc" % (v(MC + r), v(VT + 3)))
        em.i("v_cmp_ge_i32 vcc, -9, %s" % v(VT + 4))
        em.i("v_cndmask_b32 %s, %s, 0, vcc" % (v(MP + r), v(VT + 3)))
    if rh == 0:
        em.i("s_cmp_eq_u32 %s, 0" % s(S_B))
        em.i("s_cselect_b64 %s, -1, 0" % s(S_EX, 2))
        for r in range(4):
            em.i("v_cndmask_b32 %s, %s, %s, %s" % (v(MPF + r), v(MP + r), v(VT + 3), s(S_EX, 2)))
    for r in range(4):
        em.i("v_mov_b32 %s, 0x3f803f80" % v(ONES + r))
    em.i("v_cmp_eq_u32 vcc, %d, %s" % (ha, v(VT + 1)))
    em.i("v_cndmask_b32 %s, 0, -1, vcc" % v(VMA))
    em.i("v_cmp_eq_u32 %s, %d, %s" % (s(S_EX, 2), hb, v(VT + 1)))
    em.i("v_cndmask_b32 %s, 0, -1, %s" % (v(VMB), s(S_EX, 2)))
    em.i("s_mov_b32 %s, 0x%x" % (s(S_C0), f2u(20.0 ** -0.5 * math.log2(math.e))))
    em.i("s_mov_b32 %s, 0x%x" % (s(S_C0 + 1), f2u(20.0 ** -0.5 * math.log2(math.e))))
    em.i("s_lshl_b32 %s, %s, 6" % (s(S_T0), s(S_P)))
    em.i("s_lshl_b32 %s, %s, 3" % (s(S_T1), s(S_B)))
    em.i("s_add_u32 %s, %s, %s" % (s(S_T0), s(S_T0), s(S_T1)))
    em.i("s_add_u32 %s, %s, %d" % (s(S_T0), s(S_T0), 4 * rh))
    em.i("s_mul_i32 %s, %s, 0x%x" % (s(S_T0), s(S_T0), TILE_B))
    em.i("s_lshl_b32 %s, %s, 11" % (s(S_T1), s(S_CG)))
    em.i("s_add_u32 %s, %s, %s" % (s(S_T1), s(S_T1), s(S_T0)))
    em.i("s_add_u32 %s, %s, %d" % (s(S_T1), s(S_T1), 1024 * hp))
    em.i("s_lshr_b32 %s, %s, 1" % (s(S_T2), s(S_CG)))
    em.i("s_lshl_b32 %s, %s, 10" % (s(S_T2), s(S_T2)))
    em.i("s_add_u32 %s, %s, %s" % (s(S_T2), s(S_T2), s(S_T0)))
    em.i("s_and_b32 %s, %s, 1" % (s(S_T3), s(S_CG)))
    em.i("s_lshl_b32 %s, %s, 3" % (s(S_T3), s(S_T3)))
    em.i("s_add_u32 %s, %s, %s" % (s(S_T2), s(S_T2), s(S_T3)))
    em.i("s_add_u32 %s, %s, %d" % (s(S_T2), s(S_T2), 16 * 1024))
    em.i("v_lshlrev_b32 %s, 4, %s" % (v(VE + 1), v(VL)))
    em.i("s_movk_i32 %s, 0x7fff" % s(S_T3))
    em.i("s_lshl1_add_u32 %s, %s, 1" % (s(S_T3), s(S_T3)))
    for dst, src in ((MKP, MP), (MKC, MC)):
        for h in range(2):
            em.i("v_ashrrev_i32 %s, 31, %s" % (v(VT), v(src + 2 * h)))
            em.i("v_ashrrev_i32 %s, 31, %s" % (v(VT + 1), v(src + 2 * h + 1)))
            em.i("v_bfi_b32 %s, %s, %s, %s" % (v(VT), s(S_T3), v(VT), v(VT + 1)))
            em.i("v_not_b32 %s, %s" % (v(dst + h), v(VT)))
    em.i("v_lshlrev_b32 %s, 3, %s" % (v(VE), v(VL)))
    em.i("v_add_u32 %s, 0x%x, %s" % (v(VE), XCH, v(VE)))
    PRE = em.l
    em = em_real
    if QT:
        F += PRE
    per = (len(F) + 11) // 12
    cut = [min(len(F), per * n) for n in range(13)]
    cut = [c - 1 if 0 < c < len(F) and F[c - 1].startswith("s_cmp") else c for c in cut]
    for n, (m, l) in enumerate(dma):
        em.i(m)
        em.i(l)
        for x in F[cut[n]:cut[n + 1]]:
            em.i(x)
    for x in adv:
        em.i(x)
    if TCH:
        em.i("s_mov_b32 %s, 0x%x" % (s(S_TW), 2 * 64 * 3840 if w == TWV[1] else 3 * 64 * 3840 if w == TWV[2] else BIGOFF))
        em.i("buffer_load_dword %s, %s, %s, %s offen" % (v(VTDST), v(VTW1), s(SRD_W, 4), s(S_TW)))
        em.i("s_mov_b32 %s, 0x%x" % (s(S_TW), 4 * 64 * 3840 if w == TWV[3] else BIGOFF))
    if not EARLY:
        for m, l in dma[:6]:
            em.i(m)
            em.i(l)

    def reads(st, ks):
        L = []
        xa = VXA1 if ks else VXA0
        R = []
        for t in range(4):
            R.append("ds_read_b128 %s, %s offset:%d" % (a(FR(st, t), 4), v(xa), (1 + 4 * rh + t) * 2048))
        R.append("ds_read_b128 %s, %s offset:0" % (a(FR(st, 4), 4), v(xa)))
        Wl = []
        cols = [(0, ha), (0, hb), (1, ha), (1, hb), (2, ha), (2, hb)]
        for c, (P, hd) in enumerate(cols):
            for h in range(2):
                Wl.append("ds_read_b64_tr_b16 %s, %s offset:%d" % (
                    a(FR(st, 5 + c) + 2 * h, 2), v(VWM), Q_XSZ + (32 * ks + 8 * h) * 480 + 160 * P + 40 * hd))
        for c, P in enumerate([0 if hp == 0 else 2, 1]):
            for h in range(2):
                Wl.append("ds_read_b64_tr_b16 %s, %s offset:%d" % (
                    a(FR(st, 11 + c) + 2 * h, 2), v(VWR), Q_XSZ + (32 * ks + 8 * h) * 480 + 160 * P))
        return R + Wl

    krt = (0, 1) if hp == 0 else (2, 3)

    def mfmas(st):
        X = lambda t: a(FR(st, t), 4)
        XH = a(FR(st, 4), 4)
        W = lambda c: a(FR(st, 5 + c), 4)
        R0, R1 = a(FR(st, 11), 4), a(FR(st, 12), 4)
        L = []
        for t in range(4):
            for c in range(4):
                L.append(mfma(v(accM(t, c), 4), W(c), X(t)))
            for c in (4, 5):
                L.append(mfma(v(accM(t, c), 4), X(t), W(c)))
            if hp == 0:
                L.append(mfma(v(accR(t), 4), R0, X(t)))
            else:
                L.append(mfma(v(accR(t), 4), X(t), R0))
        for n, t in enumerate(krt):
            L.append(mfma(v(accR(4 + n), 4), R1, X(t)))
        if rh == 0:
            L.append(mfma(v(accH(0), 4), W(2), XH))
            L.append(mfma(v(accH(1), 4), W(3), XH))
            if hp == 0:
                L.append(mfma(v(accH(2), 4), R1, XH))
            else:
                L.append(mfma(v(accH(2), 4), XH, R0))
        else:
            L.append(mfma(v(accH(0), 4), XH, W(4)))
            L.append(mfma(v(accH(1), 4), XH, W(5)))
        return L

    stamp_get(em, 3)
    em.i("s_waitcnt vmcnt(%d)" % ((12 if EARLY else 18) + TCH))
    stamp_get(em, 1)
    em.i("s_barrier")
    stamp_get(em, 2)
    stamp_put(em, VS, 0, True)
    stamp_put(em, VS, 3)
    for r in reads(0, 0):
        em.i(r)
    if EARLY:
        for m, l in dma[:6]:
            em.i(m)
            em.i(l)
    em.i("s_mov_b32 %s, %d" % (s(S_CNT), 9 if QT else 10))
    em.label("L_%s_loop" % tag)
    top = em.mark()
    em.i("s_waitcnt lgkmcnt(0)")
    stamp_get(em, 0)
    stamp_put(em, VS, 1)
    stamp_put(em, VS, 2)
    ex = [(24 + k // 3, x) for k, x in enumerate(adv)]
    ex += [(22, x) for x in advance_rd(Q_SLOT)]
    ex.append((23, "v_add_u32 %s, %s, %s" % (v(VXA0), s(S_DELTA), v(VXA0))))
    ex.append((29, "v_add_u32 %s, %s, %s" % (v(VXA1), s(S_DELTA), v(VXA1))))
    ex.append((30, "v_add_u32 %s, %s, %s" % (v(VWM), s(S_DELTA), v(VWM))))
    ex.append((30, "v_add_u32 %s, %s, %s" % (v(VWR), s(S_DELTA), v(VWR))))
    phase(em, mfmas(0), reads(1, 1), dma[6:], extra=ex, dma_start=1, dma_step=4)
    stamp_get(em, 3)
    em.i("s_waitcnt vmcnt(%d) lgkmcnt(0)" % (12 + TCH))
    stamp_get(em, 1)
    em.i("s_barrier")
    stamp_get(em, 2)
    stamp_put(em, VS, 0)
    stamp_put(em, VS, 3)
    tq = []
    if TCH:
        tq = [(0, "buffer_load_dword %s, %s, %s, %s offen" % (v(VTDST), v(VTW1), s(SRD_W, 4), s(S_TW))),
              (2, "s_add_u32 %s, %s, 0x%x" % (s(S_TW), s(S_TW), 64 * 3840))]
    phase(em, mfmas(1), reads(0, 0), dma[:6], extra=tq + [(26, "s_sub_u32 %s, %s, 1" % (s(S_CNT), s(S_CNT))),
                                                    (27, "s_cmp_lg_u32 %s, 0" % s(S_CNT))], dma_start=1, dma_step=4)
    em.i("s_cbranch_scc1 L_%s_loop" % tag)
    em.check_backedge(top)
    Rs = lambda ty, tl: (ty * 9 + tl) * 512
    PMs = lambda wh, kd, hd: (27 + wh * 8 + kd * 4 + hd) * 512

    def cvt2(dst, src):
        return ["v_cvt_pk_bf16_f32 %s, %s, %s" % (v(dst), v(src), v(src + 1)),
                "v_cvt_pk_bf16_f32 %s, %s, %s" % (v(dst + 1), v(src + 2), v(src + 3))]

    if QT:
        em.label("L_%s_tail" % tag)
        em.i("s_waitcnt lgkmcnt(0)")
        stamp_get(em, 0)
        stamp_put(em, VS, 1)
        stamp_put(em, VS, 2)
        phase(em, mfmas(0), reads(1, 1), [])
        stamp_get(em, 3)
        em.i("s_waitcnt lgkmcnt(0)")
        stamp_get(em, 1)
        stamp_get(em, 2)
        stamp_put(em, VS, 0, True)
        stamp_put(em, VS, 3)
        mf = {int(m.split()[1][2:].split(":")[0]): m for m in mfmas(1)}
        post = {}
        wr = []
        for tt in range(4):
            wr.append((accR(tt), Rs(0 if hp == 0 else 2, 1 + 4 * rh + tt)))
        for n, tt in enumerate(krt):
            wr.append((accR(4 + n), Rs(1, 1 + 4 * rh + tt)))
        if rh == 0:
            wr += [(accH(0), PMs(0, 0, ha)), (accH(1), PMs(0, 0, hb)), (accH(2), Rs(1 if hp == 0 else 2, 0))]
        else:
            wr += [(accH(0), PMs(0, 1, ha)), (accH(1), PMs(0, 1, hb))]
        order = []
        for r, off in wr:
            order.append(r)
            post[r] = cvt2(r, r) + ["ds_write_b64 %s, %s offset:%d" % (v(VE), v(r, 2), off)]
        late = {}
        for tt in (3, 0, 1, 2):
            for e, c in ((0, 2), (1, 3)):
                r = accM(tt, c)
                order.append(r)
                post[r] = cvt2(r, r)
                if tt == 3 and rh == 0:
                    post[r].append("ds_write_b64 %s, %s offset:%d" % (v(VE), v(r, 2), PMs(1, 0, (ha, hb)[e])))
                late[r] = "ds_read_b64 %s, %s offset:%d" % (v(r + 2, 2), v(VE), Rs(1, 1 + 4 * rh + tt))
            for e, c in ((0, 4), (1, 5)):
                r = accM(tt, c)
                dst = (VHa, VHb)[e] + 2 + 2 * tt
                order.append(r)
                post[r] = cvt2(dst, r)
                if tt == 3 and rh == 0:
                    post[r].append("ds_write_b64 %s, %s offset:%d" % (v(VE), v(dst, 2), PMs(1, 1, (ha, hb)[e])))
        for tt in range(4):
            for c in (0, 1):
                r = accM(tt, c)
                order.append(r)
                post[r] = cvt2(r, r)
        assert sorted(order) == sorted(mf), (order, mf.keys())
        nwr = sum(1 for r in order for x in post[r] if x.startswith("ds_write"))
        XR = []
        for tt in range(4):
            XR.append("ds_read_b64 %s, %s offset:%d" % (v(QR + 2 * tt, 2), v(VE), Rs(0, 1 + 4 * rh + tt)))
        for e in range(2):
            XR.append("ds_read_b64 %s, %s offset:%d" % (v(KP[e], 2), v(VE), PMs(rh, 0, (ha, hb)[e])))
            XR.append("ds_read_b64 %s, %s offset:%d" % (v(KP[e] + 2, 2), v(VE), Rs(1, 4 * rh)))
            XR.append("ds_read_b64 %s, %s offset:%d" % (v((VHa, VHb)[e], 2), v(VE), PMs(rh, 1, (ha, hb)[e])))
        for tt in range(5):
            XR.append("ds_read_b64 %s, %s offset:%d" % (v(VRr + 2 * tt, 2), v(VE), Rs(2, 4 * rh + tt)))
        q = []
        st = {"w": 0, "bar": None, "done": set(), "lg": 0}
        BARK = int(os.environ.get("BARK", "24"))

        def put(x, r=None):
            if x.startswith("ds_"):
                if st["lg"] >= 15:
                    em.i("s_waitcnt lgkmcnt(7)")
                    st["lg"] = 7
                st["lg"] += 1
            em.i(x)
            if x.startswith("ds_write"):
                st["w"] += 1

        def barrier():
            em.i("s_waitcnt lgkmcnt(0)")
            st["lg"] = 0
            stamp_get(em, 1)
            em.i("s_barrier")
            stamp_get(em, 2)
            st["bar"] = True
            q[:0] = [(0, x, None) for x in XR] + [(0, late[r], None) for r in late if r in st["done"]]

        def drain(k, n):
            while n and q and q[0][0] <= k:
                _, x, r = q.pop(0)
                put(x)
                n -= 1
                if r is not None and not any(z[2] == r for z in q):
                    st["done"].add(r)
                    if st["bar"] and r in late:
                        q.insert(0, (0, late[r], None))
        for k, r in enumerate(order):
            em.i(mf[r])
            q.extend((k + 3, x, r) for x in post[r])
            drain(k, 3)
            if not st["bar"] and st["w"] == nwr and k >= BARK:
                barrier()
        if not st["bar"]:
            while st["w"] < nwr:
                drain(99, 1)
            barrier()
        drain(99, 999)
        stamp_get(em, 0)
        stamp_put(em, VS, 1, True)
        stamp_put(em, VS, 2)
        stamp_put(em, VS, 0)
        em.i("s_waitcnt lgkmcnt(0)")
        stamp(em, VS)
        stamp(em, VS)
        stamp(em, VS)
        stamp(em, VS)
        stamp(em, VS)
        for tt in range(4):
            for e in range(2):
                for d in range(2):
                    em.i("v_and_b32 %s, %s, %s" % (v(accM(tt, e) + 2 + d), v((VMA, VMB)[e]), v(QR + 2 * tt + d)))
    else:
        stamp_get(em, 0)
        em.i("s_waitcnt vmcnt(0) lgkmcnt(0)")
        stamp_put(em, VS, 1)
        stamp_put(em, VS, 2)
        stamp_put(em, VS, 0)
        stamp_get(em, 1)
        em.i("s_barrier")
        stamp_get(em, 2)
        Rs = lambda ty, tl: (ty * 9 + tl) * 512
        PMs = lambda wh, kd, hd: (27 + wh * 8 + kd * 4 + hd) * 512
        VE = EPI
        VHa, VHb, VRr = EPI + 2, EPI + 12, EPI + 22
        KP = (EPI + 32, EPI + 36)
        MC, MP, MPF = EPI + 40, EPI + 44, EPI + 48
        ONES = EPI + 52
        VMA, VMB = EPI + 56, EPI + 57
        QR = EPI + 58
        em.i("v_lshlrev_b32 %s, 3, %s" % (v(VE), v(VL)))

        def cvt2(dst, src):
            return ["v_cvt_pk_bf16_f32 %s, %s, %s" % (v(dst), v(src), v(src + 1)),
                    "v_cvt_pk_bf16_f32 %s, %s, %s" % (v(dst + 1), v(src + 2), v(src + 3))]

        wr = []
        for t in range(4):
            wr.append((accR(t), Rs(0 if hp == 0 else 2, 1 + 4 * rh + t)))
        for n, t in enumerate(krt):
            wr.append((accR(4 + n), Rs(1, 1 + 4 * rh + t)))
        if rh == 0:
            wr.append((accH(0), PMs(0, 0, ha)))
            wr.append((accH(1), PMs(0, 0, hb)))
            wr.append((accH(2), Rs(1 if hp == 0 else 2, 0)))
        else:
            wr.append((accH(0), PMs(0, 1, ha)))
            wr.append((accH(1), PMs(0, 1, hb)))
        for r, off in wr:
            for x in cvt2(r, r):
                em.i(x)
            em.i("ds_write_b64 %s, %s offset:%d" % (v(VE), v(r, 2), off))
        for t in (3, 0, 1, 2):
            for e, c in ((0, 2), (1, 3)):
                for x in cvt2(accM(t, c), accM(t, c)):
                    em.i(x)
                if t == 3 and rh == 0:
                    em.i("ds_write_b64 %s, %s offset:%d" % (v(VE), v(accM(t, c), 2), PMs(1, 0, (ha, hb)[e])))
            for e, c in ((0, 4), (1, 5)):
                dst = (VHa, VHb)[e] + 2 + 2 * t
                for x in cvt2(dst, accM(t, c)):
                    em.i(x)
                if t == 3 and rh == 0:
                    em.i("ds_write_b64 %s, %s offset:%d" % (v(VE), v(dst, 2), PMs(1, 1, (ha, hb)[e])))
            if t == 3:
                em.i("s_waitcnt lgkmcnt(0)")
                stamp_put(em, VS, 1)
                stamp_put(em, VS, 2)
                stamp_get(em, 1)
                em.i("s_barrier")
                stamp_get(em, 2)
                for tt in range(4):
                    em.i("ds_read_b64 %s, %s offset:%d" % (v(QR + 2 * tt, 2), v(VE), Rs(0, 1 + 4 * rh + tt)))
                for e in range(2):
                    em.i("ds_read_b64 %s, %s offset:%d" % (v(KP[e], 2), v(VE), PMs(rh, 0, (ha, hb)[e])))
                    em.i("ds_read_b64 %s, %s offset:%d" % (v(KP[e] + 2, 2), v(VE), Rs(1, 4 * rh)))
                    em.i("ds_read_b64 %s, %s offset:%d" % (v((VHa, VHb)[e], 2), v(VE), PMs(rh, 1, (ha, hb)[e])))
                for tt in range(5):
                    em.i("ds_read_b64 %s, %s offset:%d" % (v(VRr + 2 * tt, 2), v(VE), Rs(2, 4 * rh + tt)))
                em.i("ds_read_b64 %s, %s offset:%d" % (v(accM(3, 2) + 2, 2), v(VE), Rs(1, 4 + 4 * rh)))
                em.i("s_waitcnt lgkmcnt(8)")
                em.i("ds_read_b64 %s, %s offset:%d" % (v(accM(3, 3) + 2, 2), v(VE), Rs(1, 4 + 4 * rh)))
            else:
                em.i("ds_read_b64 %s, %s offset:%d" % (v(accM(t, 2) + 2, 2), v(VE), Rs(1, 1 + 4 * rh + t)))
                em.i("ds_read_b64 %s, %s offset:%d" % (v(accM(t, 3) + 2, 2), v(VE), Rs(1, 1 + 4 * rh + t)))
        for t in range(4):
            for c in (0, 1):
                for x in cvt2(accM(t, c), accM(t, c)):
                    em.i(x)
        NEG = f2u(-1.0e30)
        em.i("v_and_b32 %s, 15, %s" % (v(VT), v(VL)))
        em.i("v_lshrrev_b32 %s, 4, %s" % (v(VT + 1), v(VL)))
        em.i("v_lshlrev_b32 %s, 2, %s" % (v(VT + 2), v(VT + 1)))
        em.i("v_sub_u32 %s, %s, %s" % (v(VT + 2), v(VT), v(VT + 2)))
        em.i("v_mov_b32 %s, 0x%x" % (v(VT + 3), NEG))
        for r in range(4):
            em.i("v_subrev_u32 %s, %d, %s" % (v(VT + 4), r, v(VT + 2)))
            em.i("v_cmp_gt_u32 vcc, 8, %s" % v(VT + 4))
            em.i("v_cndmask_b32 %s, %s, 0, vcc" % (v(MC + r), v(VT + 3)))
            em.i("v_cmp_ge_i32 vcc, -9, %s" % v(VT + 4))
            em.i("v_cndmask_b32 %s, %s, 0, vcc" % (v(MP + r), v(VT + 3)))
        if rh == 0:
            em.i("s_cmp_eq_u32 %s, 0" % s(S_B))
            em.i("s_cselect_b64 %s, -1, 0" % s(S_EX, 2))
            for r in range(4):
                em.i("v_cndmask_b32 %s, %s, %s, %s" % (v(MPF + r), v(MP + r), v(VT + 3), s(S_EX, 2)))
        for r in range(4):
            em.i("v_mov_b32 %s, 0x3f803f80" % v(ONES + r))
        em.i("v_cmp_eq_u32 vcc, %d, %s" % (ha, v(VT + 1)))
        em.i("v_cndmask_b32 %s, 0, -1, vcc" % v(VMA))
        em.i("v_cmp_eq_u32 %s, %d, %s" % (s(S_EX, 2), hb, v(VT + 1)))
        em.i("v_cndmask_b32 %s, 0, -1, %s" % (v(VMB), s(S_EX, 2)))
        em.i("s_mov_b32 %s, 0x%x" % (s(S_C0), f2u(20.0 ** -0.5 * math.log2(math.e))))
        em.i("s_mov_b32 %s, 0x%x" % (s(S_C0 + 1), f2u(20.0 ** -0.5 * math.log2(math.e))))
        em.i("s_waitcnt lgkmcnt(0)")
        stamp_put(em, VS, 1)
        stamp_put(em, VS, 2)
        stamp(em, VS)
        for t in range(4):
            for e in range(2):
                for d in range(2):
                    em.i("v_and_b32 %s, %s, %s" % (v(accM(t, e) + 2 + d), v((VMA, VMB)[e]), v(QR + 2 * t + d)))
        em.i("s_lshl_b32 %s, %s, 6" % (s(S_T0), s(S_P)))
        em.i("s_lshl_b32 %s, %s, 3" % (s(S_T1), s(S_B)))
        em.i("s_add_u32 %s, %s, %s" % (s(S_T0), s(S_T0), s(S_T1)))
        em.i("s_add_u32 %s, %s, %d" % (s(S_T0), s(S_T0), 4 * rh))
        em.i("s_mul_i32 %s, %s, 0x%x" % (s(S_T0), s(S_T0), TILE_B))
        em.i("s_lshl_b32 %s, %s, 11" % (s(S_T1), s(S_CG)))
        em.i("s_add_u32 %s, %s, %s" % (s(S_T1), s(S_T1), s(S_T0)))
        em.i("s_add_u32 %s, %s, %d" % (s(S_T1), s(S_T1), 1024 * hp))
        em.i("s_lshr_b32 %s, %s, 1" % (s(S_T2), s(S_CG)))
        em.i("s_lshl_b32 %s, %s, 10" % (s(S_T2), s(S_T2)))
        em.i("s_add_u32 %s, %s, %s" % (s(S_T2), s(S_T2), s(S_T0)))
        em.i("s_and_b32 %s, %s, 1" % (s(S_T3), s(S_CG)))
        em.i("s_lshl_b32 %s, %s, 3" % (s(S_T3), s(S_T3)))
        em.i("s_add_u32 %s, %s, %s" % (s(S_T2), s(S_T2), s(S_T3)))
        em.i("s_add_u32 %s, %s, %d" % (s(S_T2), s(S_T2), 16 * 1024))
        em.i("v_lshlrev_b32 %s, 4, %s" % (v(VE + 1), v(VL)))
    VST = VE + 1

    pool = [accM(0, 4), accM(1, 4), accM(2, 4), accM(3, 4), 120, 128, 136, 144, 224, 232, 240, 248]

    def unit(t, e, regs):
        S, A_, B_ = regs
        M, M2, SUM = A_, A_ + 2, A_ + 4
        O, OR = B_, B_ + 4
        Q = v(accM(t, e), 4)
        Kc = v(accM(t, 2 + e), 4)
        Kp = v(accM(t - 1, 2 + e), 4) if t > 0 else v(KP[e], 4)
        mp = MPF if (t == 0 and rh == 0) else MP
        VH = (VHa, VHb)[e]
        L = []
        L.append(mfma(v(S, 4), Kp, Q, v(mp, 4)))
        L.append(mfma(v(S + 4, 4), Kc, Q, v(MC, 4)))
        if QT:
            for k in range(4):
                L.append("v_max_f32 %s, %s, %s" % (v(S + k), v(S + k), v(S + 4 + k)))
            L.append("v_max3_f32 %s, %s, %s, %s" % (v(M), v(S), v(S + 1), v(S + 2)))
            L.append("v_max_f32 %s, %s, %s" % (v(M), v(M), v(S + 3)))
        else:
            L.append("v_max3_f32 %s, %s, %s, %s" % (v(M), v(S), v(S + 1), v(S + 2)))
            L.append("v_max3_f32 %s, %s, %s, %s" % (v(M2), v(S + 3), v(S + 4), v(S + 5)))
            L.append("v_max3_f32 %s, %s, %s, %s" % (v(M), v(M), v(S + 6), v(S + 7)))
            L.append("v_max_f32 %s, %s, %s" % (v(M), v(M), v(M2)))
        L.append("v_mov_b32 %s, %s" % (v(M2), v(M)))
        L.append("v_permlane16_swap_b32 %s, %s" % (v(M), v(M2)))
        L.append("v_max_f32 %s, %s, %s" % (v(M), v(M), v(M2)))
        L.append("v_mov_b32 %s, %s" % (v(M2), v(M)))
        L.append("v_permlane32_swap_b32 %s, %s" % (v(M), v(M2)))
        L.append("v_max_f32 %s, %s, %s" % (v(M), v(M), v(M2)))
        L.append("v_mul_f32 %s, %s, %s" % (v(M), s(S_C0), v(M)))
        NS = 4 if QT else 8
        for k in range(0, NS, 2):
            L.append("v_pk_fma_f32 %s, %s, %s, %s op_sel_hi:[1,0,0] neg_lo:[0,0,1] neg_hi:[0,0,1]" % (
                v(S + k, 2), v(S + k, 2), s(S_C0, 2), v(M, 2)))
        for k in range(NS):
            L.append("v_exp_f32 %s, %s" % (v(S + k), v(S + k)))
        if QT:
            for k in range(2):
                L.append("v_cvt_pk_bf16_f32 %s, %s, %s" % (v(S + 4 + k), v(S + 2 * k), v(S + 2 * k + 1)))
            for k in range(4):
                L.append("v_and_b32 %s, %s, %s" % (v(S + k), v((MKP, MKC)[k >> 1] + (k & 1)), v(S + 4 + (k & 1))))
        else:
            for k in range(4):
                L.append("v_cvt_pk_bf16_f32 %s, %s, %s" % (v(S + k), v(S + 2 * k), v(S + 2 * k + 1)))
        P = v(S, 4)
        L.append(mfma(v(SUM, 4), v(ONES, 4), P, "0"))
        L.append(mfma(v(O, 4), v(VH + 2 * t, 4), P, "0"))
        L.append(mfma(v(OR, 4), v(VRr + 2 * t, 4), P, "0"))
        L.append("v_rcp_f32 %s, %s" % (v(M), v(SUM)))
        L.append("v_pk_mul_f32 %s, %s, %s op_sel_hi:[1,0]" % (v(O, 2), v(O, 2), v(M, 2)))
        L.append("v_pk_mul_f32 %s, %s, %s op_sel_hi:[1,0]" % (v(O + 2, 2), v(O + 2, 2), v(M, 2)))
        L.append("v_pk_mul_f32 %s, %s, %s op_sel_hi:[1,0]" % (v(OR, 2), v(OR, 2), v(M, 2)))
        L.append("v_pk_mul_f32 %s, %s, %s op_sel_hi:[1,0]" % (v(OR + 2, 2), v(OR + 2, 2), v(M, 2)))
        dst = accM(t, 0) + 2 * e
        L.append("v_cvt_pk_bf16_f32 %s, %s, %s" % (v(dst), v(O), v(O + 1)))
        L.append("v_cvt_pk_bf16_f32 %s, %s, %s" % (v(dst + 1), v(O + 2), v(O + 3)))
        L.append("v_cvt_pk_bf16_f32 %s, %s, %s" % (v(OR), v(OR), v(OR + 1)))
        L.append("v_cvt_pk_bf16_f32 %s, %s, %s" % (v(OR + 1), v(OR + 2), v(OR + 3)))
        return L

    for half in range(2):
        ul = []
        us = []
        for n, (t, e) in enumerate([(2 * half, 0), (2 * half, 1), (2 * half + 1, 0), (2 * half + 1, 1)]):
            regs = (pool[n], pool[4 + n], pool[8 + n])
            us.append((t, e, regs))
            ul.append(unit(t, e, regs))
        for x in interleave(ul):
            em.i(x)
        for n in (0, 2):
            t = us[n][0]
            ORa = us[n][2][2] + 4
            ORb = us[n + 1][2][2] + 4
            em.i("v_cndmask_b32 %s, %s, %s, %s" % (v(ORa), v(ORa), v(ORb), s(S_EX, 2)))
            em.i("v_cndmask_b32 %s, %s, %s, %s" % (v(ORa + 1), v(ORa + 1), v(ORb + 1), s(S_EX, 2)))
            em.i("s_add_u32 %s, %s, 0x%x" % (s(S_T3), s(S_T1), t * TILE_B))
            em.i("buffer_store_dwordx4 %s, %s, %s, %s offen%s" % (v(accM(t, 0), 4), v(VST), s(SRD_WS, 4), s(S_T3), WT + WTO))
            em.i("s_add_u32 %s, %s, 0x%x" % (s(S_T4), s(S_T2), t * TILE_B))
            em.i("s_mov_b32 %s, 0" % ("exec_hi" if hp == 0 else "exec_lo"))
            em.i("buffer_store_dwordx2 %s, %s, %s, %s offen%s" % (v(ORa, 2), v(VST), s(SRD_WS, 4), s(S_T4), WT))
            em.i("s_mov_b64 exec, -1")
    stamp_end(em, VS, SRD_WS, S_WV, 0)
    em.i("s_endpgm")
    em.label("L_%s_end" % tag)


def gen_h(em):
    VL, VT = 0, 1
    VWD, VXD = 8, 14
    VXA0, VXA1 = 18, 19
    VWA = 20
    ACC = 24
    acc = lambda t, u: ACC + (t * 6 + u) * 4
    RIN = 120
    ROUT = 152
    GX = 152
    VG, VRS, VGX, VGW, VRL = 192, 193, 194, 195, 196
    VS = 198
    BIAS = 200
    TMP = 200
    S_R0, S_R1 = 82, 83
    FR = lambda st, k: st * 40 + k * 4
    em.label("L_h")
    em.fence()
    em.i("s_lshr_b32 %s, %s, 1" % (s(S_T5), s(S_WV)))
    em.i("v_lshrrev_b32 %s, 3, %s" % (v(VT), v(VL)))
    em.i("v_mul_u32_u24 %s, 0xa00, %s" % (v(VT), v(VT)))
    em.i("v_lshrrev_b32 %s, 4, %s" % (v(VT + 1), v(VL)))
    em.i("v_xor_b32 %s, %s, %s" % (v(VT + 1), v(VT + 1), v(VL)))
    em.i("v_and_b32 %s, 7, %s" % (v(VT + 1), v(VT + 1)))
    em.i("v_lshl_add_u32 %s, %s, 4, %s" % (v(VT + 2), v(VT + 1), v(VT)))
    em.i("v_xor_b32 %s, 64, %s" % (v(VT + 3), v(VT + 2)))
    em.i("s_lshl_b32 %s, %s, 8" % (s(S_T0), s(S_B)))
    em.i("s_add_u32 %s, %s, %s" % (s(S_T0), s(S_T0), s(S_P)))
    em.i("s_lshl_b32 %s, %s, 6" % (s(S_T1), s(S_WV)))
    em.i("s_add_u32 %s, %s, %s" % (s(S_T1), s(S_T1), s(S_T0)))
    em.i("s_mul_i32 %s, %s, 0x500" % (s(S_T1), s(S_T1)))
    for n in range(4):
        em.i("s_add_u32 %s, %s, 0x%x" % (s(S_T3), s(S_T1), 20480 * n))
        em.i("v_add_u32 %s, %s, %s" % (v(VXD + n), s(S_T3), v(VT + 2 + (n & 1))))
    em.i("s_mul_i32 %s, %s, 384" % (s(S_T4), s(S_CG)))
    em.i("s_mul_i32 %s, %s, 0x%x" % (s(S_T3), s(S_WV), 16 * 3072))
    em.i("s_add_u32 %s, %s, %s" % (s(S_T4), s(S_T4), s(S_T3)))
    for n in range(6):
        d = VWD + n
        em.i("v_add_u32 %s, 0x%x, %s" % (v(VT), 64 * n, v(VL)))
        em.i("v_mul_u32_u24 %s, 0xaab, %s" % (v(VT + 1), v(VT)))
        em.i("v_lshrrev_b32 %s, 16, %s" % (v(VT + 1), v(VT + 1)))
        em.i("v_mul_u32_u24 %s, 24, %s" % (v(VT + 4), v(VT + 1)))
        em.i("v_sub_u32 %s, %s, %s" % (v(VT), v(VT), v(VT + 4)))
        em.i("v_and_b32 %s, 2, %s" % (v(VT + 4), v(VT + 1)))
        em.i("v_lshrrev_b32 %s, 1, %s" % (v(VT + 5), v(VT + 1)))
        em.i("v_and_or_b32 %s, %s, 4, %s" % (v(VT + 4), v(VT + 5), v(VT + 4)))
        em.i("v_xor_b32 %s, %s, %s" % (v(VT), v(VT), v(VT + 4)))
        em.i("v_mul_u32_u24 %s, 0xc00, %s" % (v(VT + 1), v(VT + 1)))
        em.i("v_lshl_add_u32 %s, %s, 4, %s" % (v(VT), v(VT), v(VT + 1)))
        em.i("v_add_u32 %s, %s, %s" % (v(d), s(S_T4), v(VT)))
    em.i("v_and_b32 %s, 15, %s" % (v(VT), v(VL)))
    em.i("v_lshrrev_b32 %s, 4, %s" % (v(VT + 1), v(VL)))
    if TCH:
        wst = 64 * 3072
        em.i("s_and_b32 %s, %s, 1" % (s(S_T2), s(S_CG)))
        em.i("s_lshl_b32 %s, %s, 1" % (s(S_T3), s(S_B)))
        em.i("s_add_u32 %s, %s, %s" % (s(S_T3), s(S_T3), s(S_T2)))
        em.i("s_mul_i32 %s, %s, %d" % (s(S_T3), s(S_T3), 4 * 3072))
        em.i("s_lshr_b32 %s, %s, 1" % (s(S_T4), s(S_CG)))
        em.i("s_mul_i32 %s, %s, 768" % (s(S_T4), s(S_T4)))
        em.i("s_add_u32 %s, %s, %s" % (s(S_T3), s(S_T3), s(S_T4)))
        em.i("v_mul_u32_u24 %s, 43, %s" % (v(VT + 2), v(VL)))
        em.i("v_lshrrev_b32 %s, 8, %s" % (v(VT + 2), v(VT + 2)))
        em.i("v_mul_u32_u24 %s, 0x900, %s" % (v(VT + 2), v(VT + 2)))
        em.i("v_lshl_add_u32 %s, %s, 7, %s" % (v(VT + 2), v(VL), v(VT + 2)))
        em.i("v_add_u32 %s, %s, %s" % (v(VT + 2), s(S_T3), v(VT + 2)))
        em.i("v_mov_b32 %s, 0x%x" % (v(VT + 4), BIGOFF))
        em.i("v_cmp_gt_u32 vcc, 24, %s" % v(VL))
        em.i("v_cndmask_b32 %s, %s, %s, vcc" % (v(VTW1), v(VT + 4), v(VT + 2)))
        em.i("s_lshl_b32 %s, %s, 7" % (s(S_T2), s(S_T2)))
        em.i("s_add_u32 %s, %s, %s" % (s(S_T2), s(S_T2), s(S_T0)))
        em.i("s_mul_i32 %s, %s, 0x500" % (s(S_T2), s(S_T2)))
        em.i("v_mul_u32_u24 %s, 0xa00, %s" % (v(VT + 2), v(VL)))
        em.i("v_add_u32 %s, %s, %s" % (v(VTX1), s(S_T2), v(VT + 2)))
        em.i("s_cmp_eq_u32 %s, %d" % (s(S_WV), TWV[0]))
        em.i("s_cselect_b32 %s, 0x%x, 0x%x" % (s(S_TW), wst, BIGOFF)) if 0 else None
        em.i("s_mov_b32 %s, 0x%x" % (s(S_TX), BIGOFF))
        em.i("s_cselect_b32 %s, 0x%x, %s" % (s(S_TW), wst, s(S_TX)))
        em.i("s_cselect_b32 %s, 0x80, %s" % (s(S_TX), s(S_TX)))
    em.i("s_and_b32 %s, %s, 1" % (s(S_T2), s(S_WV)))
    em.i("s_mul_i32 %s, %s, 192" % (s(S_T3), s(S_T2)))
    em.i("s_mul_i32 %s, %s, 384" % (s(S_T4), s(S_CG)))
    em.i("s_add_u32 %s, %s, %s" % (s(S_T3), s(S_T3), s(S_T4)))
    em.i("v_lshlrev_b32 %s, 3, %s" % (v(VT + 4), v(VT + 1)))

    dma = []
    for n in range(4):
        dma.append(("s_add_u32 m0, %s, 0x%x" % (s(S_C1), 1024 * n),
                    "buffer_load_dwordx4 %s, %s, %s offen lds" % (v(VXD + n), s(SRD_X, 4), s(S_XOFF))))
    for n in range(6):
        dma.append(("s_add_u32 m0, %s, 0x%x" % (s(S_C1 + 1), H_XSZ + 1024 * n),
                    "buffer_load_dwordx4 %s, %s, %s offen lds" % (v(VWD + n), s(SRD_W, 4), s(S_WOFF))))
    adv = advance_dma(H_SLOT, 64 * 3072) + [
        "s_add_u32 %s, %s, %s" % (s(S_C1), s(S_DM), s(S_WOFF2)),
        "s_add_u32 %s, %s, %s" % (s(S_C1 + 1), s(S_DM), s(S_EX))]
    em.i("s_lshl_b32 %s, %s, 12" % (s(S_WOFF2), s(S_WV)))
    em.i("s_mul_i32 %s, %s, 6144" % (s(S_EX), s(S_WV)))
    em.i("s_mov_b32 %s, %s" % (s(S_C1), s(S_WOFF2)))
    em.i("s_mov_b32 %s, %s" % (s(S_C1 + 1), s(S_EX)))
    rot_init(em, 1, 64 * 3072)
    em.i("s_mov_b32 %s, 0" % s(S_DM))
    em.i("s_mov_b32 %s, 0" % s(S_STG))
    em.i("s_mov_b32 %s, 0" % s(S_RD))
    em.i("s_waitcnt lgkmcnt(0)")
    stamp_put(em, VS, 0)
    stamp_put(em, VS, 1)
    stamp_get(em, 0)
    srd(em, SRD_X, 4, X_BYTES)
    srd(em, SRD_W, 12, W1_BYTES)
    if TCH:
        em.i("buffer_load_dword %s, %s, %s, %s offen" % (v(VTDST), v(VTX1), s(SRD_X, 4), s(S_TX)))
        em.i("buffer_load_dword %s, %s, %s, %s offen" % (v(VTDST), v(VTW1), s(SRD_W, 4), s(S_TW)))
        em.i("s_mov_b32 %s, 0x%x" % (s(S_TX), BIGOFF))
        em.i("s_cmp_eq_u32 %s, %d" % (s(S_WV), TWV[1]))
        em.i("s_cselect_b32 %s, 0x%x, %s" % (s(S_TW), 2 * 64 * 3072, s(S_TX)))
        em.i("s_cselect_b32 %s, 0x100, %s" % (s(S_TX), s(S_TX)))
        em.i("s_cmp_eq_u32 %s, %d" % (s(S_WV), TWV[2]))
        em.i("s_cselect_b32 %s, 0x%x, %s" % (s(S_TW), 3 * 64 * 3072, s(S_TW)))
        em.i("s_cselect_b32 %s, 0x180, %s" % (s(S_TX), s(S_TX)))
    srd(em, SRD_T2, 14, 3072)
    for u in range(6):
        em.i("buffer_load_dwordx2 %s, %s, %s, %s offen offset:%d" % (v(BIAS + 2 * u, 2), v(VT + 4), s(SRD_T2, 4), s(S_T3), 32 * u))
    if SIDE:
        srd(em, SRD_T, 18, 1280)
        em.i("v_lshlrev_b32 %s, 4, %s" % (v(VGW), v(VT)))
        for n in range(5):
            em.i("buffer_load_dwordx4 %s, %s, %s, 0 offen offset:%d" % (v(GX + 20 + 4 * n, 4), v(VGW), s(SRD_T, 4), 256 * n))
    for m, l in dma:
        em.i(m)
        em.i(l)
    for x in adv:
        em.i(x)
    for m, l in dma[:5]:
        em.i(m)
        em.i(l)
    if PF & 6:
        em.i("s_and_b32 s94, %s, 1" % s(S_CG))
        em.i("s_lshl1_add_u32 s94, %s, s94" % s(S_B))
        em.i("s_lshl2_add_u32 s94, s94, %s" % s(S_WV))
    if PF & 4 and SIDE:
        emit_pf(em, code_pf("L_h_tail", "L_k1_end", 94, 2))
    srd(em, SRD_WS, 20, WS_SIZE)
    srd(em, SRD_T2, 18, 1280)
    em.i("v_lshrrev_b32 %s, 1, %s" % (v(VT + 2), v(VT)))
    em.i("v_xor_b32 %s, %s, %s" % (v(VT + 2), v(VT + 2), v(VT + 1)))
    em.i("v_lshlrev_b32 %s, 4, %s" % (v(VT + 2), v(VT + 2)))
    em.i("v_lshl_add_u32 %s, %s, 7, %s" % (v(VT + 2), v(VT), v(VT + 2)))
    em.i("s_lshl_b32 %s, %s, 13" % (s(S_T1), s(S_T5)))
    em.i("v_add_u32 %s, %s, %s" % (v(VXA0), s(S_T1), v(VT + 2)))
    em.i("v_xor_b32 %s, 64, %s" % (v(VXA1), v(VXA0)))
    em.i("v_bfe_u32 %s, %s, 2, 2" % (v(VT + 2), v(VL)))
    em.i("v_lshl_add_u32 %s, %s, 3, %s" % (v(VT + 3), v(VT + 1), v(VT + 2)))
    em.i("v_mul_u32_u24 %s, 0x180, %s" % (v(VT + 3), v(VT + 3)))
    em.i("v_and_b32 %s, 3, %s" % (v(VT + 4), v(VL)))
    em.i("v_lshl_add_u32 %s, %s, 3, %s" % (v(VT + 3), v(VT + 4), v(VT + 3)))
    em.i("v_lshrrev_b32 %s, 1, %s" % (v(VT + 2), v(VT + 2)))
    em.i("v_and_b32 %s, 1, %s" % (v(VT + 4), v(VT + 1)))
    em.i("v_lshl_or_b32 %s, %s, 1, %s" % (v(VT + 2), v(VT + 4), v(VT + 2)))
    em.i("s_mul_i32 %s, %s, 6" % (s(S_T2), s(S_T2)))
    for u in range(4):
        em.i("s_add_u32 %s, %s, %d" % (s(S_T3), s(S_T2), u))
        em.i("v_xor_b32 %s, %s, %s" % (v(VT + 4), s(S_T3), v(VT + 2)))
        em.i("v_lshl_add_u32 %s, %s, 5, %s" % (v(VWA + u), v(VT + 4), v(VT + 3)))
    em.i("v_lshlrev_b32 %s, 4, %s" % (v(VGW), v(VT)))
    em.i("s_lshl_b32 %s, %s, 5" % (s(S_T1), s(S_CG)))
    em.i("s_lshl_b32 %s, %s, 3" % (s(S_T2), s(S_WV)))
    em.i("s_add_u32 %s, %s, %s" % (s(S_T1), s(S_T1), s(S_T2)))
    em.i("s_add_u32 %s, %s, %s" % (s(S_T1), s(S_T1), s(S_T0)))
    em.i("s_mul_i32 %s, %s, 0x500" % (s(S_T1), s(S_T1)))
    em.i("v_mul_u32_u24 %s, 0xa00, %s" % (v(VT + 3), v(VT + 1)))
    em.i("v_add3_u32 %s, %s, %s, %s" % (v(VGX), v(VT + 3), v(VGW), s(S_T1)))
    if AFF & 2:
        em.i("s_lshl_b32 %s, %s, 6" % (s(S_UNIT), s(S_WV)))
        em.i("s_lshl_b32 %s, %s, 3" % (s(S_T0), s(S_B)))
        em.i("s_add_u32 %s, %s, %s" % (s(S_UNIT), s(S_UNIT), s(S_T0)))
        em.i("s_lshl_b32 %s, %s, 2" % (s(S_T0), s(S_P)))
        em.i("s_add_u32 %s, %s, %s" % (s(S_UNIT), s(S_UNIT), s(S_T0)))
        em.i("s_and_b32 %s, %s, 3" % (s(S_T0), s(S_CG)))
        em.i("s_add_u32 %s, %s, %s" % (s(S_UNIT), s(S_UNIT), s(S_T0)))
        em.i("s_mul_i32 %s, %s, 0xcccd" % (s(S_T0), s(S_UNIT)))
        em.i("s_lshr_b32 %s, %s, 18" % (s(S_T0), s(S_T0)))
        em.i("s_mul_i32 %s, %s, 5" % (s(S_T1), s(S_T0)))
        em.i("s_sub_u32 %s, %s, %s" % (s(S_T2), s(S_UNIT), s(S_T1)))
        em.i("s_lshr_b32 %s, %s, 2" % (s(S_T3), s(S_CG)))
        em.i("s_mul_i32 %s, %s, 3" % (s(S_T1), s(S_T3)))
        em.i("s_and_b32 %s, %s, 1" % (s(S_T4), s(S_T2)))
        em.i("s_add_u32 %s, %s, %s" % (s(S_T1), s(S_T1), s(S_T4)))
        em.i("s_lshr_b32 %s, %s, 1" % (s(S_T4), s(S_T2)))
        em.i("s_cmp_eq_u32 %s, 4" % s(S_T2))
        em.i("s_cselect_b32 %s, 2, %s" % (s(S_T1), s(S_T1)))
        em.i("s_cselect_b32 %s, %s, %s" % (s(S_T4), s(S_T3), s(S_T4)))
        em.i("s_lshl_b32 %s, %s, 1" % (s(S_T0), s(S_T0)))
        em.i("s_add_u32 %s, %s, %s" % (s(S_T0), s(S_T0), s(S_T4)))
    else:
        em.i("s_lshl_b32 %s, %s, 3" % (s(S_UNIT), s(S_P)))
        em.i("s_add_u32 %s, %s, %s" % (s(S_UNIT), s(S_UNIT), s(S_B)))
        em.i("s_lshl_b32 %s, %s, 3" % (s(S_UNIT), s(S_UNIT)))
        em.i("s_add_u32 %s, %s, %s" % (s(S_UNIT), s(S_UNIT), s(S_CG)))
        em.i("s_lshl_b32 %s, %s, 2" % (s(S_UNIT), s(S_UNIT)))
        em.i("s_add_u32 %s, %s, %s" % (s(S_UNIT), s(S_UNIT), s(S_WV)))
        em.i("s_mul_i32 %s, %s, 0xcccd" % (s(S_T0), s(S_UNIT)))
        em.i("s_lshr_b32 %s, %s, 18" % (s(S_T0), s(S_T0)))
        em.i("s_mul_i32 %s, %s, 5" % (s(S_T1), s(S_T0)))
        em.i("s_sub_u32 %s, %s, %s" % (s(S_T1), s(S_UNIT), s(S_T1)))
    em.i("s_lshl_b32 %s, %s, 5" % (s(S_T2), s(S_T0)))
    em.i("s_sub_u32 %s, %s, 640" % (s(S_T2), s(S_T2)))
    em.i("s_mov_b32 %s, 16" % s(S_T3))
    em.i("s_mov_b32 %s, 4" % s(S_T4))
    em.i("s_mul_i32 %s, %s, 160" % (s(S_C0), s(S_T0)))
    em.i("s_sub_u32 %s, %s, %d" % (s(S_C0), s(S_C0), 2560 - 16))
    em.i("s_mov_b32 %s, 0x%x" % (s(SRD_T + 2), W2_BYTES))
    em.i("s_mov_b32 %s, 0x20000" % s(SRD_T + 3))
    em.i("s_cmp_lt_u32 %s, 20" % s(S_T0))
    em.i("s_cselect_b32 %s, %s, %s" % (s(S_T2), s(S_C0), s(S_T2)))
    em.i("s_cselect_b32 %s, 80, %s" % (s(S_T3), s(S_T3)))
    em.i("s_cselect_b32 %s, 20, %s" % (s(S_T4), s(S_T4)))
    em.i("s_cselect_b32 %s, %s, %s" % (s(SRD_T), s(8), s(16)))
    em.i("s_cselect_b32 %s, %s, %s" % (s(SRD_T + 1), s(9), s(17)))
    em.i("s_cselect_b32 %s, 0x%x, %s" % (s(SRD_T + 2), WO_BYTES, s(SRD_T + 2)))
    em.i("s_mul_i32 %s, %s, 40" % (s(S_C0), s(S_T0)))
    em.i("s_cmp_lt_u32 %s, 16" % s(S_T0))
    em.i("s_cselect_b32 %s, %s, %s" % (s(S_T2), s(S_C0), s(S_T2)))
    em.i("s_cselect_b32 %s, 20, %s" % (s(S_T3), s(S_T3)))
    em.i("s_cselect_b32 %s, 4, %s" % (s(S_T4), s(S_T4)))
    em.i("s_mul_i32 %s, %s, 0x500" % (s(S_T4), s(S_T4)))
    em.i("v_mad_u32_u24 %s, %s, %s, %s" % (v(VRL), v(VT + 1), s(S_T4), v(VGW)))
    em.i("s_mul_i32 %s, %s, 0x500" % (s(S_T2), s(S_T2)))
    em.i("s_lshl_b32 %s, %s, 8" % (s(S_C0), s(S_T1)))
    em.i("s_add_u32 %s, %s, %s" % (s(S_R0), s(S_T2), s(S_C0)))
    em.i("s_mul_i32 %s, %s, 0x500" % (s(S_T3), s(S_T3)))
    em.i("s_add_u32 %s, %s, %s" % (s(S_R1), s(S_T3), s(S_R0)))
    em.i("s_mul_i32 %s, %s, 40" % (s(S_T0), s(S_T0)))
    em.i("s_lshl_b32 %s, %s, 3" % (s(S_T1), s(S_T1)))
    em.i("s_add_u32 %s, %s, %s" % (s(S_T0), s(S_T0), s(S_T1)))
    em.i("s_lshl_b32 %s, %s, 10" % (s(S_T0), s(S_T0)))
    em.i("s_add_u32 %s, %s, 0x%x" % (s(S_T0), s(S_T0), WF_OFF))
    em.i("s_cmp_ge_u32 %s, %d" % (s(S_UNIT), 170 if AFF & 2 else 340))
    em.i("s_cselect_b32 %s, 0x%x, %s" % (s(S_T0), BIGOFF, s(S_T0)))
    em.i("s_cselect_b32 %s, 0x%x, %s" % (s(S_R0), BIGOFF, s(S_R0)))
    em.i("s_cselect_b32 %s, 0x%x, %s" % (s(S_R1), BIGOFF, s(S_R1)))
    em.i("v_lshrrev_b32 %s, 1, %s" % (v(VT + 5), v(VT)))
    em.i("v_lshlrev_b32 %s, 10, %s" % (v(VT + 5), v(VT + 5)))
    em.i("v_and_b32 %s, 1, %s" % (v(VT + 6), v(VT)))
    em.i("v_lshl_add_u32 %s, %s, 7, %s" % (v(VT + 5), v(VT + 6), v(VT + 5)))
    em.i("v_lshl_add_u32 %s, %s, 8, %s" % (v(VT + 5), v(VT + 1), v(VT + 5)))
    VWL, VRA, VWT = 232, 233, 237
    if SIDE:
        em.i("s_lshl_b32 %s, %s, 13" % (s(S_T1), s(S_WV)))
        em.i("s_add_u32 %s, %s, 0x%x" % (s(S_T1), s(S_T1), H_SLOT))
        em.i("v_and_b32 %s, 7, %s" % (v(VT + 6), v(VL)))
        em.i("v_lshl_add_u32 %s, %s, 4, %s" % (v(VT + 5), v(VT + 6), v(VT + 5)))
        em.i("v_add_u32 %s, %s, %s" % (v(VWL), s(S_T1), v(VT + 5)))
        em.i("v_lshrrev_b32 %s, 3, %s" % (v(VT + 5), v(VL)))
        em.i("v_and_b32 %s, 1, %s" % (v(VRA), v(VT + 5)))
        em.i("v_xor_b32 %s, %s, %s" % (v(VT + 6), v(VT + 6), v(VRA)))
        em.i("v_lshlrev_b32 %s, 4, %s" % (v(VT + 6), v(VT + 6)))
        em.i("v_lshl_add_u32 %s, %s, 7, %s" % (v(VT + 6), v(VT + 5), v(VT + 6)))
        em.i("v_add_u32 %s, %s, %s" % (v(VRA), s(S_T1), v(VT + 6)))
        for q in range(1, 4):
            em.i("v_xor_b32 %s, 0x%x, %s" % (v(VRA + q), q << 5, v(VRA)))
        em.i("v_lshlrev_b32 %s, 4, %s" % (v(VT + 5), v(VL)))
    em.i("v_add_u32 %s, %s, %s" % (v(VRS), s(S_T0), v(VT + 5)))
    em.i("s_waitcnt vmcnt(15)")
    F = []
    for t in range(4):
        for u in range(6):
            F.append("v_lshlrev_b32 %s, 16, %s" % (v(acc(t, u)), v(BIAS + 2 * u)))
            F.append("v_and_b32 %s, 0xffff0000, %s" % (v(acc(t, u) + 1), v(BIAS + 2 * u)))
            F.append("v_lshlrev_b32 %s, 16, %s" % (v(acc(t, u) + 2), v(BIAS + 2 * u + 1)))
            F.append("v_and_b32 %s, 0xffff0000, %s" % (v(acc(t, u) + 3), v(BIAS + 2 * u + 1)))
    for n, (m, l) in enumerate(dma[5:]):
        em.i(m)
        em.i(l)
        for x in F[20 * n:20 * (n + 1)]:
            em.i(x)
    for x in adv:
        em.i(x)
    if TCH:
        em.i("buffer_load_dword %s, %s, %s, %s offen" % (v(VTDST), v(VTX1), s(SRD_X, 4), s(S_TX)))
        em.i("buffer_load_dword %s, %s, %s, %s offen" % (v(VTDST), v(VTW1), s(SRD_W, 4), s(S_TW)))
        em.i("s_mov_b32 %s, 0x%x" % (s(S_TX), BIGOFF))
        em.i("s_cmp_eq_u32 %s, %d" % (s(S_WV), TWV[3]))
        em.i("s_cselect_b32 %s, 0x%x, %s" % (s(S_TW), 4 * 64 * 3072, s(S_TX)))
        em.i("s_cselect_b32 %s, 0x200, %s" % (s(S_TX), s(S_TX)))
    if not EARLY:
        for m, l in dma[:5]:
            em.i(m)
            em.i(l)

    def reads(st, ks):
        xa = VXA1 if ks else VXA0
        R = []
        for t in range(4):
            R.append("ds_read_b128 %s, %s offset:%d" % (a(FR(st, t), 4), v(xa), t * 2048))
        for u in range(6):
            for h in range(2):
                R.append("ds_read_b64_tr_b16 %s, %s offset:%d" % (
                    a(FR(st, 4 + u) + 2 * h, 2), v(VWA + (u & 3)), H_XSZ + (32 * ks + 4 * h) * 384 + 128 * (u >> 2)))
        return R

    def mfmas(st):
        L = []
        for t in range(4):
            for u in range(6):
                L.append(mfma(v(acc(t, u), 4), a(FR(st, 4 + u), 4), a(FR(st, t), 4)))
        return L

    stamp_get(em, 3)
    em.i("s_waitcnt vmcnt(%d)" % ((10 if EARLY else 15) + 2 * TCH))
    stamp_get(em, 1)
    em.i("s_barrier")
    stamp_get(em, 2)
    stamp_put(em, VS, 0, True)
    stamp_put(em, VS, 3)
    for r in reads(0, 0):
        em.i(r)
    if EARLY:
        for m, l in dma[:5]:
            em.i(m)
            em.i(l)
    SW0 = int(os.environ.get("SW0", "2"))
    SL = []
    for n in range(5):
        SL.append("buffer_load_dwordx4 %s, %s, %s, 0 offen offset:%d" % (v(GX + 4 * n, 4), v(VGX), s(SRD_X, 4), 256 * n))
        SL.append("buffer_load_dwordx4 %s, %s, %s, 0 offen offset:%d" % (v(GX + 20 + 4 * n, 4), v(VGW), s(SRD_T2, 4), 256 * n))
    for j in range(8):
        SL.append("buffer_load_dwordx4 %s, %s, %s, %s offen offset:%d" % (
            v(RIN + 4 * j, 4), v(VRL), s(SRD_T, 4), s(S_R0 if j < 4 else S_R1), 1280 * (j & 3)))
    P = []
    P.append("s_lshl_b32 %s, %s, 6" % (s(S_T0), s(S_P)))
    P.append("s_lshl_b32 %s, %s, 3" % (s(S_T1), s(S_B)))
    P.append("s_add_u32 %s, %s, %s" % (s(S_T0), s(S_T0), s(S_T1)))
    P.append("s_add_u32 %s, %s, %s" % (s(S_T3), s(S_T0), s(S_CG)))
    P.append("s_lshl_b32 %s, %s, 2" % (s(S_T3), s(S_T3)))
    P.append("s_add_u32 %s, %s, %s" % (s(S_T3), s(S_T3), s(S_WV)))
    P.append("s_lshl_b32 %s, %s, 4" % (s(S_T3), s(S_T3)))
    P.append("s_add_u32 %s, %s, 0x%x" % (s(S_T3), s(S_T3), G_OFF))
    P.append("s_lshl_b32 %s, %s, 2" % (s(S_T1), s(S_T5)))
    P.append("s_add_u32 %s, %s, %s" % (s(S_T0), s(S_T0), s(S_T1)))
    P.append("s_mul_i32 %s, %s, 68" % (s(S_T0), s(S_T0)))
    P.append("s_mul_i32 %s, %s, 6" % (s(S_T1), s(S_CG)))
    P.append("s_add_u32 %s, %s, %s" % (s(S_T0), s(S_T0), s(S_T1)))
    P.append("s_and_b32 %s, %s, 1" % (s(S_T1), s(S_WV)))
    P.append("s_mul_i32 %s, %s, 3" % (s(S_T1), s(S_T1)))
    P.append("s_add_u32 %s, %s, %s" % (s(S_T0), s(S_T0), s(S_T1)))
    P.append("s_add_u32 %s, %s, 20" % (s(S_T0), s(S_T0)))
    P.append("s_lshl_b32 %s, %s, 10" % (s(S_T0), s(S_T0)))
    P.append("v_lshlrev_b32 %s, 4, %s" % (v(VT), v(VL)))
    SC = []
    SC.append("v_dot2_f32_bf16 %s, %s, %s, 0" % (v(VG), v(GX), v(GX + 20)))
    for n in range(1, 20):
        SC.append("v_dot2_f32_bf16 %s, %s, %s, %s" % (v(VG), v(GX + n), v(GX + 20 + n), v(VG)))
    for rot in (8, 4, 2, 1):
        SC.append("v_add_f32_dpp %s, %s, %s row_ror:%d row_mask:0xf bank_mask:0xf" % (v(VT + 3), v(VG), v(VG), rot))
        SC.append("v_mov_b32 %s, %s" % (v(VG), v(VT + 3)))
    SC.append("v_cvt_pk_bf16_f32 %s, %s, %s" % (v(VG), v(VG), v(VG)))
    SC.append("v_lshlrev_b32 %s, 16, %s" % (v(VG), v(VG)))
    SC.append("v_mul_f32 %s, 0x%x, %s" % (v(VG), f2u(-math.log2(math.e)), v(VG)))
    SC.append("v_exp_f32 %s, %s" % (v(VG), v(VG)))
    SC.append("v_lshrrev_b32 %s, 4, %s" % (v(VT + 3), v(VL)))
    SC.append("v_add_f32 %s, 1.0, %s" % (v(VG), v(VG)))
    SC.append("v_rcp_f32 %s, %s" % (v(VG), v(VG)))
    SC.append("v_lshlrev_b32 %s, 2, %s" % (v(VT + 3), v(VT + 3)))
    SC.append("v_cvt_pk_bf16_f32 %s, %s, %s" % (v(VG), v(VG), v(VG)))
    SC.append("v_lshlrev_b32 %s, 16, %s" % (v(VG), v(VG)))
    SC.append("buffer_store_dword %s, %s, %s, %s offen%s" % (v(VG), v(VT + 3), s(SRD_WS, 4), s(S_T3), WT))
    SC.append("s_mov_b32 %s, 0x05040100" % s(S_R0))
    SC.append("s_mov_b32 %s, 0x07060302" % s(S_R1))
    for d in range(4):
        for e in range(2):
            for jj in range(4):
                SC.append("v_perm_b32 %s, %s, %s, %s" % (
                    v(ROUT + (2 * d + e) * 4 + jj), v(RIN + (2 * jj + 1) * 4 + d), v(RIN + (2 * jj) * 4 + d), s(S_R0 + e)))
            n = 2 * d + e
            SC.append("buffer_store_dwordx4 %s, %s, %s, 0 offen offset:%d%s" % (v(ROUT + 4 * n, 4), v(VRS), s(SRD_WS, 4), 16 * n, WT + WTS))

    rdadv = [(16, x) for x in advance_rd(H_SLOT)]
    rdadv.append((17, "v_add_u32 %s, %s, %s" % (v(VXA0), s(S_DELTA), v(VXA0))))
    rdadv.append((17, "v_add_u32 %s, %s, %s" % (v(VXA1), s(S_DELTA), v(VXA1))))
    for u in range(4):
        rdadv.append((22 + u // 2, "v_add_u32 %s, %s, %s" % (v(VWA + u), s(S_DELTA), v(VWA + u))))

    def body(dA, exA, vwait, rB, dB, exB, bar=True):
        em.i("s_waitcnt lgkmcnt(0)")
        stamp_get(em, 0)
        stamp_put(em, VS, 1)
        stamp_put(em, VS, 2)
        phase(em, mfmas(0), reads(1, 1), dA, extra=exA, dma_start=1, dma_step=4)
        stamp_get(em, 3)
        if vwait is None:
            em.i("s_waitcnt lgkmcnt(0)")
        else:
            em.i("s_waitcnt vmcnt(%d) lgkmcnt(0)" % vwait)
        stamp_get(em, 1)
        if bar:
            em.i("s_barrier")
        stamp_get(em, 2)
        stamp_put(em, VS, 0)
        stamp_put(em, VS, 3)
        phase(em, mfmas(1), rB, dB, extra=exB, dma_start=1, dma_step=4)

    em.i("s_mov_b32 %s, %d" % (s(S_CNT), 7 if SIDE else 10))
    em.label("L_h_loop")
    top = em.mark()
    ex = [(18 + k // 3, x) for k, x in enumerate(adv)] + rdadv
    tq = []
    if TCH:
        tq = [(0, "buffer_load_dword %s, %s, %s, %s offen" % (v(VTDST), v(VTX1), s(SRD_X, 4), s(S_TX))),
              (0, "buffer_load_dword %s, %s, %s, %s offen" % (v(VTDST), v(VTW1), s(SRD_W, 4), s(S_TW))),
              (2, "s_add_u32 %s, %s, 0x%x" % (s(S_TW), s(S_TW), 64 * 3072)),
              (2, "s_add_u32 %s, %s, 0x80" % (s(S_TX), s(S_TX))),
              (3, "s_cmp_ge_u32 %s, 0x500" % s(S_TX)),
              (3, "s_cselect_b32 %s, 0x%x, %s" % (s(S_TX), BIGOFF, s(S_TX)))]
    body(dma[5:], ex, 10 + 2 * TCH, reads(0, 0), dma[:5], tq + [(20, "s_sub_u32 %s, %s, 1" % (s(S_CNT), s(S_CNT))),
                                                           (21, "s_cmp_lg_u32 %s, 0" % s(S_CNT))])
    em.i("s_cbranch_scc1 L_h_loop")
    em.check_backedge(top)
    if SIDE:
        assert not TCH
        em.label("L_h_tail")
        GLd, RLd = SL[0:10:2], SL[10:]
        ig = SC.index("s_mov_b32 %s, 0x05040100" % s(S_R0))
        GC, PC = SC[:ig], SC[ig:]
        G2 = []
        for n in range(10):
            for h, acc_ in ((0, VG), (1, VWT)):
                G2.append("v_dot2_f32_bf16 %s, %s, %s, %s" % (v(acc_), v(GX + 2 * n + h), v(GX + 20 + 2 * n + h), v(acc_) if n else "0"))
        GC = ["v_add_f32 %s, %s, %s" % (v(VG), v(VG), v(VWT))] + GC[20:]
        gp = [2, 3, 4, 6, 7]
        body(dma[5:], rdadv + list(zip(gp, GLd)) + [(18 + k, x) for k, x in enumerate(RLd[:6])], 21,
             reads(0, 0), [], [(k, x) for k, x in enumerate(RLd[6:])] + [(12 + k // 2, x) for k, x in enumerate(P)])
        body([], rdadv + [(1, "s_waitcnt vmcnt(11)")] + [(2 + k, x) for k, x in enumerate(G2)], 8,
             reads(0, 0), [], [(1 + k, x) for k, x in enumerate(GC)])
        W1 = []
        n = 0
        for x in PC:
            if x.startswith("buffer_store"):
                if n:
                    W1.append("v_xor_b32 %s, 0x%x, %s" % (v(VWT + (n & 1)), n << 4, v(VWL)))
                W1.append("ds_write_b128 %s, %s" % (v(VWT + (n & 1)) if n else v(VWL), v(ROUT + 4 * n, 4)))
                n += 1
            else:
                W1.append(x)
        exA = [(SW0 - 1, "s_waitcnt vmcnt(1)")] + [(SW0 + k * (24 - SW0) // len(W1), x) for k, x in enumerate(W1)]
        exB = [(j, "ds_read_b128 %s, %s offset:%d" % (v(RIN + 4 * j, 4), v(VRA + (j & 3)), 1024 * j)) for j in range(8)]
        exB.append((8, "s_movk_i32 %s, 0x1000" % s(S_T4)))
        for j in range(8):
            exB.append((10 + j, "s_waitcnt lgkmcnt(%d)" % (7 - j)))
            exB.append((10 + j, "buffer_store_dwordx4 %s, %s, %s, %s offen offset:%d%s" % (
                v(RIN + 4 * j, 4), v(VRS), s(SRD_WS, 4), s(S_T4) if j >= 4 else "0", 1024 * (j & 3), WT + WTS)))
        body([], exA, None, [], [], exB, bar=False)
    stamp_get(em, 0)
    stamp_put(em, VS, 1, True)
    stamp_put(em, VS, 2)
    stamp_put(em, VS, 0)
    c0 = -2.0 * math.log2(math.e) * math.sqrt(2.0 / math.pi)
    c1 = c0 * 0.044715
    em.i("s_mov_b32 %s, 0x%x" % (s(S_C0), f2u(c0)))
    em.i("s_mov_b32 %s, 0x%x" % (s(S_C0 + 1), f2u(c0)))
    em.i("v_mov_b32 %s, 0x%x" % (v(VT + 1), f2u(c1)))
    em.i("v_mov_b32 %s, 0x%x" % (v(VT + 2), f2u(c1)))
    C1 = VT + 1
    assert C1 % 2 == 0
    def gelu_pair(x, tmp, dst):
        X = v(x, 2)
        T = v(tmp, 2)
        return [
            "v_pk_mul_f32 %s, %s, %s" % (T, X, X),
            "v_pk_fma_f32 %s, %s, %s, %s" % (T, T, v(C1, 2), s(S_C0, 2)),
            "v_pk_mul_f32 %s, %s, %s" % (T, T, X),
            "v_exp_f32 %s, %s" % (v(tmp), v(tmp)),
            "v_exp_f32 %s, %s" % (v(tmp + 1), v(tmp + 1)),
            "v_pk_add_f32 %s, %s, 1.0 op_sel_hi:[1,0]" % (T, T),
            "v_rcp_f32 %s, %s" % (v(tmp), v(tmp)),
            "v_rcp_f32 %s, %s" % (v(tmp + 1), v(tmp + 1)),
            "v_pk_mul_f32 %s, %s, %s" % (T, T, X),
            "v_cvt_pk_bf16_f32 %s, %s, %s" % (v(dst), v(tmp), v(tmp + 1)),
        ]

    if PF & 2:
        emit_pf(em, code_pf("k2_kernel", "L_k2_end", 94, 2))
    grp = 0
    SIDE0 = 5
    NSC = 4
    per = (len(SC) + NSC - 1) // NSC
    for t in range(4):
        for uu in range(3):
            base = acc(t, 2 * uu)
            outr = TMP + 8 + 4 * (grp % 4)
            ls = [gelu_pair(base + 2 * k, TMP + 2 * k + 24 * (grp & 1), outr + k) for k in range(4)]
            if grp == 0 and not SIDE:
                ls += [SL[:9], SL[9:], P[:10], P[10:]]
                ls = ls[:4] + [SL[:9], SL[9:]] + [P[0::2], P[1::2]]
            if grp == SIDE0 and not SIDE:
                em.i("s_waitcnt vmcnt(%d)" % SIDE0)
            if SIDE0 <= grp < SIDE0 + NSC and not SIDE:
                ch = SC[per * (grp - SIDE0):per * (grp - SIDE0 + 1)]
                ls += [ch[0::2], ch[1::2]]
            for x in interleave(ls):
                em.i(x)
            em.i("s_add_u32 %s, %s, 0x%x" % (s(S_T1 + (grp & 1)), s(S_T0), t * TILE_B + 1024 * uu))
            em.i("buffer_store_dwordx4 %s, %s, %s, %s offen%s" % (v(outr, 4), v(VT), s(SRD_WS, 4), s(S_T1 + (grp & 1)), WT + WTH))
            grp += 1
    stamp_end(em, VS, SRD_WS, S_WV, 0)
    em.i("s_endpgm")


def gen_k1(em):
    em.raw(".globl k1_kernel")
    em.raw(".p2align 8")
    em.raw(".type k1_kernel,@function")
    em.label("k1_kernel")
    em.fence()
    em.i("s_cmp_ge_u32 s2, 256")
    em.i("s_cbranch_scc1 L_k1_end")
    stamp_get(em, 0, True)
    stamp_get(em, 1)
    if PROF:
        em.i("s_mov_b32 %s, 0" % s(S_TI))
    em.i("s_load_dwordx4 s[4:7], s[0:1], 0")
    em.i("s_load_dwordx2 s[8:9], s[0:1], 16")
    em.i("s_load_dwordx4 s[12:15], s[0:1], 32")
    em.i("s_load_dwordx2 s[16:17], s[0:1], 48")
    em.i("s_load_dwordx2 s[18:19], s[0:1], 64")
    em.i("s_load_dwordx2 s[20:21], s[0:1], 88")
    em.i("v_lshrrev_b32 v1, 6, v0")
    em.i("v_and_b32 v0, 63, v0")
    em.i("v_readfirstlane_b32 %s, v1" % s(S_WV))
    if PF & 8:
        em.i("s_lshr_b32 s94, s2, 3")
        em.i("s_lshl2_add_u32 s94, s94, %s" % s(S_WV))
        emit_pf(em, code_pf("L_q0", "L_h_tail" if PF & 16 else "L_k1_end", 94, PFN))
    em.i("s_and_b32 %s, s2, 1" % s(S_P))
    em.i("s_lshr_b32 %s, s2, 5" % s(S_B))
    em.i("s_bfe_u32 %s, s2, 0x20001" % s(S_CG))
    em.i("s_lshl_b32 %s, %s, 1" % (s(S_CG), s(S_CG)))
    em.i("s_bfe_u32 %s, s2, 0x10003" % s(S_T0))
    em.i("s_add_u32 %s, %s, %s" % (s(S_CG), s(S_CG), s(S_T0)))
    em.i("s_bitcmp1_b32 s2, 4")
    em.i("s_cbranch_scc1 L_h")
    em.i("s_cmp_eq_u32 %s, 1" % s(S_WV))
    em.i("s_cbranch_scc1 L_q1")
    em.i("s_cmp_eq_u32 %s, 2" % s(S_WV))
    em.i("s_cbranch_scc1 L_q2")
    em.i("s_cmp_eq_u32 %s, 3" % s(S_WV))
    em.i("s_cbranch_scc1 L_q3")
    gen_q(em, 0, 0)
    gen_q(em, 0, 1)
    gen_q(em, 1, 0)
    gen_q(em, 1, 1)
    gen_h(em)
    em.label("L_k1_end")
    em.i("s_endpgm")


K2_LDS = 4 * 3 * 5 * 1024


def gen_k2(em, depth=3):
    NB = depth + 1
    SW, SO, SB2 = 8, 12, 16
    S_W_, S_RB, S_C = 20, 21, 22
    S_AO, S_AH, S_WO, S_WH = 24, 25, 26, 27
    S_A, S_Wf = 28, 30
    T0, T1, T2, T3 = 32, 33, 34, 35
    S_OUT = 38
    VL, VT = 0, 1
    VA = 8
    VW, VW4 = 12, 13
    VS = 14
    GP = 16
    OP = 24
    B2 = 32
    VTA, VTS = 42, 43
    accA = lambda t, j: 44 + (t * 5 + j) * 4
    accB = lambda t, j: 124 + (t * 5 + j) * 4
    RED = 204
    VTD = 208
    VLW = 208
    VLR = 212
    VG4 = 213
    VOUT = 214
    VB2 = 215
    FR = lambda b, k: b * 36 + k * 4
    em.raw(".globl k2_kernel")
    em.raw(".p2align 8")
    em.raw(".type k2_kernel,@function")
    em.label("k2_kernel")
    em.fence()
    em.i("s_cmp_ge_u32 s2, 256")
    em.i("s_cbranch_scc1 L_k2_end")
    stamp_get(em, 0, True)
    stamp_get(em, 1)
    if PROF:
        em.i("s_mov_b32 %s, 0" % s(S_TI))
    em.i("s_load_dwordx2 s[4:5], s[0:1], 88")
    em.i("s_load_dwordx2 s[6:7], s[0:1], 72")
    em.i("s_load_dwordx2 s[36:37], s[0:1], 56")
    em.i("v_lshrrev_b32 v1, 6, v0")
    em.i("v_and_b32 v0, 63, v0")
    em.i("v_readfirstlane_b32 %s, v1" % s(S_W_))
    if AFF & 1:
        em.i("s_and_b32 %s, s2, 1" % s(S_RB))
        em.i("s_lshl_b32 %s, %s, 4" % (s(S_RB), s(S_RB)))
        em.i("s_bfe_u32 %s, s2, 0x10001" % s(T0))
        em.i("s_lshl_b32 %s, %s, 3" % (s(T0), s(T0)))
        em.i("s_add_u32 %s, %s, %s" % (s(S_RB), s(S_RB), s(T0)))
        em.i("s_lshr_b32 %s, s2, 5" % s(T0))
        em.i("s_add_u32 %s, %s, %s" % (s(S_RB), s(S_RB), s(T0)))
        em.i("s_bfe_u32 %s, s2, 0x10002" % s(S_C))
        em.i("s_lshl_b32 %s, %s, 2" % (s(S_C), s(S_C)))
        em.i("s_bfe_u32 %s, s2, 0x20003" % s(T0))
        em.i("s_add_u32 %s, %s, %s" % (s(S_C), s(S_C), s(T0)))
    else:
        em.i("s_bfe_u32 %s, s2, 0x20001" % s(S_RB))
        em.i("s_lshl_b32 %s, %s, 3" % (s(S_RB), s(S_RB)))
        em.i("s_lshr_b32 %s, s2, 5" % s(T0))
        em.i("s_add_u32 %s, %s, %s" % (s(S_RB), s(S_RB), s(T0)))
        em.i("s_and_b32 %s, s2, 1" % s(S_C))
        em.i("s_lshl_b32 %s, %s, 2" % (s(S_C), s(S_C)))
        em.i("s_bfe_u32 %s, s2, 0x20003" % s(T0))
        em.i("s_add_u32 %s, %s, %s" % (s(S_C), s(S_C), s(T0)))
    em.i("v_lshlrev_b32 %s, 4, %s" % (v(VT), v(VL)))
    em.i("s_mul_i32 %s, %s, 0x%x" % (s(T0), s(S_RB), 4 * TILE_B))
    for n in range(4):
        em.i("s_add_u32 %s, %s, %d" % (s(T1), s(S_W_), n))
        em.i("s_and_b32 %s, %s, 3" % (s(T1), s(T1)))
        em.i("s_mul_i32 %s, %s, 0x%x" % (s(T2), s(T1), TILE_B))
        em.i("s_add_u32 %s, %s, %s" % (s(T2), s(T2), s(T0)))
        em.i("v_add_u32 %s, %s, %s" % (v(VA + n), s(T2), v(VT)))
    em.i("s_mul_i32 %s, %s, 5120" % (s(T0), s(S_C)))
    em.i("s_add_u32 %s, %s, 0x%x" % (s(T0), s(T0), WF_OFF))
    em.i("v_add_u32 %s, %s, %s" % (v(VW), s(T0), v(VT)))
    em.i("v_add_u32 %s, 0x1000, %s" % (v(VW4), v(VW)))
    em.i("s_mul_i32 %s, %s, 5120" % (s(S_AO), s(S_W_)))
    em.i("s_mul_i32 %s, %s, 12288" % (s(S_AH), s(S_W_)))
    em.i("s_add_u32 %s, %s, 20480" % (s(S_AH), s(S_AH)))
    em.i("s_mul_i32 %s, %s, 40" % (s(S_WO), s(S_AO)))
    em.i("s_mul_i32 %s, %s, 40" % (s(S_WH), s(S_AH)))
    S_CA, S_EA, S_CH, S_EH = 40, 41, 42, 43
    if ROT2:
        em.i("s_lshr_b32 %s, s2, 5" % s(T0))
        em.i("s_bfe_u32 %s, s2, 0x20003" % s(T1))
        em.i("s_add_u32 %s, %s, %s" % (s(S_CA), s(T0), s(T1)))
        for _ in range(2):
            em.i("s_sub_u32 %s, %s, 5" % (s(T2), s(S_CA)))
            em.i("s_cmp_ge_u32 %s, 5" % s(S_CA))
            em.i("s_cselect_b32 %s, %s, %s" % (s(S_CA), s(T2), s(S_CA)))
        if ROT2 & 2:
            em.i("s_mov_b32 %s, 0" % s(S_CA))
        em.i("s_lshl_b32 %s, %s, 10" % (s(S_CA), s(S_CA)))
        em.i("s_add_u32 %s, %s, %s" % (s(S_CA), s(S_CA), s(S_AO)))
        em.i("s_add_u32 %s, %s, 5120" % (s(S_EA), s(S_AO)))
        em.i("s_mul_i32 %s, %s, 3" % (s(T0), s(T0)))
        em.i("s_lshr_b32 %s, %s, 1" % (s(T0), s(T0)))
        em.i("s_mul_i32 %s, %s, 3" % (s(T1), s(T1)))
        em.i("s_add_u32 %s, %s, %s" % (s(S_CH), s(T0), s(T1)))
        em.i("s_sub_u32 %s, %s, 12" % (s(T2), s(S_CH)))
        em.i("s_cmp_ge_u32 %s, 12" % s(S_CH))
        em.i("s_cselect_b32 %s, %s, %s" % (s(S_CH), s(T2), s(S_CH)))
        em.i("s_lshl_b32 %s, %s, 10" % (s(S_CH), s(S_CH)))
        em.i("s_add_u32 %s, %s, %s" % (s(S_CH), s(S_CH), s(S_AH)))
        em.i("s_add_u32 %s, %s, 12288" % (s(S_EH), s(S_AH)))

    P = []
    f = 128 // TG
    NLs, NA = 13 * f, 8 * f
    if TOUCH2:
        P.append("v_mul_u32_u24 %s, 0x%x, %s" % (v(VT + 1), {1: 0x13B2, 2: 2521}[f], v(VL)))
        P.append("v_lshrrev_b32 %s, 16, %s" % (v(VT + 1), v(VT + 1)))
        P.append("v_mul_u32_u24 %s, %d, %s" % (v(VT + 2), NLs, v(VT + 1)))
        P.append("v_sub_u32 %s, %s, %s" % (v(VT + 2), v(VL), v(VT + 2)))
        P.append("s_bfe_u32 %s, s2, 0x20003" % s(T1))
        P.append("s_lshl_b32 %s, %s, 2" % (s(T2), s(S_RB)))
        P.append("s_add_u32 %s, %s, %s" % (s(T1), s(T1), s(T2)))
        P.append("s_mul_i32 %s, %s, 0x%x" % (s(T1), s(T1), TILE_B))
        P.append("s_lshr_b32 %s, s2, 5" % s(T2))
        P.append("s_mul_i32 %s, %s, 640" % (s(T2), s(T2)))
        P.append("s_add_u32 %s, %s, %s" % (s(T2), s(T2), s(T0)))
        P.append("s_sub_u32 %s, %s, %d" % (s(T2), s(T2), NA * TG))
        P.append("v_mov_b32 %s, %s" % (v(VT + 3), s(T2)))
        P.append("v_mov_b32 %s, %s" % (v(VT + 4), s(T1)))
        P.append("v_cmp_gt_u32 vcc, %d, %s" % (NA, v(VT + 2)))
        P.append("v_cndmask_b32 %s, %s, %s, vcc" % (v(VT + 3), v(VT + 3), v(VT + 4)))
        P.append("v_mov_b32 %s, 0xa000" % v(VTS))
        P.append("v_mov_b32 %s, 0x400" % v(VT + 4))
        P.append("v_cndmask_b32 %s, %s, %s, vcc" % (v(VTS), v(VTS), v(VT + 4)))
        P.append("v_lshl_add_u32 %s, %s, %d, %s" % (v(VT + 3), v(VT + 2), {128: 7, 64: 6}[TG], v(VT + 3)))
        P.append("v_mad_u32_u24 %s, %s, %s, %s" % (v(VT + 3), v(VT + 1), v(VTS), v(VT + 3)))
        P.append("v_mov_b32 %s, 0x%x" % (v(VT + 4), BIGOFF))
        P.append("v_cmp_gt_u32 vcc, 2, %s" % v(VT + 1))
        P.append("v_cndmask_b32 %s, %s, %s, vcc" % (v(VT + 3), v(VT + 4), v(VT + 3)))
        P.append("s_mul_i32 %s, %s, 5" % (s(T1), s(S_W_)))
        P.append("s_add_u32 %s, %s, 3" % (s(T1), s(T1)))
        P.append("s_mul_i32 %s, %s, 12" % (s(T2), s(S_W_)))
        P.append("s_add_u32 %s, %s, 20" % (s(T2), s(T2)))
        P.append("v_mad_u32_u24 %s, %s, %s, %s" % (v(VT + 4), v(VTS), s(T1), v(VT + 3)))
        P.append("v_mad_u32_u24 %s, %s, %s, %s" % (v(VTA), v(VTS), s(T2), v(VT + 3)))
        P.append("v_lshlrev_b32 %s, 1, %s" % (v(VTS), v(VTS)))
    P2 = []
    P2.append("v_and_b32 %s, 15, %s" % (v(VT + 1), v(VL)))
    P2.append("v_lshlrev_b32 %s, 2, %s" % (v(VG4), v(VT + 1)))
    P2.append("v_lshrrev_b32 %s, 4, %s" % (v(VT + 3), v(VL)))
    P2.append("v_lshlrev_b32 %s, 3, %s" % (v(VB2), v(VT + 3)))
    P2.append("v_mul_u32_u24 %s, 0xa00, %s" % (v(VOUT), v(VT + 1)))
    P2.append("v_add_u32 %s, %s, %s" % (v(VOUT), v(VOUT), v(VB2)))
    GL = []
    for n in range(4):
        GL.append("s_add_u32 %s, %s, %d" % (s(T1), s(S_W_), n))
        GL.append("s_and_b32 %s, %s, 3" % (s(T1), s(T1)))
        if n:
            GL.append("s_mul_i32 %s, %s, 15360" % (s(T2), s(T1)))
            if X64:
                GL.append("v_lshl_add_u32 %s, %s, 3, %s" % (v(VLW + n), v(VL), s(T2)))
            else:
                GL.append("v_add_u32 %s, %s, %s" % (v(VLW + n), s(T2), v(VT)))
        else:
            GL.append("s_mul_i32 %s, %s, 15360" % (s(T2), s(T1)))
            if X64:
                GL.append("v_lshl_add_u32 %s, %s, 3, %s" % (v(VLR), v(VL), s(T2)))
            else:
                GL.append("v_add_u32 %s, %s, %s" % (v(VLR), s(T2), v(VT)))
        GL.append("s_lshl_b32 %s, %s, 2" % (s(T2), s(S_RB)))
        GL.append("s_add_u32 %s, %s, %s" % (s(T1), s(T1), s(T2)))
        GL.append("s_lshl_b32 %s, %s, 6" % (s(T1), s(T1)))
        GL.append("s_add_u32 %s, %s, 0x%x" % (s(T1), s(T1), G_OFF))
        GL.append("buffer_load_dword %s, %s, %s, %s offen" % (v(GP + 2 * n), v(VG4), s(SW, 4), s(T1)))
    BL = ["s_mul_i32 %s, %s, 160" % (s(T3), s(S_C))]
    for j in range(5):
        BL.append("buffer_load_dwordx2 %s, %s, %s, %s offen offset:%d" % (v(B2 + 2 * j, 2), v(VB2), s(SB2, 4), s(T3), 32 * j))
    BL.append("s_lshl_b32 %s, %s, 2" % (s(S_OUT), s(S_RB)))
    BL.append("s_add_u32 %s, %s, %s" % (s(S_OUT), s(S_OUT), s(S_W_)))
    BL.append("s_lshr_b32 %s, %s, 6" % (s(T2), s(S_OUT)))
    BL.append("s_and_b32 %s, %s, 63" % (s(S_OUT), s(S_OUT)))
    BL.append("s_lshl_b32 %s, %s, 5" % (s(S_OUT), s(S_OUT)))
    BL.append("s_add_u32 %s, %s, %s" % (s(S_OUT), s(S_OUT), s(T2)))
    BL.append("s_mul_i32 %s, %s, 0x500" % (s(S_OUT), s(S_OUT)))
    BL.append("s_add_u32 %s, %s, %s" % (s(S_OUT), s(S_OUT), s(T3)))

    for y in P2 + P:
        em.i(y)
    P, P2 = [], []
    em.i("s_waitcnt lgkmcnt(0)")
    stamp_put(em, VS, 0)
    stamp_put(em, VS, 1)
    stamp_get(em, 0)
    srd(em, SW, 4, WS_SIZE)

    seq = []

    def emit(x, tag=None):
        em.i(x)
        if x.startswith("buffer_"):
            seq.append(tag)

    def younger(tag):
        last = max(k for k, t in enumerate(seq) if t == tag)
        return len(seq) - 1 - last

    def loads(ks):
        b = ks % NB
        L = []
        if ROT2:
            cur, end, base = (S_CA, S_EA, S_AO) if ks < 5 else (S_CH, S_EH, S_AH)
            L.append("s_mov_b32 %s, %s" % (s(S_A + (ks & 1)), s(cur)))
            L.append("s_mul_i32 %s, %s, 40" % (s(S_Wf + (ks & 1)), s(cur)))
        elif ks < 5:
            L.append("s_add_u32 %s, %s, 0x%x" % (s(S_A + (ks & 1)), s(S_AO), 1024 * ks))
            L.append("s_add_u32 %s, %s, 0x%x" % (s(S_Wf + (ks & 1)), s(S_WO), 40960 * ks))
        else:
            L.append("s_add_u32 %s, %s, 0x%x" % (s(S_A + (ks & 1)), s(S_AH), 1024 * (ks - 5)))
            L.append("s_add_u32 %s, %s, 0x%x" % (s(S_Wf + (ks & 1)), s(S_WH), 40960 * (ks - 5)))
        order = [("a", 0), ("w", 0), ("a", 1), ("a", 2), ("a", 3), ("w", 1), ("w", 2), ("w", 3), ("w", 4)]
        if K2E and ks == 16:
            order = [("w", 0), ("w", 1), ("w", 2), ("w", 3), ("w", 4), ("a", 1), ("a", 2), ("a", 3), ("a", 0)]
        for kd, n in order:
            if kd == "a":
                L.append("buffer_load_dwordx4 %s, %s, %s, %s offen" % (a(FR(b, n), 4), v(VA + n), s(SW, 4), s(S_A + (ks & 1))))
            elif n < 4:
                L.append("buffer_load_dwordx4 %s, %s, %s, %s offen offset:%d" % (a(FR(b, 4 + n), 4), v(VW), s(SW, 4), s(S_Wf + (ks & 1)), 1024 * n))
            else:
                L.append("buffer_load_dwordx4 %s, %s, %s, %s offen" % (a(FR(b, 8), 4), v(VW4), s(SW, 4), s(S_Wf + (ks & 1))))
        if ROT2 and ks not in (4, 16):
            L.append("s_add_u32 %s, %s, 0x400" % (s(cur), s(cur)))
            L.append("s_cmp_eq_u32 %s, %s" % (s(cur), s(end)))
            L.append("s_cselect_b32 %s, %s, %s" % (s(cur), s(base), s(cur)))
        if K2E and ks == 16:
            assert not ROT2
            return [(x, ("L", ks)) for x in L[:-4]] + [(x, ("LA", n)) for x, n in zip(L[-4:], (1, 2, 3, 0))]
        return [(x, ("L", ks)) for x in L]

    def xw(n, j):
        if X64:
            o = (n - 1) * 10 + 2 * j
            return "ds_write2st64_b64 %s, %s, %s offset0:%d offset1:%d" % (v(VLW + n), v(accA(n, j), 2), v(accA(n, j) + 2, 2), o, o + 1)
        return "ds_write_b128 %s, %s offset:%d" % (v(VLW + n), v(accA(n, j), 4), (n - 1) * 5120 + j * 1024)

    def xr(sl, j):
        if X64:
            o = sl * 10 + 2 * j
            return "ds_read2st64_b64 %s, %s offset0:%d offset1:%d" % (v(accB(1 + sl, j), 4), v(VLR), o, o + 1)
        return "ds_read_b128 %s, %s offset:%d" % (v(accB(1 + sl, j), 4), v(VLR), sl * 5120 + j * 1024)

    NK = 17
    tsched = {}
    if TOUCH2:
        for k0 in range(3, NK, 2):
            tsched.setdefault(max(-1, k0 - depth - TL2), []).append(k0)

    def touch(k0):
        if k0 == 3:
            return [("buffer_load_dword %s, %s, %s, 0 offen" % (v(VTD), v(VT + 4), s(SW, 4)), "T")]
        L = [("buffer_load_dword %s, %s, %s, 0 offen" % (v(VTD), v(VTA), s(SW, 4)), "T")]
        if k0 + 2 < NK:
            L.append(("v_add_u32 %s, %s, %s" % (v(VTA), v(VTA), v(VTS)), None))
        return L

    l0 = loads(0)
    for k, (x, t) in enumerate(l0):
        emit(x, t)
        for y in P[4 * k:4 * k + 4]:
            emit(y)
    for y in P[4 * len(l0):]:
        emit(y)
    first_touch = tsched.get(-1, [])
    if TOUCHPOS2 == 0:
        for k0 in first_touch:
            for x, t in touch(k0):
                emit(x, t)
    d0 = min(depth, K2D0)
    for ks in range(1, d0):
        for x, t in loads(ks):
            emit(x, t)
        if TOUCHPOS2 == ks:
            for k0 in first_touch:
                for x, t in touch(k0):
                    emit(x, t)
    srd(em, SO, 6, X_BYTES)
    srd(em, SB2, 36, 1280)
    if B2PF:
        em.i("s_mul_i32 s44, %s, 160" % s(S_C))
        em.i("s_add_u32 s44, s36, s44")
        em.i("s_addc_u32 s45, s37, 0")
        for o in (0, 64, 128, 156):
            em.raw("    s_load_dword s46, s[44:45], %d" % o)
    for y in P2:
        emit(y)
    side = {}
    side[1] = [(x, "G") for x in GL]
    side[9] = [(x, "B") for x in BL]
    og = []
    for n in range(4):
        og.append("v_sub_f32 %s, 1.0, %s" % (v(OP + 2 * n), v(GP + 2 * n)))
        og.append("v_cvt_pk_bf16_f32 %s, %s, %s" % (v(OP + 2 * n), v(OP + 2 * n), v(OP + 2 * n)))
        og.append("v_lshlrev_b32 %s, 16, %s" % (v(OP + 2 * n), v(OP + 2 * n)))
    sc = []
    for n in range(4):
        for j in range(5):
            for h in range(2):
                A_ = v(accA(n, j) + 2 * h, 2)
                sc.append("v_pk_mul_f32 %s, %s, %s op_sel_hi:[1,0]" % (A_, A_, v(GP + 2 * n, 2)))
    side[1 + depth + 1] = [(x, None) for x in og]
    assert 1 + depth + 1 != 9
    for k in range(4):
        side[10 + k] = [(x, None) for x in sc[10 * k:10 * k + 10]]
    if K2E:
        bj = []
        for j in range(5):
            bj.append("v_lshlrev_b32 %s, 16, %s" % (v(RED), v(B2 + 2 * j)))
            bj.append("v_and_b32 %s, 0xffff0000, %s" % (v(RED + 1), v(B2 + 2 * j)))
            bj.append("v_lshlrev_b32 %s, 16, %s" % (v(RED + 2), v(B2 + 2 * j + 1)))
            bj.append("v_and_b32 %s, 0xffff0000, %s" % (v(RED + 3), v(B2 + 2 * j + 1)))
            for h in range(2):
                A_ = v(accA(0, j) + 2 * h, 2)
                bj.append("v_pk_fma_f32 %s, %s, %s, %s op_sel_hi:[1,0,1]" % (A_, v(RED + 2 * h, 2), v(OP, 2), A_))
        assert depth <= 4
        side[14] = [(x, None) for x in bj]
    for ks in range(NK - 1 if K2E else NK):
        b = ks % NB
        accf = accA if ks < 5 else accB
        first = ks in (0, 5)
        mf = []
        for j in range(5):
            for t in range(4):
                mf.append(mfma(v(accf(t, j), 4), a(FR(b, 4 + j), 4), a(FR(b, t), 4), "0" if first else None))
        nxt = loads(ks + depth) if ks + depth < NK else []
        if ks == 0:
            nxt = sum([loads(q) for q in range(d0, depth)], []) + nxt
        for k0 in tsched.get(ks, []):
            nxt += touch(k0)
        stamp_get(em, 1)
        em.i("s_waitcnt vmcnt(%d)" % min(63, younger(("L", ks))))
        stamp_put(em, VS, 0, True)
        stamp_put(em, VS, 1)
        stamp_get(em, 0)
        ext = side.get(ks, [])
        k = 0
        e = 0
        per = (len(ext) + 8) // 9 if ext else 0
        for mi, m in enumerate(mf):
            em.i(m)
            if K2SP > 1 and mi == 0:
                while k < len(nxt) and nxt[k][0].startswith("s_"):
                    emit(*nxt[k])
                    k += 1
            if k < len(nxt) and mi % K2SP == 0:
                emit(*nxt[k])
                k += 1
            elif e < len(ext) and (K2SP == 1 or ks not in (1, 9) or k >= len(nxt)):
                for _ in range(max(1, per)):
                    if e < len(ext):
                        emit(*ext[e])
                        e += 1
        while k < len(nxt):
            emit(*nxt[k])
            k += 1
        while e < len(ext):
            emit(*ext[e])
            e += 1
    if K2E:
        b = (NK - 1) % NB
        stamp_get(em, 1)
        for n in (1, 2, 3, 0):
            em.i("s_waitcnt vmcnt(%d)" % younger(("LA", n)))
            if n == 1:
                stamp_put(em, VS, 0, True)
                stamp_put(em, VS, 1)
                stamp_get(em, 0)
            for j in range(5):
                em.i(mfma(v(accB(n, j), 4), a(FR(b, 4 + j), 4), a(FR(b, n), 4)))
            if n:
                for j in range(5):
                    for h in range(2):
                        A_ = v(accA(n, j) + 2 * h, 2)
                        B_ = v(accB(n, j) + 2 * h, 2)
                        em.i("v_pk_fma_f32 %s, %s, %s, %s op_sel_hi:[1,0,1]" % (A_, B_, v(OP + 2 * n, 2), A_))
                    em.i(xw(n, j))
        stamp_get(em, 1)
        stamp_put(em, VS, 0, True)
        stamp_put(em, VS, 1)
    else:
        stamp_get(em, 1)
        stamp_put(em, VS, 0, True)
        stamp_put(em, VS, 1)
        for n in (1, 2, 3):
            for j in range(5):
                for h in range(2):
                    A_ = v(accA(n, j) + 2 * h, 2)
                    B_ = v(accB(n, j) + 2 * h, 2)
                    em.i("v_pk_fma_f32 %s, %s, %s, %s op_sel_hi:[1,0,1]" % (A_, B_, v(OP + 2 * n, 2), A_))
                em.i(xw(n, j))
        for j in range(5):
            R = RED if j & 1 else accB(1, 0)
            em.i("v_lshlrev_b32 %s, 16, %s" % (v(R), v(B2 + 2 * j)))
            em.i("v_and_b32 %s, 0xffff0000, %s" % (v(R + 1), v(B2 + 2 * j)))
            em.i("v_lshlrev_b32 %s, 16, %s" % (v(R + 2), v(B2 + 2 * j + 1)))
            em.i("v_and_b32 %s, 0xffff0000, %s" % (v(R + 3), v(B2 + 2 * j + 1)))
            for h in range(2):
                B_ = v(accB(0, j) + 2 * h, 2)
                em.i("v_pk_add_f32 %s, %s, %s" % (B_, B_, v(R + 2 * h, 2)))
            for h in range(2):
                A_ = v(accA(0, j) + 2 * h, 2)
                B_ = v(accB(0, j) + 2 * h, 2)
                em.i("v_pk_fma_f32 %s, %s, %s, %s op_sel_hi:[1,0,1]" % (A_, B_, v(OP, 2), A_))
    stamp_get(em, 0)
    em.i("s_waitcnt lgkmcnt(0)")
    stamp_get(em, 1)
    em.i("s_barrier")
    stamp_get(em, 2)
    stamp_put(em, VS, 0, True)
    stamp_put(em, VS, 1)
    stamp_put(em, VS, 2)
    for j in range(5):
        for sl in range(3):
            em.i(xr(sl, j))
    if K2E:
        for j in range(5):
            for h in range(2):
                A_ = v(accA(0, j) + 2 * h, 2)
                B_ = v(accB(0, j) + 2 * h, 2)
                em.i("v_pk_fma_f32 %s, %s, %s, %s op_sel_hi:[1,0,1]" % (A_, B_, v(OP, 2), A_))
    for j in range(5):
        em.i("s_waitcnt lgkmcnt(%d)" % (3 * (4 - j)))
        for h in range(2):
            A_ = v(accA(0, j) + 2 * h, 2)
            B1, B2_, B3 = [v(accB(1 + sl, j) + 2 * h, 2) for sl in range(3)]
            em.i("v_pk_add_f32 %s, %s, %s" % (A_, A_, B1))
            em.i("v_pk_add_f32 %s, %s, %s" % (B2_, B2_, B3))
        for h in range(2):
            A_ = v(accA(0, j) + 2 * h, 2)
            em.i("v_pk_add_f32 %s, %s, %s" % (A_, A_, v(accB(2, j) + 2 * h, 2)))
        r = accA(0, j)
        em.i("v_cvt_pk_bf16_f32 %s, %s, %s" % (v(r), v(r), v(r + 1)))
        em.i("v_cvt_pk_bf16_f32 %s, %s, %s" % (v(r + 1), v(r + 2), v(r + 3)))
        em.i("buffer_store_dwordx2 %s, %s, %s, %s offen offset:%d%s" % (v(r, 2), v(VOUT), s(SO, 4), s(S_OUT), 32 * j, WT2))
    stamp_end(em, VS, SW, S_W_, 0x40000)
    em.label("L_k2_end")
    em.i("s_endpgm")
    return NB * 36


def desc(name, nfv, acc_off):
    return """.amdhsa_kernel %s
  .amdhsa_next_free_vgpr %d
  .amdhsa_next_free_sgpr 96
  .amdhsa_accum_offset %d
  .amdhsa_group_segment_fixed_size 0
  .amdhsa_kernarg_size 96
  .amdhsa_user_sgpr_count 2
  .amdhsa_user_sgpr_kernarg_segment_ptr 1
  .amdhsa_system_sgpr_workgroup_id_x 1
.end_amdhsa_kernel
""" % (name, nfv, acc_off)


def main(out, which="12"):
    em = Em()
    if "1" in which:
        em.raw("; @launch kernel=k1_kernel grid=(256,1,1) block=(256,1,1) lds=%d" % K1_LDS)
    if "2" in which:
        em.raw("; @launch kernel=k2_kernel grid=(256,1,1) block=(256,1,1) lds=%d" % K2_LDS)
    em.raw('.amdgcn_target "amdgcn-amd-amdhsa--gfx950"')
    em.raw(".text")
    if "1" in which:
        gen_k1(em)
    if "2" in which:
        na = gen_k2(em, K2DEPTH)
    em.raw('.section .rodata,"a"')
    if "1" in which:
        em.raw(".p2align 6")
        em.raw(desc("k1_kernel", 256 + 104, 256))
    if "2" in which:
        em.raw(".p2align 6")
        em.raw(desc("k2_kernel", 216 + na, 216))
    open(out, "w").write(em.text())
    print("wrote", out, "lines", len(em.lines), "nop states", em.nops)


if __name__ == "__main__":
    main(sys.argv[1], sys.argv[2] if len(sys.argv) > 2 else "12")
```
